```python
import torch

def _softmax(x, axis=-1):
    return torch.softmax(x, dim=axis)
def _gelu(x):
    return torch.nn.functional.gelu(x, approximate="tanh")
def _silu(x):
    return torch.nn.functional.silu(x)
def _sigmoid(x):
    return torch.sigmoid(x)
def _layernorm(x, axis=-1, eps=1e-5):
    m = x.mean(dim=axis, keepdim=True)
    v = x.var(dim=axis, keepdim=True, unbiased=False)
    return (x - m) / torch.sqrt(v + eps)
def _scatter_add(tgt, idx, src, axis=0):
    return tgt.clone().index_add_(axis, idx, src)
def _segment_sum(src, seg, n):
    out = torch.zeros((n,) + src.shape[1:], dtype=src.dtype)
    return out.index_add_(0, seg, src)
def _pad(x, pw):
    flat = tuple(v for pair in reversed(pw) for v in pair)
    return torch.nn.functional.pad(x, flat)

kernel_name = 'standalone__geglu_ffn__prompt'

def setup_inputs():

    _w = (lambda a: (lambda t: t.to(torch.bfloat16) if t.is_floating_point() else t)(torch.as_tensor(a)))
    B, S, D, F = 1, 2048, 448, 1792
    return {
        "x": _w((lambda *s: torch.randn(*s, dtype=torch.bfloat16) * 0.05)(B, S, D)),
        "w_gate": _w((lambda *s: torch.randn(*s, dtype=torch.bfloat16) * 0.05)(D, F)),
        "w_up": _w((lambda *s: torch.randn(*s, dtype=torch.bfloat16) * 0.05)(D, F)),
        "w_down": _w((lambda *s: torch.randn(*s, dtype=torch.bfloat16) * 0.05)(F, D)),
    }

def reference(x, w_gate, w_up, w_down):
    return (_gelu(x @ w_gate) * (x @ w_up)) @ w_down
```

```python
KN = "standalone__geglu_ffn__prompt_kernel"

class Asm:
    def __init__(self):
        self.lines = []
    def __call__(self, s):
        for l in s.strip("\n").split("\n"):
            self.lines.append(l)
    def text(self):
        return "\n".join(self.lines) + "\n"

def header(launches):
    s = ""
    if len(launches) == 1 and launches[0][0] == KN:
        k, g, b, l = launches[0]
        s += f"; @launch grid=({g},1,1) block=({b},1,1) lds={l}\n"
    else:
        for k, g, b, l in launches:
            s += f"; @launch kernel={k} grid=({g},1,1) block=({b},1,1) lds={l}\n"
    s += '.amdgcn_target "amdgcn-amd-amdhsa--gfx950"\n.text\n'
    return s

def kernel_begin(name):
    return f".globl {name}\n.p2align 8\n.type {name},@function\n{name}:\n"

def descriptor(name, vgpr=256, sgpr=102, accum=None):
    if accum is None:
        accum = min(256, (vgpr + 3) // 4 * 4)
    return f""".amdhsa_kernel {name}
  .amdhsa_next_free_vgpr {vgpr}
  .amdhsa_next_free_sgpr {sgpr}
  .amdhsa_accum_offset {accum}
  .amdhsa_group_segment_fixed_size 0
  .amdhsa_kernarg_size 56
  .amdhsa_user_sgpr_count 2
  .amdhsa_user_sgpr_kernarg_segment_ptr 1
  .amdhsa_system_sgpr_workgroup_id_x 1
.end_amdhsa_kernel
"""

def rodata_begin():
    return '.section .rodata,"a"\n.p2align 6\n'

STAMP_OFF = 128 << 20

def stamp(k, base=80):
    return f"s_memrealtime s[{base+2*k}:{base+2*k+1}]\n"

def store_stamps(n, ws_lo, ws_hi, wg_sgpr, base=80, nslot=8, vt=0, tmp=76):
    s = f"s_waitcnt lgkmcnt(0)\n"
    s += f"s_mul_i32 s{tmp}, s{wg_sgpr}, {nslot*8}\n"
    s += f"s_add_u32 s{tmp}, s{tmp}, {STAMP_OFF}\n"
    s += f"s_add_u32 s{tmp+2}, s{ws_lo}, s{tmp}\n"
    s += f"s_addc_u32 s{tmp+3}, s{ws_hi}, 0\n"
    s += f"v_mov_b32 v{vt}, 0\n"
    s += f"s_mov_b64 exec, 1\n"
    for k in range(n):
        s += f"v_mov_b32 v{vt+2}, s{base+2*k}\n"
        s += f"v_mov_b32 v{vt+3}, s{base+2*k+1}\n"
        s += f"global_store_dwordx2 v{vt}, v[{vt+2}:{vt+3}], s[{tmp+2}:{tmp+3}] offset:{8*k}\n"
        s += f"s_waitcnt vmcnt(0)\n"
    s += f"s_mov_b64 exec, -1\n"
    return s
```

```python
import sys, struct
from asmlib import *

def f2u(x):
    return struct.unpack("<I", struct.pack("<f", x))[0]

C0 = -2.0 * 1.4426950408889634 * 0.7978845608028654
C1 = C0 * 0.044715

def common_prologue(a, nwg, end):
    a(f"""
    s_cmp_ge_u32 s2, {nwg}
    s_cbranch_scc1 {end}
    s_load_dwordx4 s[4:7], s[0:1], 0      ; x, wg
    s_load_dwordx4 s[8:11], s[0:1], 16
    s_load_dwordx4 s[12:15], s[0:1], 32
    s_load_dwordx2 s[16:17], s[0:1], 48   ; ws
    v_and_b32 v1, 63, v0                  ; lane
    v_lshrrev_b32 v2, 6, v0               ; wave
    s_and_b32 s19, s2, 7                  ; xcd
    v_readfirstlane_b32 s18, v2
    s_lshr_b32 s20, s2, 3                 ; within
    """)

def srd(a, d, lo, size):
    a(f"""
    s_mov_b32 s{d}, s{lo}
    s_mov_b32 s{d+1}, s{lo+1}
    s_mov_b32 s{d+2}, {size}
    s_mov_b32 s{d+3}, 0x20000
    """)

HBYTES = 64 * 112 * 1024

def phase1(a, stamps=False):
    K = "p1_kernel"
    a(kernel_begin(K))
    if stamps: a("s_memrealtime s[80:81]")
    common_prologue(a, 224, "L1_end")
    a(f"""
    s_lshr_b32 s22, s19, 1
    s_mul_i32 s22, s22, 28
    s_add_u32 s22, s22, s20
    s_and_b32 s21, s22, 7
    s_lshr_b32 s22, s22, 3                ; fc 0..13
    s_and_b32 s23, s19, 1
    s_lshl_b32 s23, s23, 3
    s_add_u32 s21, s21, s23               ; mt 0..15
    v_lshrrev_b32 v8, 3, v1
    v_mul_u32_u24 v8, 896, v8             ; (l>>3)*896
    v_and_b32 v9, 7, v1
    v_lshrrev_b32 v10, 4, v1
    v_xor_b32 v11, v9, v10                ; c even
    v_lshl_add_u32 v2, v11, 4, v8
    v_xor_b32 v11, 4, v11
    v_lshl_add_u32 v3, v11, 4, v8
    s_mul_i32 s23, s21, {128*896}
    s_mul_i32 s48, s18, {16*896}
    s_add_u32 s23, s23, s48
    v_add_u32 v2, s23, v2
    s_add_u32 s23, s23, {8*896-1024}
    v_add_u32 v3, s23, v3
    ; G/U: r = l>>4, c' = l&15, c = c' ^ (4r + 2mat)
    v_lshrrev_b32 v8, 4, v1               ; r
    v_and_b32 v9, 15, v1
    v_lshlrev_b32 v10, 2, v8
    v_xor_b32 v9, v9, v10                 ; c gate
    v_mul_u32_u24 v8, 3584, v8
    v_lshl_add_u32 v4, v9, 4, v8          ; gate
    v_xor_b32 v9, 2, v9
    v_lshl_add_u32 v6, v9, 4, v8          ; up
    s_mul_i32 s23, s18, {8*3584}
    s_lshl_b32 s48, s22, 8                ; f0*2 = fc*256
    s_add_u32 s23, s23, s48
    v_add_u32 v4, s23, v4
    v_add_u32 v6, s23, v6
    v_add_u32 v5, {4*3584-1024}, v4
    v_add_u32 v7, {4*3584-1024}, v6
    v_lshrrev_b32 v24, 5, v1              ; h
    v_bfe_u32 v25, v1, 4, 1               ; mat
    v_bfe_u32 v26, v1, 2, 2               ; rr
    v_and_b32 v27, 3, v1                  ; cc
    v_lshl_add_u32 v28, v24, 3, v26       ; 8h+rr
    v_lshlrev_b32 v28, 8, v28             ; *256
    v_lshl_add_u32 v28, v25, 14, v28      ; + mat*16384
    v_lshl_add_u32 v28, v27, 3, v28       ; + cc*8
    v_add_u32 v28, 16384, v28
    v_lshl_add_u32 v29, v26, 1, v25
    s_lshr_b32 s48, s18, 2
    s_lshl_b32 s48, s48, 2                ; 4*fh
    """)
    for j in range(4):
        a(f"""
    s_add_u32 s49, s48, {j}
    v_xor_b32 v30, s49, v29
    v_lshl_add_u32 v{8+j}, v30, 5, v28
        """)
    a(f"""
    v_and_b32 v26, 31, v1
    v_bfe_u32 v27, v1, 1, 3               ; sigma
    v_xor_b32 v27, v27, v24               ; h ^ sigma
    v_lshlrev_b32 v27, 4, v27
    v_lshl_add_u32 v27, v26, 7, v27
    s_and_b32 s48, s18, 3
    s_lshl_b32 s48, s48, 12               ; mi*32*128
    v_add_u32 v12, s48, v27
    v_xor_b32 v13, 32, v12
    v_xor_b32 v14, 64, v12
    v_xor_b32 v15, 96, v12
    s_waitcnt lgkmcnt(0)
    """)
    srd(a, 24, 4, 2048 * 896)
    srd(a, 28, 6, 448 * 3584)
    srd(a, 32, 8, 448 * 3584)
    srd(a, 40, 16, HBYTES)
    if stamps: a("s_memrealtime s[82:83]")
    def issue():
        a(f"""
    s_lshl_b32 s52, s50, 7                ; x soffset = 128*s
    s_mul_i32 s53, s50, {64*3584}
    s_lshl_b32 s54, s18, 11
    s_add_u32 s54, s54, s51
    s_mov_b32 m0, s54
    s_add_u32 s54, s54, 16384
    buffer_load_dwordx4 v2, s[24:27], s52 offen lds
    buffer_load_dwordx4 v3, s[24:27], s52 offen offset:1024 lds
    s_mov_b32 m0, s54
    s_add_u32 s54, s54, 16384
    buffer_load_dwordx4 v4, s[28:31], s53 offen lds
    buffer_load_dwordx4 v5, s[28:31], s53 offen offset:1024 lds
    s_mov_b32 m0, s54
    s_nop 0
    buffer_load_dwordx4 v6, s[32:35], s53 offen lds
    buffer_load_dwordx4 v7, s[32:35], s53 offen offset:1024 lds
        """)
    for s in range(3):
        a(f"s_mov_b32 s50, {s}\ns_mov_b32 s51, {s*49152}")
        issue()
    ACC = 72
    for i in range(64):
        a(f"v_mov_b32 v{ACC+i}, 0")
    FR = 32
    def reads(q, p):
        b = FR + 20 * p
        a(f"ds_read_b128 v[{b}:{b+3}], v{20+q}")
        for j in range(4):
            a(f"ds_read_b64_tr_b16 v[{b+4+4*j}:{b+5+4*j}], v{16+j} offset:{q*4096}")
            a(f"ds_read_b64_tr_b16 v[{b+6+4*j}:{b+7+4*j}], v{16+j} offset:{q*4096+1024}")
    def mfmas(p):
        b = FR + 20 * p
        for j in range(4):
            a(f"v_mfma_f32_32x32x16_bf16 v[{ACC+16*j}:{ACC+16*j+15}], v[{b+4+4*j}:{b+7+4*j}], v[{b}:{b+3}], v[{ACC+16*j}:{ACC+16*j+15}]")
    a(f"""
    s_mov_b32 s55, 0
    s_mov_b32 s56, 0
    s_waitcnt vmcnt(12)
    s_branch L1_first
L1_loop:
    s_cmp_eq_u32 s55, 6
    s_cbranch_scc1 L1_w0
    s_waitcnt vmcnt(6)
    s_branch L1_first
L1_w0:
    s_waitcnt vmcnt(0)
L1_first:
    s_barrier
    """)
    if stamps:
        a("s_cmp_lg_u32 s55, 0\ns_cbranch_scc1 L1_nost\ns_memrealtime s[84:85]\nL1_nost:")
    a(f"""
    s_sub_u32 s57, s55, 1
    s_cmp_lt_u32 s57, 4
    s_cbranch_scc0 L1_noissue
    s_add_u32 s50, s55, 2
    s_sub_u32 s51, s56, 49152
    s_cmp_eq_u32 s56, 0
    s_cselect_b32 s51, 98304, s51
    """)
    issue()
    a("L1_noissue:")
    for j in range(8):
        a(f"v_add_u32 v{16+j}, s56, v{8+j}")
    reads(0, 0)
    reads(1, 1)
    a("s_waitcnt lgkmcnt(9)")
    mfmas(0)
    reads(2, 0)
    a("s_waitcnt lgkmcnt(9)")
    mfmas(1)
    reads(3, 1)
    a("s_waitcnt lgkmcnt(9)")
    mfmas(0)
    a("s_waitcnt lgkmcnt(0)")
    mfmas(1)
    a(f"""
    s_add_u32 s55, s55, 1
    s_add_u32 s56, s56, 49152
    s_cmp_eq_u32 s56, 147456
    s_cselect_b32 s56, 0, s56
    s_cmp_lt_u32 s55, 7
    s_cbranch_scc1 L1_loop
    """)
    if stamps: a("s_memrealtime s[86:87]")
    a(f"""
    s_mov_b32 s60, {f2u(C0)}
    s_mov_b32 s61, {f2u(C1)}
    v_mov_b32 v24, s60
    v_lshlrev_b32 v2, 4, v1
    s_and_b32 s48, s18, 3
    s_lshl_b32 s49, s21, 2
    s_add_u32 s48, s48, s49
    s_mul_i32 s48, s48, 112
    s_lshl_b32 s49, s22, 3
    s_add_u32 s48, s48, s49
    s_lshr_b32 s49, s18, 2
    s_lshl_b32 s49, s49, 2
    s_add_u32 s48, s48, s49
    s_lshl_b32 s48, s48, 10
    s_nop 7
    """)
    for j in range(4):
        g = ACC + 16 * j
        T = 32
        o = 48 + 4 * j
        for r in range(8):
            a(f"v_mul_f32 v{T+r}, v{g+r}, v{g+r}")
        for r in range(8):
            a(f"v_fma_f32 v{T+r}, v{T+r}, s61, v24")
        for r in range(8):
            a(f"v_mul_f32 v{T+r}, v{T+r}, v{g+r}")
        for r in range(8):
            a(f"v_exp_f32 v{T+r}, v{T+r}")
        for r in range(8):
            a(f"v_mul_f32 v{g+r}, v{g+r}, v{g+8+r}")
        for r in range(8):
            a(f"v_add_f32 v{T+r}, 1.0, v{T+r}")
        for r in range(8):
            a(f"v_rcp_f32 v{T+r}, v{T+r}")
        a("s_nop 0")
        for r in range(8):
            a(f"v_mul_f32 v{g+r}, v{g+r}, v{T+r}")
        for d in range(4):
            a(f"v_cvt_pk_bf16_f32 v{o+d}, v{g+2*d}, v{g+2*d+1}")
        a(f"buffer_store_dwordx4 v[{o}:{o+3}], v2, s[40:43], s48 offen offset:{j*1024}")
    if stamps:
        a("s_waitcnt vmcnt(0)\ns_memrealtime s[88:89]\ns_cmp_lg_u32 s18, 0\ns_cbranch_scc1 L1_end")
        a(store_stamps(5, 16, 17, 2))
    a("L1_end:\ns_endpgm")
    return K

def phase2(a, stamps=False):
    K = "p2_kernel"
    a(kernel_begin(K))
    if stamps: a("s_memrealtime s[80:81]")
    common_prologue(a, 224, "L2_end")
    a(f"""
    s_mul_i32 s21, s20, 37
    s_lshr_b32 s21, s21, 8                ; within/7
    s_mul_i32 s22, s21, 7
    s_sub_u32 s22, s20, s22               ; nt
    s_lshl_b32 s23, s19, 2
    s_add_u32 s21, s21, s23               ; m64
    v_lshlrev_b32 v2, 4, v1               ; lane*16
    v_lshrrev_b32 v8, 3, v1
    v_mul_u32_u24 v8, 896, v8
    v_and_b32 v9, 7, v1
    v_bfe_u32 v10, v1, 4, 1
    v_lshlrev_b32 v10, 2, v10
    v_xor_b32 v9, v9, v10
    v_lshl_add_u32 v3, v9, 4, v8
    s_mul_i32 s23, s18, {224*896}
    s_lshl_b32 s48, s22, 7
    s_add_u32 s23, s23, s48
    v_add_u32 v3, s23, v3
    v_add_u32 v6, {8*896-1024}, v3
    v_lshrrev_b32 v8, 5, v1
    v_bfe_u32 v9, v1, 2, 2
    v_lshl_add_u32 v8, v8, 2, v9          ; 4h+rr
    v_lshlrev_b32 v8, 7, v8
    v_bfe_u32 v10, v1, 4, 1               ; grp
    v_bfe_u32 v11, v1, 3, 1
    v_lshlrev_b32 v11, 1, v11
    v_xor_b32 v10, v10, v11
    v_lshl_add_u32 v8, v10, 5, v8
    v_and_b32 v9, 3, v1
    v_lshl_add_u32 v8, v9, 3, v8
    s_mul_i32 s23, s18, 20480
    v_add_u32 v4, s23, v8
    v_xor_b32 v5, 64, v4
    s_waitcnt lgkmcnt(0)
    """)
    srd(a, 36, 10, 1792 * 896)
    srd(a, 40, 16, HBYTES)
    srd(a, 44, 12, 2048 * 896)
    if stamps: a("s_memrealtime s[82:83]")
    H = 16; ACC = 128; AF = 192
    a(f"""
    s_lshl_b32 s48, s21, 1
    s_mul_i32 s48, s48, 112
    s_mul_i32 s49, s18, 14
    s_add_u32 s48, s48, s49
    s_lshl_b32 s48, s48, 10
    s_add_u32 s49, s48, {112*1024}
    s_mul_i32 s54, s18, 20480
    s_mov_b32 s52, 0
    """)
    def dma(q, slot):
        a(f"""
    s_add_u32 s55, s54, {slot*2048}
    s_mov_b32 m0, s55
    s_mov_b32 s52, {q*16*896}
    buffer_load_dwordx4 v3, s[36:39], s52 offen lds
    buffer_load_dwordx4 v6, s[36:39], s52 offen offset:1024 lds
        """)
    def hload(q):
        a(f"""
    buffer_load_dwordx4 v[{H+8*q}:{H+8*q+3}], v2, s[40:43], s48 offen
    buffer_load_dwordx4 v[{H+8*q+4}:{H+8*q+7}], v2, s[40:43], s49 offen
    s_add_u32 s48, s48, 1024
    s_add_u32 s49, s49, 1024
        """)
    for q in range(10):
        dma(q, q); hload(q)
    for q in range(10, 14):
        hload(q)
    for i in range(64):
        a(f"v_mov_b32 v{ACC+i}, 0")
    def areads(q, p):
        slot = q % 10
        b = AF + 8 * p
        for n2 in range(2):
            a(f"ds_read_b64_tr_b16 v[{b+4*n2}:{b+4*n2+1}], v{4+n2} offset:{slot*2048}")
            a(f"ds_read_b64_tr_b16 v[{b+4*n2+2}:{b+4*n2+3}], v{4+n2} offset:{slot*2048+1024}")
    def mf(q, p):
        b = AF + 8 * p
        for n2 in range(2):
            for m2 in range(2):
                c = ACC + 16 * (2 * n2 + m2)
                a(f"v_mfma_f32_32x32x16_bf16 v[{c}:{c+15}], v[{b+4*n2}:{b+4*n2+3}], v[{H+8*q+4*m2}:{H+8*q+4*m2+3}], v[{c}:{c+15}]")
    issued = 48
    order = []
    for q in range(10):
        order += [("d", q)] * 2 + [("h", q)] * 2
    for q in range(10, 14):
        order += [("h", q)] * 2
    def wait_for(items):
        last = max(i for i, it in enumerate(order) if it in items)
        n = len(order) - 1 - last
        a(f"s_waitcnt vmcnt({min(n,63)})")
    wait_for([("d", 0)])
    areads(0, 0)
    for q in range(14):
        p = q & 1
        if q + 1 < 14:
            wait_for([("d", q + 1), ("h", q)])
            areads(q + 1, p ^ 1)
            a("s_waitcnt lgkmcnt(4)")
        else:
            wait_for([("h", q)])
            a("s_waitcnt lgkmcnt(0)")
        mf(q, p)
        if q < 4:
            dma(q + 10, q)
            order += [("d", q + 10)] * 2
        if q == 0 and stamps: a("s_memrealtime s[84:85]")
    if stamps: a("s_memrealtime s[86:87]")
    a(f"""
    s_nop 7
    s_nop 7
    s_barrier
    v_and_b32 v8, 31, v1
    v_lshrrev_b32 v9, 5, v1               ; h
    v_and_b32 v10, 15, v1                 ; m&15
    v_xor_b32 v10, v10, v9                ; (h ^ (m&15))
    v_lshlrev_b32 v11, 8, v8              ; m*256
    s_lshl_b32 s23, s18, 14
    v_add_u32 v11, s23, v11
    """)
    for n2 in range(2):
        for g in range(4):
            ce = 8 * n2 + 2 * g
            a(f"v_xor_b32 v12, {ce}, v10\nv_lshl_add_u32 v{194+4*0}, v12, 4, v11".replace(f"v{194}", "v13"))
            for m2 in range(2):
                c = ACC + 16 * (2 * n2 + m2) + 4 * g
                a(f"ds_write_b128 v13, v[{c}:{c+3}] offset:{m2*32*256}")
    a(f"""
    s_waitcnt lgkmcnt(0)
    s_barrier
    v_lshrrev_b32 v8, 3, v1
    s_lshl_b32 s23, s18, 3
    v_add_u32 v8, s23, v8                 ; row
    v_and_b32 v9, 15, v8                  ; row&15
    v_and_b32 v10, 7, v1
    v_lshlrev_b32 v10, 1, v10             ; 2cp
    v_xor_b32 v11, v10, v9
    v_lshlrev_b32 v11, 4, v11
    v_lshl_add_u32 v11, v8, 8, v11
    v_xor_b32 v12, 16, v11
    v_add_u32 v13, 65536, v11
    v_add_u32 v14, 65536, v12
    """)
    for w in range(8):
        lo, hi = (11, 12) if w < 4 else (13, 14)
        off = (w % 4) * 16384
        a(f"ds_read_b128 v[{16+8*w}:{19+8*w}], v{lo} offset:{off}")
        a(f"ds_read_b128 v[{20+8*w}:{23+8*w}], v{hi} offset:{off}")
    a(f"""
    s_lshl_b32 s23, s21, 6
    v_add_u32 v8, s23, v8
    v_mul_u32_u24 v8, 896, v8
    v_and_b32 v10, 7, v1
    v_lshl_add_u32 v8, v10, 4, v8
    s_lshl_b32 s23, s22, 7
    v_add_u32 v8, s23, v8
    s_waitcnt lgkmcnt(0)
    """)
    for w in range(1, 8):
        for i in range(8):
            a(f"v_add_f32 v{16+i}, v{16+i}, v{16+8*w+i}")
    for d in range(4):
        a(f"v_cvt_pk_bf16_f32 v{100+d}, v{16+2*d}, v{17+2*d}")
    a("buffer_store_dwordx4 v[100:103], v8, s[44:47], 0 offen")
    if stamps:
        a("s_waitcnt vmcnt(0)\ns_memrealtime s[88:89]\ns_cmp_lg_u32 s18, 0\ns_cbranch_scc1 L2_end\ns_add_u32 s2, s2, 256")
        a(store_stamps(5, 16, 17, 2))
    a("L2_end:\ns_endpgm")
    return K

def gen(name, stamps=False):
    a = Asm()
    a(header([("p1_kernel", 224, 512, 147456), ("p2_kernel", 224, 512, 163840)]))
    phase1(a, stamps)
    phase2(a, stamps)
    a(rodata_begin())
    a(descriptor("p1_kernel", vgpr=136, sgpr=102))
    a(".p2align 6")
    a(descriptor("p2_kernel", vgpr=208, sgpr=102))
    open(name, "w").write(a.text())

if __name__ == "__main__":
    gen("v1.s", False)
    gen("v1s.s", True)
```

```python
import sys, struct
from asmlib import *

def f2u(x):
    return struct.unpack("<I", struct.pack("<f", x))[0]

C0 = -2.0 * 1.4426950408889634 * 0.7978845608028654
C1 = C0 * 0.044715
FLAG_OFF = 8 << 20
WS_SIZE = 9 << 20
MF = "v_mfma_f32_32x32x16_bf16"

def srd(a, d, lo, size):
    a(f"""
    s_mov_b32 s{d}, s{lo}
    s_mov_b32 s{d+1}, s{lo+1}
    s_mov_b32 s{d+2}, {size}
    s_mov_b32 s{d+3}, 0x20000
    """)

class Opt:
    stamps = False
    prefetch = True
    geglu_steps = 26
    abl = ""
    trace = ""
    rot = True
    wd_start = 11
    pk = True
    helpers = True
    wbx4 = True
    extraH = True
    flagA_bar = 9
    sb_step = 14

def gen(name, o):
    a = Asm()
    NW = 6
    a(header([(KN, 256 if o.helpers else 224, NW * 64, 163840)]))
    a(kernel_begin(KN))
    st = (lambda k: a(f"s_memrealtime s[{80+2*k}:{81+2*k}]")) if o.stamps else (lambda k: None)
    cnt = {"C": 0, "L": 0, "S": 0, "P": 0, "D": 0, "K": 0}
    def trk():
        if o.trace == "K" and cnt["K"] < 16:
            k = cnt["K"]; cnt["K"] += 2
            a(f"s_memtime s[{70+2*k}:{71+2*k}]\ns_memrealtime s[{72+2*k}:{73+2*k}]")
    def tr(who):
        if o.trace == who and cnt[who] < 16:
            k = cnt[who]; cnt[who] += 1
            a(f"s_memtime s[{70+2*k}:{71+2*k}]")
    def tr_store(who, vt=0, tmp=24):
        if o.trace == who:
            a("s_waitcnt vmcnt(0) lgkmcnt(0)")
            for k in range(cnt[who], 16):
                a(f"s_mov_b32 s{70+2*k}, 0\ns_mov_b32 s{71+2*k}, 0")
            a(store_stamps(16, 16, 17, 2, base=70, nslot=16, vt=vt, tmp=tmp))
    a(f"""
    s_cmp_ge_u32 s2, {256 if o.helpers else 224}
    s_cbranch_scc1 L_end
    s_load_dwordx4 s[4:7], s[0:1], 0      ; x, wg
    s_load_dwordx4 s[8:11], s[0:1], 16
    s_load_dwordx4 s[12:15], s[0:1], 32
    s_load_dwordx2 s[16:17], s[0:1], 48   ; ws
    """)
    st(0); trk()
    a(f"""
    v_and_b32 v1, 63, v0                  ; lane
    v_lshrrev_b32 v2, 6, v0               ; wave
    s_and_b32 s19, s2, 7                  ; xcd
    v_readfirstlane_b32 s18, v2
    s_lshr_b32 s20, s2, 3                 ; within 0..27
    s_mul_i32 s21, s20, 37
    s_lshr_b32 s21, s21, 8                ; l4 = within/7  (0..3)
    s_mul_i32 s22, s21, 7
    s_sub_u32 s22, s20, s22               ; l7 = within%7  (0..6)
    s_and_b32 s52, s19, 3
    s_lshl_b32 s52, s52, 2
    s_add_u32 s52, s52, s21
    s_lshr_b32 s53, s19, 2
    s_mul_i32 s53, s53, 7
    s_add_u32 s53, s53, s22
    s_lshl_b32 s54, s19, 2
    s_add_u32 s54, s54, s21
    s_mov_b32 s55, s22
    s_lshl_b32 s23, s21, 1
    s_add_u32 s23, s23, s22
    s_cmp_ge_u32 s23, 7
    s_cselect_b32 s56, 7, 0
    s_sub_u32 s23, s23, s56
    """)
    if not o.rot: a("s_mov_b32 s23, 0")
    RT = 60
    for j in range(7):
        a(f"""
    s_add_u32 s{RT+j}, s23, {j}
    s_cmp_ge_u32 s{RT+j}, 7
    s_cselect_b32 s56, 7, 0
    s_sub_u32 s{RT+j}, s{RT+j}, s56
        """)
    a(f"""
    s_cmp_ge_u32 s2, 224
    s_cbranch_scc1 L_helper
    s_cmp_eq_u32 s18, 4
    s_cbranch_scc1 L_loader
    s_cmp_eq_u32 s18, 5
    s_cbranch_scc1 L_poller
    """)
    XF = 8; WB = 6; DB = 16; T = 24; PK = 40; FR = 48; ACCA = 112; ACCB = 176
    a(f"""
    v_lshrrev_b32 v24, 3, v1
    v_mul_u32_u24 v25, 896, v24
    v_and_b32 v26, 7, v1
    v_lshrrev_b32 v27, 4, v1
    v_xor_b32 v28, v26, v27
    v_lshl_add_u32 v2, v28, 4, v25
    v_xor_b32 v28, 4, v28
    v_lshl_add_u32 v3, v28, 4, v25
    s_mul_i32 s56, s52, {128*896}
    s_mul_i32 s57, s18, {32*896}
    s_add_u32 s56, s56, s57
    v_add_u32 v2, s56, v2
    s_add_u32 s56, s56, {8*896-1024}
    v_add_u32 v3, s56, v3
    v_add_u32 v4, {2*(8*896-1024)}, v2
    v_add_u32 v5, {2*(8*896-1024)}, v3
    v_mul_u32_u24 v25, 3584, v24
    v_bfe_u32 v27, v1, 4, 1
    v_lshlrev_b32 v28, 1, v27
    v_xor_b32 v28, v26, v28
    s_lshr_b32 s56, s18, 1
    s_lshl_b32 s57, s56, 2
    v_xor_b32 v28, s57, v28               ; ^ (mat<<2)
    v_lshl_add_u32 v48, v28, 4, v25
    s_lshl_b32 s57, s53, 8
    s_and_b32 s59, s18, 1
    s_mul_i32 s59, s59, {32*3584}
    s_add_u32 s57, s57, s59
    v_add_u32 v48, s57, v48
    v_add_u32 v49, {8*3584-1024}, v48
    v_add_u32 v50, {2*(8*3584-1024)}, v48
    v_add_u32 v51, {3*(8*3584-1024)}, v48
    s_lshl_b32 s57, s56, 13
    s_and_b32 s59, s18, 1
    s_lshl_b32 s59, s59, 12
    s_add_u32 s32, s57, s59
    s_add_u32 s32, s32, 114688
    s_lshl_b32 s58, s18, 12               ; c*4096
    s_waitcnt lgkmcnt(0)
    s_cmp_eq_u32 s56, 0
    s_cselect_b32 s28, s6, s8
    s_cselect_b32 s29, s7, s9
    s_mov_b32 s30, {448*3584}
    s_mov_b32 s31, 0x20000
    """)
    srd(a, 24, 4, 2048 * 896)
    def xdma(s):
        a(f"""
    s_add_u32 s57, s58, {s*16384}
    s_mov_b32 m0, s57
    s_lshl_b32 s59, s{RT+s}, 7
    buffer_load_dwordx4 v2, s[24:27], s59 offen lds
    buffer_load_dwordx4 v3, s[24:27], s59 offen offset:1024 lds
    buffer_load_dwordx4 v4, s[24:27], s59 offen offset:2048 lds
    buffer_load_dwordx4 v5, s[24:27], s59 offen offset:3072 lds
        """)
    def wq(s):
        a(f"""
    s_add_u32 s57, s32, {s*16384}
    s_mov_b32 m0, s57
    s_mul_i32 s59, s{RT+s}, {64*3584}
    buffer_load_dwordx4 v48, s[28:31], s59 offen lds
    buffer_load_dwordx4 v49, s[28:31], s59 offen offset:1024 lds
    buffer_load_dwordx4 v50, s[28:31], s59 offen offset:2048 lds
    buffer_load_dwordx4 v51, s[28:31], s59 offen offset:3072 lds
        """)
    tr("S")
    xdma(0); wq(0); xdma(1); wq(1)
    tr("S")
    a("s_barrier")
    tr("S")
    if o.trace == "S":
        for n in (12, 8, 4, 0):
            a(f"s_waitcnt vmcnt({n})"); tr("S")
    srd(a, 40, 16, WS_SIZE)
    srd(a, 44, 12, 2048 * 896)
    a(f"""
    ; W A-frag bases
    v_lshrrev_b32 v24, 5, v1              ; h
    v_bfe_u32 v25, v1, 4, 1               ; mat / grp
    v_bfe_u32 v26, v1, 2, 2               ; rr
    v_and_b32 v27, 3, v1                  ; cc
    v_lshl_add_u32 v28, v24, 3, v26       ; 8h+rr
    v_lshlrev_b32 v28, 7, v28
    v_lshl_add_u32 v28, v25, 13, v28
    v_lshl_add_u32 v28, v27, 3, v28
    v_add_u32 v28, 114688, v28
    v_bfe_u32 v29, v1, 3, 1
    v_lshl_add_u32 v29, v25, 1, v29       ; g
    s_lshr_b32 s56, s18, 1
    s_lshl_b32 s56, s56, 1                ; 2fh
    v_xor_b32 v30, s56, v29
    v_lshl_add_u32 v6, v30, 5, v28
    v_xor_b32 v7, 32, v6
    ; x frag bases
    v_and_b32 v26, 31, v1
    v_bfe_u32 v27, v1, 1, 3
    v_xor_b32 v27, v27, v24
    v_lshlrev_b32 v27, 4, v27
    v_lshl_add_u32 v27, v26, 7, v27
    s_and_b32 s56, s18, 1
    s_lshl_b32 s56, s56, 13
    v_add_u32 v8, s56, v27
    v_xor_b32 v9, 32, v8
    v_xor_b32 v10, 64, v8
    v_xor_b32 v11, 96, v8
    v_add_u32 v12, 0x10000, v8
    v_add_u32 v13, 0x10000, v9
    v_add_u32 v14, 0x10000, v10
    v_add_u32 v15, 0x10000, v11
    ; Wd A-frag bases: row = 64kh + 4h + rr ; granule = (grp ^ 2b) ^ (2*kh) for acc0 (n2=kh)
    v_bfe_u32 v26, v1, 2, 2
    v_lshl_add_u32 v26, v24, 2, v26       ; 4h+rr
    s_lshr_b32 s56, s18, 1                ; kh
    s_lshl_b32 s57, s56, 6
    v_add_u32 v26, s57, v26
    v_lshlrev_b32 v26, 7, v26
    v_bfe_u32 v27, v1, 3, 1
    v_lshlrev_b32 v27, 1, v27
    v_xor_b32 v27, v27, v25
    s_lshl_b32 s57, s56, 1
    v_xor_b32 v27, s57, v27
    v_lshl_add_u32 v26, v27, 5, v26
    v_and_b32 v27, 3, v1
    v_lshl_add_u32 v16, v27, 3, v26
    v_xor_b32 v17, 64, v16
    v_lshlrev_b32 v22, 4, v1
    s_mov_b32 s70, {f2u(C0)}
    s_mov_b32 s68, {f2u(C1)}
    s_mov_b32 s69, {f2u(C1)}
    v_mov_b32 v23, s70
    v_mov_b32 v52, s70
    v_mov_b32 v53, s70
    ; h store soffsets: ((mt*4 + 2mh)*112 + fc*8 + 2fh)*1024 ; +i*112K, +pass*4096, +j*1024
    s_and_b32 s56, s18, 1
    s_lshl_b32 s56, s56, 1
    s_lshl_b32 s57, s52, 2
    s_add_u32 s56, s56, s57
    s_mul_i32 s56, s56, 112
    s_lshl_b32 s57, s53, 3
    s_add_u32 s56, s56, s57
    s_lshr_b32 s57, s18, 1
    s_lshl_b32 s57, s57, 1
    s_add_u32 s56, s56, s57
    s_lshl_b32 s36, s56, 10               ; pass A, i=0
    s_add_u32 s37, s36, {112*1024}        ; i=1
    s_add_u32 s38, s36, 4096              ; pass B
    s_add_u32 s39, s37, 4096
    """.replace("s_mov_b32 s70,", "s_mov_b32 s67,").replace("v23, s70", "v23, s67").replace("v102, s70", "v104, s67").replace("v103, s70", "v105, s67"))
    for i in range(128):
        a(f"v_mov_b32 v{ACCA+i}, 0")

    def p1_reads(n):
        s, q = n >> 2, n & 3
        b = FR + 16 * (n & 3)
        unit = s % 7
        xb = XF + q + (4 if unit >= 4 else 0)
        xo = (unit & 3) * 16384
        slot = s % 3
        r = []
        for i in range(2):
            r.append(f"ds_read_b128 v[{b+4*i}:{b+4*i+3}], v{xb} offset:{xo+i*4096}")
        for j in range(2):
            for e in range(2):
                r.append(f"ds_read_b64_tr_b16 v[{b+8+4*j+2*e}:{b+8+4*j+2*e+1}], v{WB+j} offset:{slot*16384+q*2048+e*512}")
        return [r[0], r[2], r[3], r[1], r[4], r[5]]
    def p1_mfmas(n):
        b = FR + 16 * (n & 3)
        acc = ACCA if n < 28 else ACCB
        m = []
        for j in range(2):
            for i in range(2):
                c = acc + 16 * (2 * j + i)
                m.append(f"{MF} v[{c}:{c+15}], v[{b+8+4*j}:{b+8+4*j+3}], v[{b+4*i}:{b+4*i+3}], v[{c}:{c+15}]")
        return m
    def geglu_tile(acc, t, pas, tmp, pk, packed=False, cpair=None):
        j, i = t >> 1, t & 1
        g = acc + 16 * t
        L = []
        if not packed:
            for r in range(8): L.append((f"v_mul_f32 v{tmp+r}, v{g+r}, v{g+r}", 4))
            for r in range(8): L.append((f"v_fma_f32 v{tmp+r}, v{tmp+r}, s68, v23", 4))
            for r in range(8): L.append((f"v_mul_f32 v{tmp+r}, v{tmp+r}, v{g+r}", 4))
            for r in range(8): L.append((f"v_exp_f32 v{tmp+r}, v{tmp+r}", 8))
            for r in range(8): L.append((f"v_mul_f32 v{g+r}, v{g+r}, v{g+8+r}", 4))
            for r in range(8): L.append((f"v_add_f32 v{tmp+r}, 1.0, v{tmp+r}", 4))
            for r in range(8): L.append((f"v_rcp_f32 v{tmp+r}, v{tmp+r}", 8))
            L.append(("s_nop 0", 1))
            for r in range(8): L.append((f"v_mul_f32 v{g+r}, v{g+r}, v{tmp+r}", 4))
        else:
            P2 = lambda x: f"v[{x}:{x+1}]"
            for r in range(0, 8, 2): L.append((f"v_pk_mul_f32 {P2(tmp+r)}, {P2(g+r)}, {P2(g+r)}", 4))
            for r in range(0, 8, 2): L.append((f"v_pk_fma_f32 {P2(tmp+r)}, {P2(tmp+r)}, s[68:69], {P2(cpair)}", 4))
            for r in range(0, 8, 2): L.append((f"v_pk_mul_f32 {P2(tmp+r)}, {P2(tmp+r)}, {P2(g+r)}", 4))
            for r in range(8): L.append((f"v_exp_f32 v{tmp+r}, v{tmp+r}", 8))
            for r in range(0, 8, 2): L.append((f"v_pk_mul_f32 {P2(g+r)}, {P2(g+r)}, {P2(g+8+r)}", 4))
            for r in range(0, 8, 2): L.append((f"v_pk_add_f32 {P2(tmp+r)}, {P2(tmp+r)}, 1.0 op_sel_hi:[1,0]", 4))
            for r in range(8): L.append((f"v_rcp_f32 v{tmp+r}, v{tmp+r}", 8))
            L.append(("s_nop 0", 1))
            for r in range(0, 8, 2): L.append((f"v_pk_mul_f32 {P2(g+r)}, {P2(g+r)}, {P2(tmp+r)}", 4))
        for d in range(4): L.append((f"v_cvt_pk_bf16_f32 v{pk+d}, v{g+2*d}, v{g+2*d+1}", 4))
        so = 36 + 2 * pas + i
        L.append((f"buffer_store_dwordx4 v[{pk}:{pk+3}], v22, s[40:43], s{so} offen offset:{j*1024} sc1", 4))
        return L
    a(f"""
    s_lshl_b32 s56, s54, 1
    s_and_b32 s57, s18, 1
    s_add_u32 s56, s56, s57
    s_mul_i32 s56, s56, 112
    s_lshr_b32 s57, s18, 1
    s_lshl_b32 s57, s57, 3
    s_add_u32 s56, s56, s57
    s_lshl_b32 s56, s56, 10
    v_mov_b32 v4, s67
    v_mov_b32 v5, s67
    """)
    UB = [48, 49, 50, 51, 33, 34, 35]
    for j in range(7):
        a(f"s_lshl_b32 s{RT+j}, s{RT+j}, 14\ns_mov_b32 s{UB[j]}, s{RT+j}\ns_add_u32 s{RT+j}, s{RT+j}, s56")
    ACC2 = 176
    AFS = [96, 104, 240, 248]
    def hreg(n):
        m = n % 28
        return 112 + 4 * m if m < 16 else 48 + 4 * (m - 16)
    def hload(n):
        p, j, v = n // 28, (n % 28) >> 2, n & 3
        b = hreg(n)
        r = []
        if p and v == 0: r.append(f"s_add_u32 s{RT+j}, s{RT+j}, 4096")
        r.append(f"buffer_load_dwordx4 v[{b}:{b+3}], v22, s[40:43], s{RT+j} offen offset:{v*1024} sc1")
        return r

    a("s_waitcnt vmcnt(8)")
    tr("C")
    a("s_barrier")
    tr("C")
    st(1); trk()
    for ins in p1_reads(0): a(ins)
    for ins in p1_reads(1): a(ins)
    for n in range(56):
        s, q = n >> 2, n & 3
        if q == 2:
            w = "s_waitcnt lgkmcnt(0)"
            if s + 1 in (1, o.flagA_bar): w = "s_waitcnt vmcnt(0) lgkmcnt(0)"
            a(w)
            a("s_barrier")
            tr("C")
            if s + 1 in (2, 7): trk()
            if s + 1 == 13:
                for m in range(16):
                    for ins in hload(m): a(ins)
        else:
            a("s_waitcnt lgkmcnt(6)" if n + 1 < 56 else "s_waitcnt lgkmcnt(0)")
        rd = p1_reads(n + 2) if n + 2 < 56 else []
        mf = p1_mfmas(n)
        for k in range(4):
            a(mf[k])
            lo, hi = ([0, 3, 6, 6], [3, 6, 6, 6]) if q == 1 else ([0, 2, 4, 5], [2, 4, 5, 6])
            for ins in rd[lo[k]:hi[k]]: a(ins)
        if n == 27:
            a("s_nop 7\ns_nop 7")
            for t in range(4):
                for ins, _ in geglu_tile(ACCA, t, 0, T + 8 * (t & 1), PK + 4 * (t & 1), packed=o.pk, cpair=4): a(ins)
    st(2); tr("D"); trk()
    for m in range(16, 28):
        for ins in hload(m): a(ins)
    a("s_nop 7")
    for t in range(4):
        for ins, _ in geglu_tile(ACCB, t, 1, T + 8 * (t & 1), PK + 4 * (t & 1), packed=o.pk, cpair=4): a(ins)
    tr("D")
    a("s_barrier")
    st(3); tr("D")
    def unit_sgpr(n):
        p, j = n // 28, (n % 28) >> 2
        if p == 0: return (UB[j], 0)
        if j < 3: return (None, [9, 7, 8][j] * 16384)
        return (UB[j - 3], 0)
    def p2_reads(n):
        v = n & 3
        sg, so = unit_sgpr(n)
        ch = n >> 2
        ab = 18 + 2 * (ch & 1)
        b = AFS[n & 3]
        r = []
        if v == 0:
            for n2 in range(2):
                if sg is None:
                    r.append(f"v_add_u32 v{ab+n2}, {so}, v{16+n2}")
                else:
                    r.append(f"v_add_u32 v{ab+n2}, s{sg}, v{16+n2}")
        for n2 in range(2):
            for ee in range(2):
                r.append(f"ds_read_b64_tr_b16 v[{b+4*n2+2*ee}:{b+4*n2+2*ee+1}], v{ab+n2} offset:{v*2048+ee*1024}")
        return r
    def p2_mfmas(n):
        b = AFS[n & 3]; hb = hreg(n)
        m = []
        for n2 in range(2):
            c = ACC2 + 16 * n2
            src = "0" if n == 0 else f"v[{c}:{c+15}]"
            m.append(f"{MF} v[{c}:{c+15}], v[{b+4*n2}:{b+4*n2+3}], v[{hb}:{hb+3}], {src}")
        return m
    for n in range(3):
        for ins in p2_reads(n): a(ins)
    last_rd = 2
    SB = o.sb_step
    for n in range(56):
        lg = 4 * (last_rd - n)
        assert 0 <= lg <= 12
        if n == SB:
            a(f"s_waitcnt vmcnt(0) lgkmcnt({lg})")
            tr("D")
            a("s_barrier")
            st(4); tr("D")
        elif n < SB:
            a(f"s_waitcnt vmcnt({32 - (n + 1)}) lgkmcnt({lg})")
        elif n < 28:
            a(f"s_waitcnt lgkmcnt({lg})")
        else:
            a(f"s_waitcnt vmcnt({56 - (n + 1)}) lgkmcnt({lg})")
        if n in (0, 28, 29, 37, 44): tr("D")
        if n == 15: a("s_barrier")
        if n == 37: a("s_barrier")
        if n == 37: tr("D")
        nr = n + 3
        rd = []
        if nr < 56 and not (n < 28 <= nr):
            rd = p2_reads(nr); last_rd = nr
        mf = p2_mfmas(n)
        a(mf[0])
        for ins in rd[:-2]: a(ins)
        a(mf[1])
        for ins in rd[-2:]: a(ins)
        if n == 27:
            tr("D")
            a("s_barrier")
            st(5); tr("D"); trk()
            for m in range(28, 56):
                for ins in hload(m): a(ins)
            for m in (28, 29, 30):
                for ins in p2_reads(m): a(ins)
            last_rd = 30
    st(6); tr("D"); trk()
    a(f"""
    s_lshl_b32 s56, s18, 12
    s_add_u32 s56, s56, s{UB[4]}
    v_add_u32 v8, s56, v22
    s_xor_b32 s57, s18, 2
    s_lshl_b32 s57, s57, 12
    s_add_u32 s57, s57, s{UB[4]}
    v_add_u32 v9, s57, v22
    v_and_b32 v10, 31, v1
    s_lshl_b32 s56, s54, 6
    s_and_b32 s57, s18, 1
    s_lshl_b32 s57, s57, 5
    s_add_u32 s56, s56, s57
    v_add_u32 v10, s56, v10
    v_mul_u32_u24 v10, 896, v10
    v_lshrrev_b32 v11, 5, v1
    v_lshl_add_u32 v10, v11, 4, v10
    s_lshl_b32 s56, s55, 7
    s_lshr_b32 s57, s18, 1
    s_lshl_b32 s57, s57, 6
    s_add_u32 s56, s56, s57
    v_add_u32 v10, s56, v10
    s_nop 7
    """)
    for i in range(4):
        c = ACC2 + 16 + 4 * i
        a(f"ds_write_b128 v8, v[{c}:{c+3}] offset:{i*1024}")
    a("s_waitcnt lgkmcnt(0)\ns_barrier")
    for i in range(4):
        a(f"ds_read_b128 v[{48+4*i}:{51+4*i}], v9 offset:{i*1024}")
    for i in range(4):
        a(f"s_waitcnt lgkmcnt({3-i})")
        for k in range(4):
            a(f"v_add_f32 v{ACC2+4*i+k}, v{ACC2+4*i+k}, v{48+4*i+k}")
        a(f"v_cvt_pk_bf16_f32 v{64+2*i}, v{ACC2+4*i}, v{ACC2+4*i+1}")
        a(f"v_cvt_pk_bf16_f32 v{65+2*i}, v{ACC2+4*i+2}, v{ACC2+4*i+3}")
        if i & 1:
            b = 64 + 4 * (i >> 1)
            a("s_nop 1")
            a(f"v_permlane32_swap_b32 v{b}, v{b+2}")
            a(f"v_permlane32_swap_b32 v{b+1}, v{b+3}")
            a(f"buffer_store_dwordx4 v[{b}:{b+3}], v10, s[44:47], 0 offen offset:{(i>>1)*32}")
    if o.trace in ("C", "S", "D", "K"):
        trk()
        tr("D")
        a("s_cmp_lg_u32 s18, 0\ns_cbranch_scc1 L_end")
        tr_store(o.trace)
    if o.stamps:
        a("s_waitcnt vmcnt(0)")
        st(7)
        a("s_cmp_lg_u32 s18, 0\ns_cbranch_scc1 L_end")
        a(store_stamps(8, 16, 17, 2, vt=0, tmp=72))
    a("s_endpgm")

    a("L_loader:")
    a(f"""
    s_setprio 3
    v_lshrrev_b32 v24, 3, v1
    v_mul_u32_u24 v25, 3584, v24
    v_and_b32 v26, 7, v1
    v_bfe_u32 v27, v1, 4, 1
    v_lshlrev_b32 v28, 1, v27
    v_xor_b32 v28, v26, v28               ; c gate
    v_lshl_add_u32 v2, v28, 4, v25
    v_xor_b32 v28, 4, v28
    v_lshl_add_u32 v6, v28, 4, v25
    s_lshl_b32 s56, s53, 8
    v_add_u32 v2, s56, v2
    v_add_u32 v6, s56, v6
    """)
    for k in range(1, 4):
        a(f"v_add_u32 v{2+k}, {k*(8*3584-1024)}, v2\nv_add_u32 v{6+k}, {k*(8*3584-1024)}, v6")
    a(f"""
    v_mul_u32_u24 v25, 896, v24
    v_lshlrev_b32 v28, 2, v27
    v_xor_b32 v28, v26, v28
    v_lshl_add_u32 v10, v28, 4, v25
    s_lshl_b32 s56, s55, 7
    v_add_u32 v10, s56, v10
    """)
    for k in range(1, 4):
        a(f"v_add_u32 v{10+k}, {k*(8*896-1024)}, v10")
    a(f"""
    v_lshrrev_b32 v27, 4, v1
    v_xor_b32 v28, v26, v27
    v_lshl_add_u32 v14, v28, 4, v25
    v_xor_b32 v28, 4, v28
    v_lshl_add_u32 v15, v28, 4, v25
    s_mul_i32 s56, s52, {128*896}
    v_add_u32 v14, s56, v14
    s_add_u32 s56, s56, {8*896-1024}
    v_add_u32 v15, s56, v15
    v_add_u32 v16, {2*(8*896-1024)}, v14
    v_add_u32 v17, {2*(8*896-1024)}, v15
    """)
    LT = 70 if o.trace == "L" else 80
    XT, WT, DT = 20, 44, 36+16
    for j in range(4):
        a(f"s_lshl_b32 s{72+j}, s{RT+j}, 14")
    for j in range(7):
        a(f"s_lshl_b32 s{33+j}, s{RT+j}, 7")
        a(f"s_mul_i32 s{44+j}, s{RT+j}, {64*3584}")
        a(f"s_mul_i32 s{RT+j}, s{RT+j}, {256*896}")
    a("s_waitcnt lgkmcnt(0)")
    srd(a, 24, 4, 2048 * 896)
    srd(a, 28, 6, 448 * 3584)
    a(f"""
    s_mov_b32 s56, s8
    s_mov_b32 s57, s9
    s_mov_b32 s58, {448*3584}
    s_mov_b32 s59, 0x20000
    s_mov_b32 s68, s10
    s_mov_b32 s69, s11
    """)
    a(f"""
    s_mov_b32 s20, s10
    s_mov_b32 s21, s11
    s_mov_b32 s22, {1792*896}
    s_mov_b32 s23, 0x20000
    """)
    order = []
    def xdmaL(s):
        for g in range(4):
            a(f"s_mov_b32 m0, {s*16384 + g*4096}")
            a(f"s_add_u32 s67, s{33+s}, {g*32*896}")
            for k in range(4):
                a(f"buffer_load_dwordx4 v{14+k}, s[24:27], s67 offen offset:{k*1024} lds")
                order.append(("W", s))
    def wdma(s):
        slot = s % 3; pas = s // 7; ss = s % 7
        for mat in range(2):
            sr = "s[28:31]" if mat == 0 else "s[56:59]"
            for g in range(2):
                a(f"s_mov_b32 m0, {114688 + slot*16384 + mat*8192 + g*4096}")
                a(f"s_add_u32 s67, s{44+ss}, {32*g*3584 + pas*128}")
                for k in range(4):
                    a(f"buffer_load_dwordx4 v{2+4*mat+k}, {sr}, s67 offen offset:{k*1024} lds")
                    order.append(("W", s))
    def ddma(p, j, unit, phys=False, dyn_unit=None):
        for g in range(4):
            if dyn_unit is None:
                a(f"s_mov_b32 m0, {unit*16384 + g*4096}")
            else:
                a(f"s_add_u32 m0, s{dyn_unit}, {g*4096}")
            if phys:
                a(f"s_mov_b32 s67, {(256*j + 128*(g>>1) + 64*p + 32*(g&1))*896}")
            else:
                a(f"s_add_u32 s67, s{RT+j}, {(128*(g>>1) + 64*p + 32*(g&1))*896}")
            for k in range(4):
                a(f"buffer_load_dwordx4 v{10+k}, s[20:23], s67 offen offset:{k*1024} lds")
                order.append(("D", p, j))
    def wait_tag(tag):
        last = max(i for i, t in enumerate(order) if t == tag)
        n = len(order) - 1 - last
        a(f"s_waitcnt vmcnt({min(n, 63)})")
    def room(k):
        a(f"s_waitcnt vmcnt({63-k})")
    tr("L")
    a("s_barrier")
    nextA = 0
    for i in range(15):
        if 2 <= i <= 13: wait_tag(("W", i))
        tr("L")
        a("s_barrier")
        if i + 2 <= 6:
            room(16); xdmaL(i + 2)
        if i + 2 <= 13:
            room(16); wdma(i + 2)
        if i >= 8:
            room(16); ddma(0, i - 8, i - 8, phys=True)
    a("s_waitcnt vmcnt(0)")
    a("LST0")
    a("s_barrier")
    for j in range(3):
        room(16); ddma(1, j, [9, 7, 8][j])
    a("LST1")
    a("s_barrier")
    a("s_barrier")
    for j in range(3, 7):
        room(16); ddma(1, j, None, dyn_unit=72 + j - 3)
    a("s_waitcnt vmcnt(63)")
    wait_tag(("D", 1, 2))
    a("LST2")
    a("s_barrier")
    a("s_waitcnt vmcnt(0)")
    a("LST4")
    a("s_barrier")
    a("LSTORE")
    tr_store("L", tmp=24)
    a("s_endpgm")

    a("L_poller:")
    a(f"""
    s_setprio 3
    s_mul_i32 s56, s21, 112
    v_lshrrev_b32 v4, 3, v1
    v_add_u32 v4, s56, v4
    v_mul_u32_u24 v4, 3584, v4
    v_and_b32 v5, 7, v1
    v_lshl_add_u32 v4, v5, 4, v4
    s_lshl_b32 s56, s53, 8
    s_add_u32 s56, s56, 128
    v_add_u32 v4, s56, v4
    v_mov_b32 v2, 0
    v_lshlrev_b32 v13, 20, v1
    s_waitcnt lgkmcnt(0)
    """)
    srd(a, 28, 6, 448 * 3584)
    srd(a, 32, 8, 448 * 3584)
    srd(a, 40, 16, WS_SIZE)
    srd(a, 44, 12, 2048 * 896)
    srd(a, 48, 14, 256)
    a(f"""
    s_cmp_lg_u32 s2, 0
    s_cbranch_scc1 L_p_nonce
    s_memrealtime s[70:71]
    s_waitcnt lgkmcnt(0)
    v_mov_b32 v6, s70
    v_mov_b32 v7, s71
    s_mov_b64 exec, 1
    buffer_store_dwordx2 v[6:7], v2, s[48:51], 0 offen sc1
    s_mov_b64 exec, -1
L_p_nonce:
    s_barrier                              ; T0
    """)
    if o.prefetch:
        for k in range(14):
            a(f"s_mov_b32 s56, {k*8*3584}")
            a(f"buffer_load_dwordx4 v[{20+8*(k%8)}:{23+8*(k%8)}], v4, s[28:31], s56 offen")
            a(f"buffer_load_dwordx4 v[{24+8*(k%8)}:{27+8*(k%8)}], v4, s[32:35], s56 offen")
    a(f"""
    s_mov_b64 exec, 0x1ff
    buffer_load_dword v14, v13, s[40:43], 0 offen
    s_mov_b64 exec, 3
    buffer_load_dword v15, v13, s[44:47], 0 offen
    s_mov_b64 exec, -1
    buffer_load_dwordx2 v[6:7], v2, s[48:51], 0 offen sc1
    s_lshl_b32 s72, s52, 4
    s_add_u32 s72, s72, s53
    s_lshl_b32 s72, s72, 7
    s_add_u32 s72, s72, {FLAG_OFF}
    s_add_u32 s73, s72, {16*16*128}
    s_lshr_b32 s74, s54, 1
    s_lshl_b32 s74, s74, 11
    s_add_u32 s74, s74, {FLAG_OFF}
    s_add_u32 s75, s74, {16*16*128}
    v_min_u32 v8, 13, v1
    v_lshlrev_b32 v8, 7, v8
    """)
    for i in range(9):
        a("s_barrier")
    a(f"""
    s_mov_b32 s76, 0
L_p_chknonce:
    s_waitcnt vmcnt(0)
    v_readfirstlane_b32 s70, v6
    v_readfirstlane_b32 s71, v7
    s_add_u32 s76, s76, 1
    s_nop 3
    s_or_b32 s56, s70, s71
    s_cmp_lg_u32 s56, 0
    s_cbranch_scc1 L_p_havenonce
    s_cmp_gt_u32 s76, 0x40000
    s_cbranch_scc1 L_p_havenonce
    buffer_load_dwordx2 v[6:7], v2, s[48:51], 0 offen sc1
    s_branch L_p_chknonce
L_p_havenonce:
    s_barrier                              ; R_9
    PST0
    s_mov_b64 exec, 1
    buffer_store_dwordx2 v[6:7], v2, s[40:43], s72 offen sc1     ; flag A
    s_mov_b64 exec, -1
    s_barrier                              ; R_10
    s_barrier                              ; R_11
    buffer_load_dwordx2 v[10:11], v8, s[40:43], s74 offen sc1
    s_barrier                              ; R_12
    s_mov_b32 s76, 0
L_p_pollA:
    s_waitcnt vmcnt(0)
    v_cmp_ne_u64 vcc, s[70:71], v[10:11]
    s_add_u32 s76, s76, 1
    s_nop 4
    s_cbranch_vccz L_p_gotA
    s_cmp_gt_u32 s76, 0x40000
    s_cbranch_scc1 L_p_gotA
    buffer_load_dwordx2 v[10:11], v8, s[40:43], s74 offen sc1
    s_branch L_p_pollA
L_p_gotA:
    PST1
    s_barrier                              ; R_13
    s_barrier                              ; R_14
    s_barrier                              ; G
    s_barrier                              ; S_B
    PST2
    s_mov_b64 exec, 1
    buffer_store_dwordx2 v[6:7], v2, s[40:43], s73 offen sc1     ; flag B
    s_mov_b64 exec, -1
    s_barrier                              ; E_half
    s_mov_b32 s76, 0
L_p_pollB:
    buffer_load_dwordx2 v[10:11], v8, s[40:43], s75 offen sc1
    s_waitcnt vmcnt(0)
    v_cmp_ne_u64 vcc, s[70:71], v[10:11]
    s_add_u32 s76, s76, 1
    s_nop 4
    s_cbranch_vccz L_p_gotB
    s_cmp_gt_u32 s76, 0x40000
    s_cbranch_scc1 L_p_gotB
    s_sleep 1
    s_branch L_p_pollB
L_p_gotB:
    PST3
    s_barrier                              ; P_B
    PST4
    PSTORE
    s_endpgm
L_helper:
    s_sub_u32 s56, s2, 224
    s_lshr_b32 s56, s56, 3
    s_mul_i32 s56, s56, 6
    s_add_u32 s56, s56, s18
    v_lshlrev_b32 v2, 4, v1
    s_waitcnt lgkmcnt(0)
    s_mov_b32 s36, s10
    s_mov_b32 s37, s11
    s_mov_b32 s38, {1792*896}
    s_mov_b32 s39, 0x20000
    s_mov_b32 s57, 0
L_h_loop:
    ; KB index k=s56 in [0,1568): part = k>=784 ; kk = k - 784*part ; block b = kk/56, off = kk%56 : addr = (128b + 64*part)*896 + off*1024
    s_cmp_ge_u32 s56, 784
    s_cselect_b32 s60, 784, 0
    s_cselect_b32 s61, {64*896}, 0
    s_sub_u32 s60, s56, s60
    s_mul_i32 s58, s60, 1171
    s_lshr_b32 s58, s58, 16               ; kk/56
    s_mul_i32 s59, s58, 56
    s_sub_u32 s59, s60, s59
    s_lshl_b32 s59, s59, 10
    s_mul_i32 s58, s58, {128*896}
    s_add_u32 s58, s58, s59
    s_add_u32 s58, s58, s61
    buffer_load_dwordx4 v[4:7], v2, s[36:39], s58 offen
    s_waitcnt vmcnt(40)
    s_add_u32 s56, s56, 24
    s_cmp_lt_u32 s56, 1568
    s_cbranch_scc1 L_h_loop
L_end:
    s_endpgm
    """)
    a(rodata_begin())
    a(descriptor(KN, vgpr=256, sgpr=102))
    txt = a.text()
    for k in range(5):
        txt = txt.replace(f"    PST{k}\n", f"    s_memrealtime s[{80+2*k}:{81+2*k}]\n" if o.stamps else "")
    txt = txt.replace("    PSTORE\n", ("s_add_u32 s2, s2, 256\n" + store_stamps(5, 16, 17, 2, vt=20, tmp=56)) if o.stamps else "")
    for k in range(6):
        txt = txt.replace(f"LST{k}\n", f"s_memrealtime s[{80+2*k}:{81+2*k}]\n" if o.stamps else "")
    txt = txt.replace("LSTORE\n", ("s_add_u32 s2, s2, 512\n" + store_stamps(6, 16, 17, 2, vt=20, tmp=56)) if o.stamps else "")
    open(name, "w").write(txt)

if __name__ == "__main__":
    o = Opt(); gen("v10.s", o)
    o = Opt(); o.stamps = True; gen("v10s.s", o)
    for t in "CLSDK":
        o = Opt(); o.trace = t; gen(f"v10t{t}.s", o)
```

```python
import sys, struct
from asmlib import *

def f2u(x):
    return struct.unpack("<I", struct.pack("<f", x))[0]

C0 = -2.0 * 1.4426950408889634 * 0.7978845608028654
C1 = C0 * 0.044715
FLAG_OFF = 8 << 20
WS_SIZE = 9 << 20
MF = "v_mfma_f32_32x32x16_bf16"

def srd(a, d, lo, size):
    a(f"""
    s_mov_b32 s{d}, s{lo}
    s_mov_b32 s{d+1}, s{lo+1}
    s_mov_b32 s{d+2}, {size}
    s_mov_b32 s{d+3}, 0x20000
    """)

class Opt:
    stamps = False
    prefetch = True
    geglu_steps = 26
    abl = ""
    trace = ""
    rot = True
    wd_start = 11
    pk = True
    helpers = True
    wbx4 = True
    extraH = True
    flagA_bar = 9
    outsc = ''
    sb_step = 14

def gen(name, o):
    a = Asm()
    NW = 6
    a(header([(KN, 256 if o.helpers else 224, NW * 64, 163840)]))
    a(kernel_begin(KN))
    st = (lambda k: a(f"s_memrealtime s[{80+2*k}:{81+2*k}]")) if o.stamps else (lambda k: None)
    cnt = {"C": 0, "L": 0, "S": 0, "P": 0, "D": 0, "K": 0}
    def trk():
        if o.trace == "K" and cnt["K"] < 16:
            k = cnt["K"]; cnt["K"] += 2
            a(f"s_memtime s[{70+2*k}:{71+2*k}]\ns_memrealtime s[{72+2*k}:{73+2*k}]")
    def tr(who):
        if o.trace == who and cnt[who] < 16:
            k = cnt[who]; cnt[who] += 1
            a(f"s_memtime s[{70+2*k}:{71+2*k}]")
    def tr_store(who, vt=0, tmp=24):
        if o.trace == who:
            a("s_waitcnt vmcnt(0) lgkmcnt(0)")
            for k in range(cnt[who], 16):
                a(f"s_mov_b32 s{70+2*k}, 0\ns_mov_b32 s{71+2*k}, 0")
            a(store_stamps(16, 16, 17, 2, base=70, nslot=16, vt=vt, tmp=tmp))
    a(f"""
    s_cmp_ge_u32 s2, {256 if o.helpers else 224}
    s_cbranch_scc1 L_end
    s_load_dwordx4 s[4:7], s[0:1], 0      ; x, wg
    s_load_dwordx4 s[8:11], s[0:1], 16
    s_load_dwordx4 s[12:15], s[0:1], 32
    s_load_dwordx2 s[16:17], s[0:1], 48   ; ws
    """)
    st(0); trk()
    a(f"""
    v_and_b32 v1, 63, v0                  ; lane
    v_lshrrev_b32 v2, 6, v0               ; wave
    s_and_b32 s19, s2, 7                  ; xcd
    v_readfirstlane_b32 s18, v2
    s_lshr_b32 s20, s2, 3                 ; within 0..27
    s_mul_i32 s21, s20, 37
    s_lshr_b32 s21, s21, 8                ; l4 = within/7  (0..3)
    s_mul_i32 s22, s21, 7
    s_sub_u32 s22, s20, s22               ; l7 = within%7  (0..6)
    s_and_b32 s52, s19, 3
    s_lshl_b32 s52, s52, 2
    s_add_u32 s52, s52, s21
    s_lshr_b32 s53, s19, 2
    s_mul_i32 s53, s53, 7
    s_add_u32 s53, s53, s22
    s_lshl_b32 s54, s19, 2
    s_add_u32 s54, s54, s21
    s_mov_b32 s55, s22
    s_lshl_b32 s23, s21, 1
    s_add_u32 s23, s23, s22
    s_cmp_ge_u32 s23, 7
    s_cselect_b32 s56, 7, 0
    s_sub_u32 s23, s23, s56
    """)
    if not o.rot: a("s_mov_b32 s23, 0")
    RT = 60
    for j in range(7):
        a(f"""
    s_add_u32 s{RT+j}, s23, {j}
    s_cmp_ge_u32 s{RT+j}, 7
    s_cselect_b32 s56, 7, 0
    s_sub_u32 s{RT+j}, s{RT+j}, s56
        """)
    a(f"""
    s_cmp_ge_u32 s2, 224
    s_cbranch_scc1 L_helper
    s_cmp_eq_u32 s18, 4
    s_cbranch_scc1 L_loader
    s_cmp_eq_u32 s18, 5
    s_cbranch_scc1 L_poller
    """)
    XF = 8; WB = 6; DB = 16; T = 24; PK = 40; FR = 48; ACCA = 112; ACCB = 176
    a(f"""
    v_lshrrev_b32 v24, 3, v1
    v_mul_u32_u24 v25, 896, v24
    v_and_b32 v26, 7, v1
    v_lshrrev_b32 v27, 4, v1
    v_xor_b32 v28, v26, v27
    v_lshl_add_u32 v2, v28, 4, v25
    v_xor_b32 v28, 4, v28
    v_lshl_add_u32 v3, v28, 4, v25
    s_mul_i32 s56, s52, {128*896}
    s_mul_i32 s57, s18, {32*896}
    s_add_u32 s56, s56, s57
    v_add_u32 v2, s56, v2
    s_add_u32 s56, s56, {8*896-1024}
    v_add_u32 v3, s56, v3
    v_add_u32 v4, {2*(8*896-1024)}, v2
    v_add_u32 v5, {2*(8*896-1024)}, v3
    v_mul_u32_u24 v25, 3584, v24
    v_bfe_u32 v27, v1, 4, 1
    v_lshlrev_b32 v28, 1, v27
    v_xor_b32 v28, v26, v28
    s_lshr_b32 s56, s18, 1
    s_lshl_b32 s57, s56, 2
    v_xor_b32 v28, s57, v28               ; ^ (mat<<2)
    v_lshl_add_u32 v48, v28, 4, v25
    s_lshl_b32 s57, s53, 8
    s_and_b32 s59, s18, 1
    s_mul_i32 s59, s59, {32*3584}
    s_add_u32 s57, s57, s59
    v_add_u32 v48, s57, v48
    v_add_u32 v49, {8*3584-1024}, v48
    v_add_u32 v50, {2*(8*3584-1024)}, v48
    v_add_u32 v51, {3*(8*3584-1024)}, v48
    s_lshl_b32 s57, s56, 13
    s_and_b32 s59, s18, 1
    s_lshl_b32 s59, s59, 12
    s_add_u32 s32, s57, s59
    s_add_u32 s32, s32, 114688
    s_lshl_b32 s58, s18, 12               ; c*4096
    s_waitcnt lgkmcnt(0)
    s_cmp_eq_u32 s56, 0
    s_cselect_b32 s28, s6, s8
    s_cselect_b32 s29, s7, s9
    s_mov_b32 s30, {448*3584}
    s_mov_b32 s31, 0x20000
    """)
    srd(a, 24, 4, 2048 * 896)
    def xdma(s):
        a(f"""
    s_add_u32 s57, s58, {s*16384}
    s_mov_b32 m0, s57
    s_lshl_b32 s59, s{RT+s}, 7
    buffer_load_dwordx4 v2, s[24:27], s59 offen lds
    buffer_load_dwordx4 v3, s[24:27], s59 offen offset:1024 lds
    buffer_load_dwordx4 v4, s[24:27], s59 offen offset:2048 lds
    buffer_load_dwordx4 v5, s[24:27], s59 offen offset:3072 lds
        """)
    def wq(s):
        a(f"""
    s_add_u32 s57, s32, {s*16384}
    s_mov_b32 m0, s57
    s_mul_i32 s59, s{RT+s}, {64*3584}
    buffer_load_dwordx4 v48, s[28:31], s59 offen lds
    buffer_load_dwordx4 v49, s[28:31], s59 offen offset:1024 lds
    buffer_load_dwordx4 v50, s[28:31], s59 offen offset:2048 lds
    buffer_load_dwordx4 v51, s[28:31], s59 offen offset:3072 lds
        """)
    tr("S")
    xdma(0); wq(0); xdma(1); wq(1)
    tr("S")
    a("s_barrier")
    tr("S")
    if o.trace == "S":
        for n in (12, 8, 4, 0):
            a(f"s_waitcnt vmcnt({n})"); tr("S")
    srd(a, 40, 16, WS_SIZE)
    srd(a, 44, 12, 2048 * 896)
    a(f"""
    ; W A-frag bases
    v_lshrrev_b32 v24, 5, v1              ; h
    v_bfe_u32 v25, v1, 4, 1               ; mat / grp
    v_bfe_u32 v26, v1, 2, 2               ; rr
    v_and_b32 v27, 3, v1                  ; cc
    v_lshl_add_u32 v28, v24, 3, v26       ; 8h+rr
    v_lshlrev_b32 v28, 7, v28
    v_lshl_add_u32 v28, v25, 13, v28
    v_lshl_add_u32 v28, v27, 3, v28
    v_add_u32 v28, 114688, v28
    v_bfe_u32 v29, v1, 3, 1
    v_lshl_add_u32 v29, v25, 1, v29       ; g
    s_lshr_b32 s56, s18, 1
    s_lshl_b32 s56, s56, 1                ; 2fh
    v_xor_b32 v30, s56, v29
    v_lshl_add_u32 v6, v30, 5, v28
    v_xor_b32 v7, 32, v6
    ; x frag bases
    v_and_b32 v26, 31, v1
    v_bfe_u32 v27, v1, 1, 3
    v_xor_b32 v27, v27, v24
    v_lshlrev_b32 v27, 4, v27
    v_lshl_add_u32 v27, v26, 7, v27
    s_and_b32 s56, s18, 1
    s_lshl_b32 s56, s56, 13
    v_add_u32 v8, s56, v27
    v_xor_b32 v9, 32, v8
    v_xor_b32 v10, 64, v8
    v_xor_b32 v11, 96, v8
    v_add_u32 v12, 0x10000, v8
    v_add_u32 v13, 0x10000, v9
    v_add_u32 v14, 0x10000, v10
    v_add_u32 v15, 0x10000, v11
    ; Wd A-frag bases: row = 64kh + 4h + rr ; granule = (grp ^ 2b) ^ (2*kh) for acc0 (n2=kh)
    v_bfe_u32 v26, v1, 2, 2
    v_lshl_add_u32 v26, v24, 2, v26       ; 4h+rr
    s_lshr_b32 s56, s18, 1                ; kh
    s_lshl_b32 s57, s56, 6
    v_add_u32 v26, s57, v26
    v_lshlrev_b32 v26, 7, v26
    v_bfe_u32 v27, v1, 3, 1
    v_lshlrev_b32 v27, 1, v27
    v_xor_b32 v27, v27, v25
    s_lshl_b32 s57, s56, 1
    v_xor_b32 v27, s57, v27
    v_lshl_add_u32 v26, v27, 5, v26
    v_and_b32 v27, 3, v1
    v_lshl_add_u32 v16, v27, 3, v26
    v_xor_b32 v17, 64, v16
    v_lshlrev_b32 v22, 4, v1
    s_mov_b32 s70, {f2u(C0)}
    s_mov_b32 s68, {f2u(C1)}
    s_mov_b32 s69, {f2u(C1)}
    v_mov_b32 v23, s70
    v_mov_b32 v52, s70
    v_mov_b32 v53, s70
    ; h store soffsets: ((mt*4 + 2mh)*112 + fc*8 + 2fh)*1024 ; +i*112K, +pass*4096, +j*1024
    s_and_b32 s56, s18, 1
    s_lshl_b32 s56, s56, 1
    s_lshl_b32 s57, s52, 2
    s_add_u32 s56, s56, s57
    s_mul_i32 s56, s56, 112
    s_lshl_b32 s57, s53, 3
    s_add_u32 s56, s56, s57
    s_lshr_b32 s57, s18, 1
    s_lshl_b32 s57, s57, 1
    s_add_u32 s56, s56, s57
    s_lshl_b32 s36, s56, 10               ; pass A, i=0
    s_add_u32 s37, s36, {112*1024}        ; i=1
    s_add_u32 s38, s36, 4096              ; pass B
    s_add_u32 s39, s37, 4096
    """.replace("s_mov_b32 s70,", "s_mov_b32 s67,").replace("v23, s70", "v23, s67").replace("v102, s70", "v104, s67").replace("v103, s70", "v105, s67"))
    for i in range(128):
        a(f"v_mov_b32 v{ACCA+i}, 0")

    def p1_reads(n):
        s, q = n >> 2, n & 3
        b = FR + 16 * (n & 3)
        unit = s % 7
        xb = XF + q + (4 if unit >= 4 else 0)
        xo = (unit & 3) * 16384
        slot = s % 3
        r = []
        for i in range(2):
            r.append(f"ds_read_b128 v[{b+4*i}:{b+4*i+3}], v{xb} offset:{xo+i*4096}")
        for j in range(2):
            for e in range(2):
                r.append(f"ds_read_b64_tr_b16 v[{b+8+4*j+2*e}:{b+8+4*j+2*e+1}], v{WB+j} offset:{slot*16384+q*2048+e*512}")
        return [r[0], r[2], r[3], r[1], r[4], r[5]]
    def p1_mfmas(n):
        b = FR + 16 * (n & 3)
        acc = ACCA if n < 28 else ACCB
        m = []
        for j in range(2):
            for i in range(2):
                c = acc + 16 * (2 * j + i)
                m.append(f"{MF} v[{c}:{c+15}], v[{b+8+4*j}:{b+8+4*j+3}], v[{b+4*i}:{b+4*i+3}], v[{c}:{c+15}]")
        return m
    def geglu_tile(acc, t, pas, tmp, pk, packed=False, cpair=None):
        j, i = t >> 1, t & 1
        g = acc + 16 * t
        L = []
        if not packed:
            for r in range(8): L.append((f"v_mul_f32 v{tmp+r}, v{g+r}, v{g+r}", 4))
            for r in range(8): L.append((f"v_fma_f32 v{tmp+r}, v{tmp+r}, s68, v23", 4))
            for r in range(8): L.append((f"v_mul_f32 v{tmp+r}, v{tmp+r}, v{g+r}", 4))
            for r in range(8): L.append((f"v_exp_f32 v{tmp+r}, v{tmp+r}", 8))
            for r in range(8): L.append((f"v_mul_f32 v{g+r}, v{g+r}, v{g+8+r}", 4))
            for r in range(8): L.append((f"v_add_f32 v{tmp+r}, 1.0, v{tmp+r}", 4))
            for r in range(8): L.append((f"v_rcp_f32 v{tmp+r}, v{tmp+r}", 8))
            L.append(("s_nop 0", 1))
            for r in range(8): L.append((f"v_mul_f32 v{g+r}, v{g+r}, v{tmp+r}", 4))
        else:
            P2 = lambda x: f"v[{x}:{x+1}]"
            for r in range(0, 8, 2): L.append((f"v_pk_mul_f32 {P2(tmp+r)}, {P2(g+r)}, {P2(g+r)}", 4))
            for r in range(0, 8, 2): L.append((f"v_pk_fma_f32 {P2(tmp+r)}, {P2(tmp+r)}, s[68:69], {P2(cpair)}", 4))
            for r in range(0, 8, 2): L.append((f"v_pk_mul_f32 {P2(tmp+r)}, {P2(tmp+r)}, {P2(g+r)}", 4))
            for r in range(8): L.append((f"v_exp_f32 v{tmp+r}, v{tmp+r}", 8))
            for r in range(0, 8, 2): L.append((f"v_pk_mul_f32 {P2(g+r)}, {P2(g+r)}, {P2(g+8+r)}", 4))
            for r in range(0, 8, 2): L.append((f"v_pk_add_f32 {P2(tmp+r)}, {P2(tmp+r)}, 1.0 op_sel_hi:[1,0]", 4))
            for r in range(8): L.append((f"v_rcp_f32 v{tmp+r}, v{tmp+r}", 8))
            L.append(("s_nop 0", 1))
            for r in range(0, 8, 2): L.append((f"v_pk_mul_f32 {P2(g+r)}, {P2(g+r)}, {P2(tmp+r)}", 4))
        for d in range(4): L.append((f"v_cvt_pk_bf16_f32 v{pk+d}, v{g+2*d}, v{g+2*d+1}", 4))
        so = 36 + 2 * pas + i
        L.append((f"buffer_store_dwordx4 v[{pk}:{pk+3}], v22, s[40:43], s{so} offen offset:{j*1024} sc1", 4))
        return L
    a(f"""
    s_lshl_b32 s56, s54, 1
    s_and_b32 s57, s18, 1
    s_add_u32 s56, s56, s57
    s_mul_i32 s56, s56, 112
    s_lshr_b32 s57, s18, 1
    s_lshl_b32 s57, s57, 3
    s_add_u32 s56, s56, s57
    s_lshl_b32 s56, s56, 10
    v_mov_b32 v4, s67
    v_mov_b32 v5, s67
    """)
    UB = [48, 49, 50, 51, 33, 34, 35]
    for j in range(7):
        a(f"s_lshl_b32 s{RT+j}, s{RT+j}, 14\ns_mov_b32 s{UB[j]}, s{RT+j}\ns_add_u32 s{RT+j}, s{RT+j}, s56")
    ACC2 = 176
    AFS = [96, 104, 240, 248]
    def hreg(n):
        m = n % 28
        return 112 + 4 * m if m < 16 else 48 + 4 * (m - 16)
    def hload(n):
        p, j, v = n // 28, (n % 28) >> 2, n & 3
        b = hreg(n)
        r = []
        if p and v == 0: r.append(f"s_add_u32 s{RT+j}, s{RT+j}, 4096")
        r.append(f"buffer_load_dwordx4 v[{b}:{b+3}], v22, s[40:43], s{RT+j} offen offset:{v*1024} sc1")
        return r

    a("s_waitcnt vmcnt(8)")
    tr("C")
    a("s_barrier")
    tr("C")
    st(1); trk()
    for ins in p1_reads(0): a(ins)
    for ins in p1_reads(1): a(ins)
    for n in range(56):
        s, q = n >> 2, n & 3
        if q == 2:
            w = "s_waitcnt lgkmcnt(0)"
            if s + 1 in (1, o.flagA_bar): w = "s_waitcnt vmcnt(0) lgkmcnt(0)"
            a(w)
            a("s_barrier")
            tr("C")
            if s + 1 in (2, 7): trk()
            if s + 1 == 13:
                for m in range(16):
                    for ins in hload(m): a(ins)
        else:
            a("s_waitcnt lgkmcnt(6)" if n + 1 < 56 else "s_waitcnt lgkmcnt(0)")
        rd = p1_reads(n + 2) if n + 2 < 56 else []
        mf = p1_mfmas(n)
        for k in range(4):
            a(mf[k])
            lo, hi = ([0, 3, 6, 6], [3, 6, 6, 6]) if q == 1 else ([0, 2, 4, 5], [2, 4, 5, 6])
            for ins in rd[lo[k]:hi[k]]: a(ins)
        if n == 27:
            a("s_nop 7\ns_nop 7")
            for t in range(4):
                for ins, _ in geglu_tile(ACCA, t, 0, T + 8 * (t & 1), PK + 4 * (t & 1), packed=o.pk, cpair=4): a(ins)
    st(2); tr("D"); trk()
    for m in range(16, 28):
        for ins in hload(m): a(ins)
    a("s_nop 7")
    for t in range(4):
        for ins, _ in geglu_tile(ACCB, t, 1, T + 8 * (t & 1), PK + 4 * (t & 1), packed=o.pk, cpair=4): a(ins)
    tr("D")
    a("s_barrier")
    st(3); tr("D")
    def unit_sgpr(n):
        p, j = n // 28, (n % 28) >> 2
        if p == 0: return (UB[j], 0)
        if j < 3: return (None, [9, 7, 8][j] * 16384)
        return (UB[j - 3], 0)
    def p2_reads(n):
        v = n & 3
        sg, so = unit_sgpr(n)
        ch = n >> 2
        ab = 18 + 2 * (ch & 1)
        b = AFS[n & 3]
        r = []
        if v == 0:
            for n2 in range(2):
                if sg is None:
                    r.append(f"v_add_u32 v{ab+n2}, {so}, v{16+n2}")
                else:
                    r.append(f"v_add_u32 v{ab+n2}, s{sg}, v{16+n2}")
        for n2 in range(2):
            for ee in range(2):
                r.append(f"ds_read_b64_tr_b16 v[{b+4*n2+2*ee}:{b+4*n2+2*ee+1}], v{ab+n2} offset:{v*2048+ee*1024}")
        return r
    def p2_mfmas(n):
        b = AFS[n & 3]; hb = hreg(n)
        m = []
        for n2 in range(2):
            c = ACC2 + 16 * n2
            src = "0" if n == 0 else f"v[{c}:{c+15}]"
            m.append(f"{MF} v[{c}:{c+15}], v[{b+4*n2}:{b+4*n2+3}], v[{hb}:{hb+3}], {src}")
        return m
    for n in range(3):
        for ins in p2_reads(n): a(ins)
    last_rd = 2
    SB = o.sb_step
    for n in range(56):
        lg = 4 * (last_rd - n)
        assert 0 <= lg <= 12
        if n == SB:
            a(f"s_waitcnt vmcnt(0) lgkmcnt({lg})")
            tr("D")
            a("s_barrier")
            st(4); tr("D")
        elif n < SB:
            a(f"s_waitcnt vmcnt({32 - (n + 1)}) lgkmcnt({lg})")
        elif n < 28:
            a(f"s_waitcnt lgkmcnt({lg})")
        else:
            a(f"s_waitcnt vmcnt({56 - (n + 1)}) lgkmcnt({lg})")
        if n in (0, 28, 29, 37, 44): tr("D")
        if n == 15: a("s_barrier")
        if n == 37: a("s_barrier")
        if n == 37: tr("D")
        nr = n + 3
        rd = []
        if nr < 56 and not (n < 28 <= nr):
            rd = p2_reads(nr); last_rd = nr
        mf = p2_mfmas(n)
        a(mf[0])
        for ins in rd[:-2]: a(ins)
        a(mf[1])
        for ins in rd[-2:]: a(ins)
        if n == 27:
            tr("D")
            a("s_barrier")
            st(5); tr("D"); trk()
            for m in range(28, 56):
                for ins in hload(m): a(ins)
            for m in (28, 29, 30):
                for ins in p2_reads(m): a(ins)
            last_rd = 30
    st(6); tr("D"); trk()
    a(f"""
    s_lshl_b32 s56, s18, 12
    s_add_u32 s56, s56, s{UB[4]}
    v_add_u32 v8, s56, v22
    s_xor_b32 s57, s18, 2
    s_lshl_b32 s57, s57, 12
    s_add_u32 s57, s57, s{UB[4]}
    v_add_u32 v9, s57, v22
    v_and_b32 v10, 31, v1
    s_lshl_b32 s56, s54, 6
    s_and_b32 s57, s18, 1
    s_lshl_b32 s57, s57, 5
    s_add_u32 s56, s56, s57
    v_add_u32 v10, s56, v10
    v_mul_u32_u24 v10, 896, v10
    v_lshrrev_b32 v11, 5, v1
    v_lshl_add_u32 v10, v11, 4, v10
    s_lshl_b32 s56, s55, 7
    s_lshr_b32 s57, s18, 1
    s_lshl_b32 s57, s57, 6
    s_add_u32 s56, s56, s57
    v_add_u32 v10, s56, v10
    s_nop 7
    """)
    for i in range(4):
        c = ACC2 + 16 + 4 * i
        a(f"ds_write_b128 v8, v[{c}:{c+3}] offset:{i*1024}")
    a("s_waitcnt lgkmcnt(0)\ns_barrier")
    for i in range(4):
        a(f"ds_read_b128 v[{48+4*i}:{51+4*i}], v9 offset:{i*1024}")
    for i in range(4):
        a(f"s_waitcnt lgkmcnt({3-i})")
        for k in range(4):
            a(f"v_add_f32 v{ACC2+4*i+k}, v{ACC2+4*i+k}, v{48+4*i+k}")
        a(f"v_cvt_pk_bf16_f32 v{64+2*i}, v{ACC2+4*i}, v{ACC2+4*i+1}")
        a(f"v_cvt_pk_bf16_f32 v{65+2*i}, v{ACC2+4*i+2}, v{ACC2+4*i+3}")
        if i & 1:
            b = 64 + 4 * (i >> 1)
            a("s_nop 1")
            a(f"v_permlane32_swap_b32 v{b}, v{b+2}")
            a(f"v_permlane32_swap_b32 v{b+1}, v{b+3}")
            a(f"buffer_store_dwordx4 v[{b}:{b+3}], v10, s[44:47], 0 offen offset:{(i>>1)*32} {o.outsc}")
    if o.trace in ("C", "S", "D", "K"):
        trk()
        tr("D")
        a("s_cmp_lg_u32 s18, 0\ns_cbranch_scc1 L_end")
        tr_store(o.trace)
    if o.stamps:
        a("s_waitcnt vmcnt(0)")
        st(7)
        a("s_cmp_lg_u32 s18, 0\ns_cbranch_scc1 L_end")
        a(store_stamps(8, 16, 17, 2, vt=0, tmp=72))
    a("s_endpgm")

    a("L_loader:")
    a(f"""
    s_setprio 3
    v_lshrrev_b32 v24, 3, v1
    v_mul_u32_u24 v25, 3584, v24
    v_and_b32 v26, 7, v1
    v_bfe_u32 v27, v1, 4, 1
    v_lshlrev_b32 v28, 1, v27
    v_xor_b32 v28, v26, v28               ; c gate
    v_lshl_add_u32 v2, v28, 4, v25
    v_xor_b32 v28, 4, v28
    v_lshl_add_u32 v6, v28, 4, v25
    s_lshl_b32 s56, s53, 8
    v_add_u32 v2, s56, v2
    v_add_u32 v6, s56, v6
    """)
    for k in range(1, 4):
        a(f"v_add_u32 v{2+k}, {k*(8*3584-1024)}, v2\nv_add_u32 v{6+k}, {k*(8*3584-1024)}, v6")
    a(f"""
    v_mul_u32_u24 v25, 896, v24
    v_lshlrev_b32 v28, 2, v27
    v_xor_b32 v28, v26, v28
    v_lshl_add_u32 v10, v28, 4, v25
    s_lshl_b32 s56, s55, 7
    v_add_u32 v10, s56, v10
    """)
    for k in range(1, 4):
        a(f"v_add_u32 v{10+k}, {k*(8*896-1024)}, v10")
    a(f"""
    v_lshrrev_b32 v27, 4, v1
    v_xor_b32 v28, v26, v27
    v_lshl_add_u32 v14, v28, 4, v25
    v_xor_b32 v28, 4, v28
    v_lshl_add_u32 v15, v28, 4, v25
    s_mul_i32 s56, s52, {128*896}
    v_add_u32 v14, s56, v14
    s_add_u32 s56, s56, {8*896-1024}
    v_add_u32 v15, s56, v15
    v_add_u32 v16, {2*(8*896-1024)}, v14
    v_add_u32 v17, {2*(8*896-1024)}, v15
    """)
    LT = 70 if o.trace == "L" else 80
    XT, WT, DT = 20, 44, 36+16
    for j in range(4):
        a(f"s_lshl_b32 s{72+j}, s{RT+j}, 14")
    for j in range(7):
        a(f"s_lshl_b32 s{33+j}, s{RT+j}, 7")
        a(f"s_mul_i32 s{44+j}, s{RT+j}, {64*3584}")
        a(f"s_mul_i32 s{RT+j}, s{RT+j}, {256*896}")
    a("s_waitcnt lgkmcnt(0)")
    srd(a, 24, 4, 2048 * 896)
    srd(a, 28, 6, 448 * 3584)
    a(f"""
    s_mov_b32 s56, s8
    s_mov_b32 s57, s9
    s_mov_b32 s58, {448*3584}
    s_mov_b32 s59, 0x20000
    s_mov_b32 s68, s10
    s_mov_b32 s69, s11
    """)
    a(f"""
    s_mov_b32 s20, s10
    s_mov_b32 s21, s11
    s_mov_b32 s22, {1792*896}
    s_mov_b32 s23, 0x20000
    """)
    order = []
    def xdmaL(s):
        for g in range(4):
            a(f"s_mov_b32 m0, {s*16384 + g*4096}")
            a(f"s_add_u32 s67, s{33+s}, {g*32*896}")
            for k in range(4):
                a(f"buffer_load_dwordx4 v{14+k}, s[24:27], s67 offen offset:{k*1024} lds")
                order.append(("W", s))
    def wdma(s):
        slot = s % 3; pas = s // 7; ss = s % 7
        for mat in range(2):
            sr = "s[28:31]" if mat == 0 else "s[56:59]"
            for g in range(2):
                a(f"s_mov_b32 m0, {114688 + slot*16384 + mat*8192 + g*4096}")
                a(f"s_add_u32 s67, s{44+ss}, {32*g*3584 + pas*128}")
                for k in range(4):
                    a(f"buffer_load_dwordx4 v{2+4*mat+k}, {sr}, s67 offen offset:{k*1024} lds")
                    order.append(("W", s))
    def ddma(p, j, unit, phys=False, dyn_unit=None):
        for g in range(4):
            if dyn_unit is None:
                a(f"s_mov_b32 m0, {unit*16384 + g*4096}")
            else:
                a(f"s_add_u32 m0, s{dyn_unit}, {g*4096}")
            if phys:
                a(f"s_mov_b32 s67, {(256*j + 128*(g>>1) + 64*p + 32*(g&1))*896}")
            else:
                a(f"s_add_u32 s67, s{RT+j}, {(128*(g>>1) + 64*p + 32*(g&1))*896}")
            for k in range(4):
                a(f"buffer_load_dwordx4 v{10+k}, s[20:23], s67 offen offset:{k*1024} lds")
                order.append(("D", p, j))
    def wait_tag(tag):
        last = max(i for i, t in enumerate(order) if t == tag)
        n = len(order) - 1 - last
        a(f"s_waitcnt vmcnt({min(n, 63)})")
    def room(k):
        a(f"s_waitcnt vmcnt({63-k})")
    tr("L")
    a("s_barrier")
    nextA = 0
    for i in range(15):
        if 2 <= i <= 13: wait_tag(("W", i))
        tr("L")
        a("s_barrier")
        if i + 2 <= 6:
            room(16); xdmaL(i + 2)
        if i + 2 <= 13:
            room(16); wdma(i + 2)
        if i >= 8:
            room(16); ddma(0, i - 8, i - 8, phys=True)
    a("s_waitcnt vmcnt(0)")
    a("LST0")
    a("s_barrier")
    for j in range(3):
        room(16); ddma(1, j, [9, 7, 8][j])
    a("LST1")
    a("s_barrier")
    a("s_barrier")
    for j in range(3, 7):
        room(16); ddma(1, j, None, dyn_unit=72 + j - 3)
    a("s_waitcnt vmcnt(63)")
    wait_tag(("D", 1, 2))
    a("LST2")
    a("s_barrier")
    a("s_waitcnt vmcnt(0)")
    a("LST4")
    a("s_barrier")
    a("LSTORE")
    tr_store("L", tmp=24)
    a("s_endpgm")

    a("L_poller:")
    a(f"""
    s_setprio 3
    s_mul_i32 s56, s21, 112
    v_lshrrev_b32 v4, 3, v1
    v_add_u32 v4, s56, v4
    v_mul_u32_u24 v4, 3584, v4
    v_and_b32 v5, 7, v1
    v_lshl_add_u32 v4, v5, 4, v4
    s_lshl_b32 s56, s53, 8
    s_add_u32 s56, s56, 128
    v_add_u32 v4, s56, v4
    v_mov_b32 v2, 0
    v_lshlrev_b32 v13, 20, v1
    s_waitcnt lgkmcnt(0)
    """)
    srd(a, 28, 6, 448 * 3584)
    srd(a, 32, 8, 448 * 3584)
    srd(a, 40, 16, WS_SIZE)
    srd(a, 44, 12, 2048 * 896)
    srd(a, 48, 14, 256)
    a(f"""
    s_cmp_lg_u32 s2, 0
    s_cbranch_scc1 L_p_nonce
    s_memrealtime s[70:71]
    s_waitcnt lgkmcnt(0)
    v_mov_b32 v6, s70
    v_mov_b32 v7, s71
    s_mov_b64 exec, 1
    buffer_store_dwordx2 v[6:7], v2, s[48:51], 0 offen sc1
    s_mov_b64 exec, -1
L_p_nonce:
    s_barrier                              ; T0
    """)
    if o.prefetch:
        for k in range(14):
            a(f"s_mov_b32 s56, {k*8*3584}")
            a(f"buffer_load_dwordx4 v[{20+8*(k%8)}:{23+8*(k%8)}], v4, s[28:31], s56 offen")
            a(f"buffer_load_dwordx4 v[{24+8*(k%8)}:{27+8*(k%8)}], v4, s[32:35], s56 offen")
    a(f"""
    s_mov_b64 exec, 0x1ff
    buffer_load_dword v14, v13, s[40:43], 0 offen
    s_mov_b64 exec, 3
    buffer_load_dword v15, v13, s[44:47], 0 offen
    s_mov_b64 exec, -1
    buffer_load_dwordx2 v[6:7], v2, s[48:51], 0 offen sc1
    s_lshl_b32 s72, s52, 4
    s_add_u32 s72, s72, s53
    s_lshl_b32 s72, s72, 7
    s_add_u32 s72, s72, {FLAG_OFF}
    s_add_u32 s73, s72, {16*16*128}
    s_lshr_b32 s74, s54, 1
    s_lshl_b32 s74, s74, 11
    s_add_u32 s74, s74, {FLAG_OFF}
    s_add_u32 s75, s74, {16*16*128}
    v_min_u32 v8, 13, v1
    v_lshlrev_b32 v8, 7, v8
    """)
    for i in range(9):
        a("s_barrier")
    a(f"""
    s_mov_b32 s76, 0
L_p_chknonce:
    s_waitcnt vmcnt(0)
    v_readfirstlane_b32 s70, v6
    v_readfirstlane_b32 s71, v7
    s_add_u32 s76, s76, 1
    s_nop 3
    s_or_b32 s56, s70, s71
    s_cmp_lg_u32 s56, 0
    s_cbranch_scc1 L_p_havenonce
    s_cmp_gt_u32 s76, 0x40000
    s_cbranch_scc1 L_p_havenonce
    buffer_load_dwordx2 v[6:7], v2, s[48:51], 0 offen sc1
    s_branch L_p_chknonce
L_p_havenonce:
    s_barrier                              ; R_9
    PST0
    s_mov_b64 exec, 1
    buffer_store_dwordx2 v[6:7], v2, s[40:43], s72 offen sc1     ; flag A
    s_mov_b64 exec, -1
    s_barrier                              ; R_10
    s_barrier                              ; R_11
    buffer_load_dwordx2 v[10:11], v8, s[40:43], s74 offen sc1
    s_barrier                              ; R_12
    s_mov_b32 s76, 0
L_p_pollA:
    s_waitcnt vmcnt(0)
    v_cmp_ne_u64 vcc, s[70:71], v[10:11]
    s_add_u32 s76, s76, 1
    s_nop 4
    s_cbranch_vccz L_p_gotA
    s_cmp_gt_u32 s76, 0x40000
    s_cbranch_scc1 L_p_gotA
    buffer_load_dwordx2 v[10:11], v8, s[40:43], s74 offen sc1
    s_branch L_p_pollA
L_p_gotA:
    PST1
    s_barrier                              ; R_13
    s_barrier                              ; R_14
    s_barrier                              ; G
    s_barrier                              ; S_B
    PST2
    s_mov_b64 exec, 1
    buffer_store_dwordx2 v[6:7], v2, s[40:43], s73 offen sc1     ; flag B
    s_mov_b64 exec, -1
    s_barrier                              ; E_half
    s_mov_b32 s76, 0
L_p_pollB:
    buffer_load_dwordx2 v[10:11], v8, s[40:43], s75 offen sc1
    s_waitcnt vmcnt(0)
    v_cmp_ne_u64 vcc, s[70:71], v[10:11]
    s_add_u32 s76, s76, 1
    s_nop 4
    s_cbranch_vccz L_p_gotB
    s_cmp_gt_u32 s76, 0x40000
    s_cbranch_scc1 L_p_gotB
    s_sleep 1
    s_branch L_p_pollB
L_p_gotB:
    PST3
    s_barrier                              ; P_B
    PST4
    PSTORE
    s_endpgm
L_helper:
    s_sub_u32 s56, s2, 224
    s_lshr_b32 s56, s56, 3
    s_mul_i32 s56, s56, 6
    s_add_u32 s56, s56, s18
    v_lshlrev_b32 v2, 4, v1
    s_waitcnt lgkmcnt(0)
    s_mov_b32 s36, s10
    s_mov_b32 s37, s11
    s_mov_b32 s38, {1792*896}
    s_mov_b32 s39, 0x20000
    s_mov_b32 s57, 0
L_h_loop:
    ; KB index k=s56 in [0,1568): part = k>=784 ; kk = k - 784*part ; block b = kk/56, off = kk%56 : addr = (128b + 64*part)*896 + off*1024
    s_cmp_ge_u32 s56, 784
    s_cselect_b32 s60, 784, 0
    s_cselect_b32 s61, {64*896}, 0
    s_sub_u32 s60, s56, s60
    s_mul_i32 s58, s60, 1171
    s_lshr_b32 s58, s58, 16               ; kk/56
    s_mul_i32 s59, s58, 56
    s_sub_u32 s59, s60, s59
    s_lshl_b32 s59, s59, 10
    s_mul_i32 s58, s58, {128*896}
    s_add_u32 s58, s58, s59
    s_add_u32 s58, s58, s61
    buffer_load_dwordx4 v[4:7], v2, s[36:39], s58 offen
    s_waitcnt vmcnt(40)
    s_add_u32 s56, s56, 24
    s_cmp_lt_u32 s56, 1568
    s_cbranch_scc1 L_h_loop
L_end:
    s_endpgm
    """)
    a(rodata_begin())
    a(descriptor(KN, vgpr=256, sgpr=102))
    txt = a.text()
    for k in range(5):
        txt = txt.replace(f"    PST{k}\n", f"    s_memrealtime s[{80+2*k}:{81+2*k}]\n" if o.stamps else "")
    txt = txt.replace("    PSTORE\n", ("s_add_u32 s2, s2, 256\n" + store_stamps(5, 16, 17, 2, vt=20, tmp=56)) if o.stamps else "")
    for k in range(6):
        txt = txt.replace(f"LST{k}\n", f"s_memrealtime s[{80+2*k}:{81+2*k}]\n" if o.stamps else "")
    txt = txt.replace("LSTORE\n", ("s_add_u32 s2, s2, 512\n" + store_stamps(6, 16, 17, 2, vt=20, tmp=56)) if o.stamps else "")
    open(name, "w").write(txt)

if __name__ == "__main__":
    o = Opt(); o.outsc = "sc1"; gen("v10_sc1.s", o)
    o = Opt(); o.outsc = "nt"; gen("v10_nt.s", o)
    o = Opt(); o.outsc = "sc0 sc1"; gen("v10_sc01.s", o)
    o = Opt(); o.helpers = False; gen("v10_nohelp.s", o)
    o = Opt(); gen("v10.s", o)
    o = Opt(); o.stamps = True; gen("v10s.s", o)
    for t in "CLSDK":
        o = Opt(); o.trace = t; gen(f"v10t{t}.s", o)
```

```python
import sys, struct
from asmlib import *

def f2u(x):
    return struct.unpack("<I", struct.pack("<f", x))[0]

C0 = -2.0 * 1.4426950408889634 * 0.7978845608028654
C1 = C0 * 0.044715
FLAG_OFF = 8 << 20
WS_SIZE = 9 << 20
MF = "v_mfma_f32_32x32x16_bf16"

def srd(a, d, lo, size):
    a(f"""
    s_mov_b32 s{d}, s{lo}
    s_mov_b32 s{d+1}, s{lo+1}
    s_mov_b32 s{d+2}, {size}
    s_mov_b32 s{d+3}, 0x20000
    """)

class Opt:
    stamps = False
    prefetch = True
    geglu_steps = 26
    abl = ""
    trace = ""
    rot = True
    wd_start = 11
    pk = True
    helpers = True
    wbx4 = True
    extraH = True
    flagA_bar = 9
    outsc = 'sc1'
    dbgst = False
    sb_step = 14

def gen(name, o):
    a = Asm()
    NW = 6
    a(header([(KN, 256 if o.helpers else 224, NW * 64, 163840)]))
    a(kernel_begin(KN))
    st = (lambda k: a(f"s_memrealtime s[{80+2*k}:{81+2*k}]")) if o.stamps else (lambda k: None)
    cnt = {"C": 0, "L": 0, "S": 0, "P": 0, "D": 0, "K": 0}
    def trk():
        if o.trace == "K" and cnt["K"] < 16:
            k = cnt["K"]; cnt["K"] += 2
            a(f"s_memtime s[{70+2*k}:{71+2*k}]\ns_memrealtime s[{72+2*k}:{73+2*k}]")
    def tr(who):
        if o.trace == who and cnt[who] < 16:
            k = cnt[who]; cnt[who] += 1
            a(f"s_memtime s[{70+2*k}:{71+2*k}]")
    def tr_store(who, vt=0, tmp=24):
        if o.trace == who:
            a("s_waitcnt vmcnt(0) lgkmcnt(0)")
            for k in range(cnt[who], 16):
                a(f"s_mov_b32 s{70+2*k}, 0\ns_mov_b32 s{71+2*k}, 0")
            a(store_stamps(16, 16, 17, 2, base=70, nslot=16, vt=vt, tmp=tmp))
    a(f"""
    s_cmp_ge_u32 s2, {256 if o.helpers else 224}
    s_cbranch_scc1 L_end
    s_load_dwordx4 s[4:7], s[0:1], 0      ; x, wg
    s_load_dwordx4 s[8:11], s[0:1], 16
    s_load_dwordx4 s[12:15], s[0:1], 32
    s_load_dwordx2 s[16:17], s[0:1], 48   ; ws
    """)
    st(0); trk()
    a(f"""
    v_and_b32 v1, 63, v0                  ; lane
    v_lshrrev_b32 v2, 6, v0               ; wave
    s_and_b32 s19, s2, 7                  ; xcd
    v_readfirstlane_b32 s18, v2
    s_lshr_b32 s20, s2, 3                 ; within 0..27
    s_mul_i32 s21, s20, 37
    s_lshr_b32 s21, s21, 8                ; l4 = within/7  (0..3)
    s_mul_i32 s22, s21, 7
    s_sub_u32 s22, s20, s22               ; l7 = within%7  (0..6)
    s_and_b32 s52, s19, 3
    s_lshl_b32 s52, s52, 2
    s_add_u32 s52, s52, s21
    s_lshr_b32 s53, s19, 2
    s_mul_i32 s53, s53, 7
    s_add_u32 s53, s53, s22
    s_lshl_b32 s54, s19, 2
    s_add_u32 s54, s54, s21
    s_mov_b32 s55, s22
    s_lshl_b32 s23, s21, 1
    s_add_u32 s23, s23, s22
    s_cmp_ge_u32 s23, 7
    s_cselect_b32 s56, 7, 0
    s_sub_u32 s23, s23, s56
    """)
    if not o.rot: a("s_mov_b32 s23, 0")
    RT = 60
    for j in range(7):
        a(f"""
    s_add_u32 s{RT+j}, s23, {j}
    s_cmp_ge_u32 s{RT+j}, 7
    s_cselect_b32 s56, 7, 0
    s_sub_u32 s{RT+j}, s{RT+j}, s56
        """)
    a(f"""
    s_cmp_ge_u32 s2, 224
    s_cbranch_scc1 L_helper
    s_cmp_eq_u32 s18, 4
    s_cbranch_scc1 L_loader
    s_cmp_eq_u32 s18, 5
    s_cbranch_scc1 L_poller
    """)
    XF = 8; WB = 6; DB = 16; T = 24; PK = 40; FR = 48; ACCA = 112; ACCB = 176
    a(f"""
    v_lshrrev_b32 v24, 3, v1
    v_mul_u32_u24 v25, 896, v24
    v_and_b32 v26, 7, v1
    v_lshrrev_b32 v27, 4, v1
    v_xor_b32 v28, v26, v27
    v_lshl_add_u32 v2, v28, 4, v25
    v_xor_b32 v28, 4, v28
    v_lshl_add_u32 v3, v28, 4, v25
    s_mul_i32 s56, s52, {128*896}
    s_mul_i32 s57, s18, {32*896}
    s_add_u32 s56, s56, s57
    v_add_u32 v2, s56, v2
    s_add_u32 s56, s56, {8*896-1024}
    v_add_u32 v3, s56, v3
    v_add_u32 v4, {2*(8*896-1024)}, v2
    v_add_u32 v5, {2*(8*896-1024)}, v3
    v_mul_u32_u24 v25, 3584, v24
    v_bfe_u32 v27, v1, 4, 1
    v_lshlrev_b32 v28, 1, v27
    v_xor_b32 v28, v26, v28
    s_lshr_b32 s56, s18, 1
    s_lshl_b32 s57, s56, 2
    v_xor_b32 v28, s57, v28               ; ^ (mat<<2)
    v_lshl_add_u32 v48, v28, 4, v25
    s_lshl_b32 s57, s53, 8
    s_and_b32 s59, s18, 1
    s_mul_i32 s59, s59, {32*3584}
    s_add_u32 s57, s57, s59
    v_add_u32 v48, s57, v48
    v_add_u32 v49, {8*3584-1024}, v48
    v_add_u32 v50, {2*(8*3584-1024)}, v48
    v_add_u32 v51, {3*(8*3584-1024)}, v48
    s_lshl_b32 s57, s56, 13
    s_and_b32 s59, s18, 1
    s_lshl_b32 s59, s59, 12
    s_add_u32 s32, s57, s59
    s_add_u32 s32, s32, 114688
    s_lshl_b32 s58, s18, 12               ; c*4096
    s_waitcnt lgkmcnt(0)
    s_cmp_eq_u32 s56, 0
    s_cselect_b32 s28, s6, s8
    s_cselect_b32 s29, s7, s9
    s_mov_b32 s30, {448*3584}
    s_mov_b32 s31, 0x20000
    """)
    srd(a, 24, 4, 2048 * 896)
    def xdma(s):
        a(f"""
    s_add_u32 s57, s58, {s*16384}
    s_mov_b32 m0, s57
    s_lshl_b32 s59, s{RT+s}, 7
    buffer_load_dwordx4 v2, s[24:27], s59 offen lds
    buffer_load_dwordx4 v3, s[24:27], s59 offen offset:1024 lds
    buffer_load_dwordx4 v4, s[24:27], s59 offen offset:2048 lds
    buffer_load_dwordx4 v5, s[24:27], s59 offen offset:3072 lds
        """)
    def wq(s):
        a(f"""
    s_add_u32 s57, s32, {s*16384}
    s_mov_b32 m0, s57
    s_mul_i32 s59, s{RT+s}, {64*3584}
    buffer_load_dwordx4 v48, s[28:31], s59 offen lds
    buffer_load_dwordx4 v49, s[28:31], s59 offen offset:1024 lds
    buffer_load_dwordx4 v50, s[28:31], s59 offen offset:2048 lds
    buffer_load_dwordx4 v51, s[28:31], s59 offen offset:3072 lds
        """)
    tr("S")
    xdma(0); wq(0); xdma(1); wq(1)
    tr("S")
    a("s_barrier")
    tr("S")
    if o.trace == "S":
        for n in (12, 8, 4, 0):
            a(f"s_waitcnt vmcnt({n})"); tr("S")
    srd(a, 40, 16, WS_SIZE)
    srd(a, 44, 12, 2048 * 896)
    a(f"""
    ; W A-frag bases
    v_lshrrev_b32 v24, 5, v1              ; h
    v_bfe_u32 v25, v1, 4, 1               ; mat / grp
    v_bfe_u32 v26, v1, 2, 2               ; rr
    v_and_b32 v27, 3, v1                  ; cc
    v_lshl_add_u32 v28, v24, 3, v26       ; 8h+rr
    v_lshlrev_b32 v28, 7, v28
    v_lshl_add_u32 v28, v25, 13, v28
    v_lshl_add_u32 v28, v27, 3, v28
    v_add_u32 v28, 114688, v28
    v_bfe_u32 v29, v1, 3, 1
    v_lshl_add_u32 v29, v25, 1, v29       ; g
    s_lshr_b32 s56, s18, 1
    s_lshl_b32 s56, s56, 1                ; 2fh
    v_xor_b32 v30, s56, v29
    v_lshl_add_u32 v6, v30, 5, v28
    v_xor_b32 v7, 32, v6
    ; x frag bases
    v_and_b32 v26, 31, v1
    v_bfe_u32 v27, v1, 1, 3
    v_xor_b32 v27, v27, v24
    v_lshlrev_b32 v27, 4, v27
    v_lshl_add_u32 v27, v26, 7, v27
    s_and_b32 s56, s18, 1
    s_lshl_b32 s56, s56, 13
    v_add_u32 v8, s56, v27
    v_xor_b32 v9, 32, v8
    v_xor_b32 v10, 64, v8
    v_xor_b32 v11, 96, v8
    v_add_u32 v12, 0x10000, v8
    v_add_u32 v13, 0x10000, v9
    v_add_u32 v14, 0x10000, v10
    v_add_u32 v15, 0x10000, v11
    ; Wd A-frag bases: row = 64kh + 4h + rr ; granule = (grp ^ 2b) ^ (2*kh) for acc0 (n2=kh)
    v_bfe_u32 v26, v1, 2, 2
    v_lshl_add_u32 v26, v24, 2, v26       ; 4h+rr
    s_lshr_b32 s56, s18, 1                ; kh
    s_lshl_b32 s57, s56, 6
    v_add_u32 v26, s57, v26
    v_lshlrev_b32 v26, 7, v26
    v_bfe_u32 v27, v1, 3, 1
    v_lshlrev_b32 v27, 1, v27
    v_xor_b32 v27, v27, v25
    s_lshl_b32 s57, s56, 1
    v_xor_b32 v27, s57, v27
    v_lshl_add_u32 v26, v27, 5, v26
    v_and_b32 v27, 3, v1
    v_lshl_add_u32 v16, v27, 3, v26
    v_xor_b32 v17, 64, v16
    v_lshlrev_b32 v22, 4, v1
    s_mov_b32 s70, {f2u(C0)}
    s_mov_b32 s68, {f2u(C1)}
    s_mov_b32 s69, {f2u(C1)}
    v_mov_b32 v23, s70
    v_mov_b32 v52, s70
    v_mov_b32 v53, s70
    ; h store soffsets: ((mt*4 + 2mh)*112 + fc*8 + 2fh)*1024 ; +i*112K, +pass*4096, +j*1024
    s_and_b32 s56, s18, 1
    s_lshl_b32 s56, s56, 1
    s_lshl_b32 s57, s52, 2
    s_add_u32 s56, s56, s57
    s_mul_i32 s56, s56, 112
    s_lshl_b32 s57, s53, 3
    s_add_u32 s56, s56, s57
    s_lshr_b32 s57, s18, 1
    s_lshl_b32 s57, s57, 1
    s_add_u32 s56, s56, s57
    s_lshl_b32 s36, s56, 10               ; pass A, i=0
    s_add_u32 s37, s36, {112*1024}        ; i=1
    s_add_u32 s38, s36, 4096              ; pass B
    s_add_u32 s39, s37, 4096
    """.replace("s_mov_b32 s70,", "s_mov_b32 s67,").replace("v23, s70", "v23, s67").replace("v102, s70", "v104, s67").replace("v103, s70", "v105, s67"))
    for i in range(128):
        a(f"v_mov_b32 v{ACCA+i}, 0")

    def p1_reads(n):
        s, q = n >> 2, n & 3
        b = FR + 16 * (n & 3)
        unit = s % 7
        xb = XF + q + (4 if unit >= 4 else 0)
        xo = (unit & 3) * 16384
        slot = s % 3
        r = []
        for i in range(2):
            r.append(f"ds_read_b128 v[{b+4*i}:{b+4*i+3}], v{xb} offset:{xo+i*4096}")
        for j in range(2):
            for e in range(2):
                r.append(f"ds_read_b64_tr_b16 v[{b+8+4*j+2*e}:{b+8+4*j+2*e+1}], v{WB+j} offset:{slot*16384+q*2048+e*512}")
        return [r[0], r[2], r[3], r[1], r[4], r[5]]
    def p1_mfmas(n):
        b = FR + 16 * (n & 3)
        acc = ACCA if n < 28 else ACCB
        m = []
        for j in range(2):
            for i in range(2):
                c = acc + 16 * (2 * j + i)
                m.append(f"{MF} v[{c}:{c+15}], v[{b+8+4*j}:{b+8+4*j+3}], v[{b+4*i}:{b+4*i+3}], v[{c}:{c+15}]")
        return m
    def geglu_tile(acc, t, pas, tmp, pk, packed=False, cpair=None):
        j, i = t >> 1, t & 1
        g = acc + 16 * t
        L = []
        if not packed:
            for r in range(8): L.append((f"v_mul_f32 v{tmp+r}, v{g+r}, v{g+r}", 4))
            for r in range(8): L.append((f"v_fma_f32 v{tmp+r}, v{tmp+r}, s68, v23", 4))
            for r in range(8): L.append((f"v_mul_f32 v{tmp+r}, v{tmp+r}, v{g+r}", 4))
            for r in range(8): L.append((f"v_exp_f32 v{tmp+r}, v{tmp+r}", 8))
            for r in range(8): L.append((f"v_mul_f32 v{g+r}, v{g+r}, v{g+8+r}", 4))
            for r in range(8): L.append((f"v_add_f32 v{tmp+r}, 1.0, v{tmp+r}", 4))
            for r in range(8): L.append((f"v_rcp_f32 v{tmp+r}, v{tmp+r}", 8))
            L.append(("s_nop 0", 1))
            for r in range(8): L.append((f"v_mul_f32 v{g+r}, v{g+r}, v{tmp+r}", 4))
        else:
            P2 = lambda x: f"v[{x}:{x+1}]"
            for r in range(0, 8, 2): L.append((f"v_pk_mul_f32 {P2(tmp+r)}, {P2(g+r)}, {P2(g+r)}", 4))
            for r in range(0, 8, 2): L.append((f"v_pk_fma_f32 {P2(tmp+r)}, {P2(tmp+r)}, s[68:69], {P2(cpair)}", 4))
            for r in range(0, 8, 2): L.append((f"v_pk_mul_f32 {P2(tmp+r)}, {P2(tmp+r)}, {P2(g+r)}", 4))
            for r in range(8): L.append((f"v_exp_f32 v{tmp+r}, v{tmp+r}", 8))
            for r in range(0, 8, 2): L.append((f"v_pk_mul_f32 {P2(g+r)}, {P2(g+r)}, {P2(g+8+r)}", 4))
            for r in range(0, 8, 2): L.append((f"v_pk_add_f32 {P2(tmp+r)}, {P2(tmp+r)}, 1.0 op_sel_hi:[1,0]", 4))
            for r in range(8): L.append((f"v_rcp_f32 v{tmp+r}, v{tmp+r}", 8))
            L.append(("s_nop 0", 1))
            for r in range(0, 8, 2): L.append((f"v_pk_mul_f32 {P2(g+r)}, {P2(g+r)}, {P2(tmp+r)}", 4))
        for d in range(4): L.append((f"v_cvt_pk_bf16_f32 v{pk+d}, v{g+2*d}, v{g+2*d+1}", 4))
        so = 36 + 2 * pas + i
        L.append((f"buffer_store_dwordx4 v[{pk}:{pk+3}], v22, s[40:43], s{so} offen offset:{j*1024} sc1", 4))
        return L
    a(f"""
    s_lshl_b32 s56, s54, 1
    s_and_b32 s57, s18, 1
    s_add_u32 s56, s56, s57
    s_mul_i32 s56, s56, 112
    s_lshr_b32 s57, s18, 1
    s_lshl_b32 s57, s57, 3
    s_add_u32 s56, s56, s57
    s_lshl_b32 s56, s56, 10
    v_mov_b32 v4, s67
    v_mov_b32 v5, s67
    """)
    UB = [48, 49, 50, 51, 33, 34, 35]
    for j in range(7):
        a(f"s_lshl_b32 s{RT+j}, s{RT+j}, 14\ns_mov_b32 s{UB[j]}, s{RT+j}\ns_add_u32 s{RT+j}, s{RT+j}, s56")
    ACC2 = 176
    AFS = [96, 104, 240, 248]
    def hreg(n):
        m = n % 28
        return 112 + 4 * m if m < 16 else 48 + 4 * (m - 16)
    def hload(n):
        p, j, v = n // 28, (n % 28) >> 2, n & 3
        b = hreg(n)
        r = []
        if p and v == 0: r.append(f"s_add_u32 s{RT+j}, s{RT+j}, 4096")
        r.append(f"buffer_load_dwordx4 v[{b}:{b+3}], v22, s[40:43], s{RT+j} offen offset:{v*1024} sc1")
        return r

    a("s_waitcnt vmcnt(8)")
    tr("C")
    a("s_barrier")
    tr("C")
    st(1); trk()
    for ins in p1_reads(0): a(ins)
    for ins in p1_reads(1): a(ins)
    for n in range(56):
        s, q = n >> 2, n & 3
        if q == 2:
            w = "s_waitcnt lgkmcnt(0)"
            if s + 1 in (1, o.flagA_bar): w = "s_waitcnt vmcnt(0) lgkmcnt(0)"
            a(w)
            a("s_barrier")
            tr("C")
            if s + 1 in (2, 7): trk()
            if s + 1 == 13:
                for m in range(16):
                    for ins in hload(m): a(ins)
        else:
            a("s_waitcnt lgkmcnt(6)" if n + 1 < 56 else "s_waitcnt lgkmcnt(0)")
        rd = p1_reads(n + 2) if n + 2 < 56 else []
        mf = p1_mfmas(n)
        for k in range(4):
            a(mf[k])
            lo, hi = ([0, 3, 6, 6], [3, 6, 6, 6]) if q == 1 else ([0, 2, 4, 5], [2, 4, 5, 6])
            for ins in rd[lo[k]:hi[k]]: a(ins)
        if n == 27:
            a("s_nop 7\ns_nop 7")
            for t in range(4):
                for ins, _ in geglu_tile(ACCA, t, 0, T + 8 * (t & 1), PK + 4 * (t & 1), packed=o.pk, cpair=4): a(ins)
    st(2); tr("D"); trk()
    for m in range(16, 28):
        for ins in hload(m): a(ins)
    a("s_nop 7")
    for t in range(4):
        for ins, _ in geglu_tile(ACCB, t, 1, T + 8 * (t & 1), PK + 4 * (t & 1), packed=o.pk, cpair=4): a(ins)
    tr("D")
    a("s_barrier")
    st(3); tr("D")
    def unit_sgpr(n):
        p, j = n // 28, (n % 28) >> 2
        if p == 0: return (UB[j], 0)
        if j < 3: return (None, [9, 7, 8][j] * 16384)
        return (UB[j - 3], 0)
    def p2_reads(n):
        v = n & 3
        sg, so = unit_sgpr(n)
        ch = n >> 2
        ab = 18 + 2 * (ch & 1)
        b = AFS[n & 3]
        r = []
        if v == 0:
            for n2 in range(2):
                if sg is None:
                    r.append(f"v_add_u32 v{ab+n2}, {so}, v{16+n2}")
                else:
                    r.append(f"v_add_u32 v{ab+n2}, s{sg}, v{16+n2}")
        for n2 in range(2):
            for ee in range(2):
                r.append(f"ds_read_b64_tr_b16 v[{b+4*n2+2*ee}:{b+4*n2+2*ee+1}], v{ab+n2} offset:{v*2048+ee*1024}")
        return r
    def p2_mfmas(n):
        b = AFS[n & 3]; hb = hreg(n)
        m = []
        for n2 in range(2):
            c = ACC2 + 16 * n2
            src = "0" if n == 0 else f"v[{c}:{c+15}]"
            m.append(f"{MF} v[{c}:{c+15}], v[{b+4*n2}:{b+4*n2+3}], v[{hb}:{hb+3}], {src}")
        return m
    for n in range(3):
        for ins in p2_reads(n): a(ins)
    last_rd = 2
    SB = o.sb_step
    for n in range(56):
        lg = 4 * (last_rd - n)
        assert 0 <= lg <= 12
        if n == SB:
            a(f"s_waitcnt vmcnt(0) lgkmcnt({lg})")
            tr("D")
            a("s_barrier")
            st(4); tr("D")
        elif n < SB:
            a(f"s_waitcnt vmcnt({32 - (n + 1)}) lgkmcnt({lg})")
        elif n < 28:
            a(f"s_waitcnt lgkmcnt({lg})")
        else:
            a(f"s_waitcnt vmcnt({56 - (n + 1)}) lgkmcnt({lg})")
        if n in (0, 28, 29, 37, 44): tr("D")
        if n == 15: a("s_barrier")
        if n == 37: a("s_barrier")
        if n == 37: tr("D")
        nr = n + 3
        rd = []
        if nr < 56 and not (n < 28 <= nr):
            rd = p2_reads(nr); last_rd = nr
        mf = p2_mfmas(n)
        a(mf[0])
        for ins in rd[:-2]: a(ins)
        a(mf[1])
        for ins in rd[-2:]: a(ins)
        if n == 27:
            tr("D")
            a("s_barrier")
            st(5); tr("D"); trk()
            for m in range(28, 56):
                for ins in hload(m): a(ins)
            for m in (28, 29, 30):
                for ins in p2_reads(m): a(ins)
            last_rd = 30
    st(6); tr("D"); trk()
    a(f"""
    s_lshl_b32 s56, s18, 12
    s_add_u32 s56, s56, s{UB[4]}
    v_add_u32 v8, s56, v22
    s_xor_b32 s57, s18, 2
    s_lshl_b32 s57, s57, 12
    s_add_u32 s57, s57, s{UB[4]}
    v_add_u32 v9, s57, v22
    v_and_b32 v10, 31, v1
    s_lshl_b32 s56, s54, 6
    s_and_b32 s57, s18, 1
    s_lshl_b32 s57, s57, 5
    s_add_u32 s56, s56, s57
    v_add_u32 v10, s56, v10
    v_mul_u32_u24 v10, 896, v10
    v_lshrrev_b32 v11, 5, v1
    v_lshl_add_u32 v10, v11, 4, v10
    s_lshl_b32 s56, s55, 7
    s_lshr_b32 s57, s18, 1
    s_lshl_b32 s57, s57, 6
    s_add_u32 s56, s56, s57
    v_add_u32 v10, s56, v10
    s_nop 7
    """)
    for i in range(4):
        c = ACC2 + 16 + 4 * i
        a(f"ds_write_b128 v8, v[{c}:{c+3}] offset:{i*1024}")
    a("s_waitcnt lgkmcnt(0)\ns_barrier")
    for i in range(4):
        a(f"ds_read_b128 v[{48+4*i}:{51+4*i}], v9 offset:{i*1024}")
    for i in range(4):
        a(f"s_waitcnt lgkmcnt({3-i})")
        for k in range(4):
            a(f"v_add_f32 v{ACC2+4*i+k}, v{ACC2+4*i+k}, v{48+4*i+k}")
        a(f"v_cvt_pk_bf16_f32 v{64+2*i}, v{ACC2+4*i}, v{ACC2+4*i+1}")
        a(f"v_cvt_pk_bf16_f32 v{65+2*i}, v{ACC2+4*i+2}, v{ACC2+4*i+3}")
        if i & 1:
            b = 64 + 4 * (i >> 1)
            a("s_nop 1")
            a(f"v_permlane32_swap_b32 v{b}, v{b+2}")
            a(f"v_permlane32_swap_b32 v{b+1}, v{b+3}")
            a(f"buffer_store_dwordx4 v[{b}:{b+3}], v10, s[44:47], 0 offen offset:{(i>>1)*32} {o.outsc}")
    if o.trace in ("C", "S", "D", "K"):
        trk()
        tr("D")
        a("s_cmp_lg_u32 s18, 0\ns_cbranch_scc1 L_end")
        tr_store(o.trace)
    if o.stamps:
        a("s_waitcnt vmcnt(0)")
        st(7)
        a("s_cmp_lg_u32 s18, 0\ns_cbranch_scc1 L_end")
        if o.dbgst:
            a("s_cmp_lg_u32 s2, 100\ns_cbranch_scc1 L_end\ns_waitcnt lgkmcnt(0)")
            a("s_mov_b32 s48, s14\ns_mov_b32 s49, s15\ns_mov_b32 s50, 256\ns_mov_b32 s51, 0x20000\nv_mov_b32 v0, 0\ns_mov_b64 exec, 1")
            a("v_mov_b32 v2, s80\nbuffer_store_dword v2, v0, s[48:51], 0 offen offset:16")
            for k in range(1, 8):
                a(f"s_sub_u32 s56, s{80+2*k}, s80\nv_mov_b32 v2, s56\nbuffer_store_dword v2, v0, s[48:51], 0 offen offset:{16+4*k}\ns_nop 1")
        else:
            a(store_stamps(8, 16, 17, 2, vt=0, tmp=72))
    a("s_endpgm")

    a("L_loader:")
    a(f"""
    s_setprio 3
    v_lshrrev_b32 v24, 3, v1
    v_mul_u32_u24 v25, 3584, v24
    v_and_b32 v26, 7, v1
    v_bfe_u32 v27, v1, 4, 1
    v_lshlrev_b32 v28, 1, v27
    v_xor_b32 v28, v26, v28               ; c gate
    v_lshl_add_u32 v2, v28, 4, v25
    v_xor_b32 v28, 4, v28
    v_lshl_add_u32 v6, v28, 4, v25
    s_lshl_b32 s56, s53, 8
    v_add_u32 v2, s56, v2
    v_add_u32 v6, s56, v6
    """)
    for k in range(1, 4):
        a(f"v_add_u32 v{2+k}, {k*(8*3584-1024)}, v2\nv_add_u32 v{6+k}, {k*(8*3584-1024)}, v6")
    a(f"""
    v_mul_u32_u24 v25, 896, v24
    v_lshlrev_b32 v28, 2, v27
    v_xor_b32 v28, v26, v28
    v_lshl_add_u32 v10, v28, 4, v25
    s_lshl_b32 s56, s55, 7
    v_add_u32 v10, s56, v10
    """)
    for k in range(1, 4):
        a(f"v_add_u32 v{10+k}, {k*(8*896-1024)}, v10")
    a(f"""
    v_lshrrev_b32 v27, 4, v1
    v_xor_b32 v28, v26, v27
    v_lshl_add_u32 v14, v28, 4, v25
    v_xor_b32 v28, 4, v28
    v_lshl_add_u32 v15, v28, 4, v25
    s_mul_i32 s56, s52, {128*896}
    v_add_u32 v14, s56, v14
    s_add_u32 s56, s56, {8*896-1024}
    v_add_u32 v15, s56, v15
    v_add_u32 v16, {2*(8*896-1024)}, v14
    v_add_u32 v17, {2*(8*896-1024)}, v15
    """)
    LT = 70 if o.trace == "L" else 80
    XT, WT, DT = 20, 44, 36+16
    for j in range(4):
        a(f"s_lshl_b32 s{72+j}, s{RT+j}, 14")
    for j in range(7):
        a(f"s_lshl_b32 s{33+j}, s{RT+j}, 7")
        a(f"s_mul_i32 s{44+j}, s{RT+j}, {64*3584}")
        a(f"s_mul_i32 s{RT+j}, s{RT+j}, {256*896}")
    a("s_waitcnt lgkmcnt(0)")
    srd(a, 24, 4, 2048 * 896)
    srd(a, 28, 6, 448 * 3584)
    a(f"""
    s_mov_b32 s56, s8
    s_mov_b32 s57, s9
    s_mov_b32 s58, {448*3584}
    s_mov_b32 s59, 0x20000
    s_mov_b32 s68, s10
    s_mov_b32 s69, s11
    """)
    a(f"""
    s_mov_b32 s20, s10
    s_mov_b32 s21, s11
    s_mov_b32 s22, {1792*896}
    s_mov_b32 s23, 0x20000
    """)
    order = []
    def xdmaL(s):
        for g in range(4):
            a(f"s_mov_b32 m0, {s*16384 + g*4096}")
            a(f"s_add_u32 s67, s{33+s}, {g*32*896}")
            for k in range(4):
                a(f"buffer_load_dwordx4 v{14+k}, s[24:27], s67 offen offset:{k*1024} lds")
                order.append(("W", s))
    def wdma(s):
        slot = s % 3; pas = s // 7; ss = s % 7
        for mat in range(2):
            sr = "s[28:31]" if mat == 0 else "s[56:59]"
            for g in range(2):
                a(f"s_mov_b32 m0, {114688 + slot*16384 + mat*8192 + g*4096}")
                a(f"s_add_u32 s67, s{44+ss}, {32*g*3584 + pas*128}")
                for k in range(4):
                    a(f"buffer_load_dwordx4 v{2+4*mat+k}, {sr}, s67 offen offset:{k*1024} lds")
                    order.append(("W", s))
    def ddma(p, j, unit, phys=False, dyn_unit=None):
        for g in range(4):
            if dyn_unit is None:
                a(f"s_mov_b32 m0, {unit*16384 + g*4096}")
            else:
                a(f"s_add_u32 m0, s{dyn_unit}, {g*4096}")
            if phys:
                a(f"s_mov_b32 s67, {(256*j + 128*(g>>1) + 64*p + 32*(g&1))*896}")
            else:
                a(f"s_add_u32 s67, s{RT+j}, {(128*(g>>1) + 64*p + 32*(g&1))*896}")
            for k in range(4):
                a(f"buffer_load_dwordx4 v{10+k}, s[20:23], s67 offen offset:{k*1024} lds")
                order.append(("D", p, j))
    def wait_tag(tag):
        last = max(i for i, t in enumerate(order) if t == tag)
        n = len(order) - 1 - last
        a(f"s_waitcnt vmcnt({min(n, 63)})")
    def room(k):
        a(f"s_waitcnt vmcnt({63-k})")
    tr("L")
    a("s_barrier")
    nextA = 0
    for i in range(15):
        if 2 <= i <= 13: wait_tag(("W", i))
        tr("L")
        a("s_barrier")
        if i + 2 <= 6:
            room(16); xdmaL(i + 2)
        if i + 2 <= 13:
            room(16); wdma(i + 2)
        if i >= 8:
            room(16); ddma(0, i - 8, i - 8, phys=True)
    a("s_waitcnt vmcnt(0)")
    a("LST0")
    a("s_barrier")
    for j in range(3):
        room(16); ddma(1, j, [9, 7, 8][j])
    a("LST1")
    a("s_barrier")
    a("s_barrier")
    for j in range(3, 7):
        room(16); ddma(1, j, None, dyn_unit=72 + j - 3)
    a("s_waitcnt vmcnt(63)")
    wait_tag(("D", 1, 2))
    a("LST2")
    a("s_barrier")
    a("s_waitcnt vmcnt(0)")
    a("LST4")
    a("s_barrier")
    a("LSTORE")
    tr_store("L", tmp=24)
    a("s_endpgm")

    a("L_poller:")
    a(f"""
    s_setprio 3
    s_mul_i32 s56, s21, 112
    v_lshrrev_b32 v4, 3, v1
    v_add_u32 v4, s56, v4
    v_mul_u32_u24 v4, 3584, v4
    v_and_b32 v5, 7, v1
    v_lshl_add_u32 v4, v5, 4, v4
    s_lshl_b32 s56, s53, 8
    s_add_u32 s56, s56, 128
    v_add_u32 v4, s56, v4
    v_mov_b32 v2, 0
    v_lshlrev_b32 v13, 20, v1
    s_waitcnt lgkmcnt(0)
    """)
    srd(a, 28, 6, 448 * 3584)
    srd(a, 32, 8, 448 * 3584)
    srd(a, 40, 16, WS_SIZE)
    srd(a, 44, 12, 2048 * 896)
    srd(a, 48, 14, 256)
    a(f"""
    s_cmp_lg_u32 s2, 0
    s_cbranch_scc1 L_p_nonce
    s_memrealtime s[70:71]
    s_waitcnt lgkmcnt(0)
    v_mov_b32 v6, s70
    v_mov_b32 v7, s71
    s_mov_b64 exec, 1
    buffer_store_dwordx2 v[6:7], v2, s[48:51], 0 offen sc1
    s_mov_b64 exec, -1
L_p_nonce:
    s_barrier                              ; T0
    """)
    if o.prefetch:
        for k in range(14):
            a(f"s_mov_b32 s56, {k*8*3584}")
            a(f"buffer_load_dwordx4 v[{20+8*(k%8)}:{23+8*(k%8)}], v4, s[28:31], s56 offen")
            a(f"buffer_load_dwordx4 v[{24+8*(k%8)}:{27+8*(k%8)}], v4, s[32:35], s56 offen")
    a(f"""
    s_mov_b64 exec, 0x1ff
    buffer_load_dword v14, v13, s[40:43], 0 offen
    s_mov_b64 exec, 3
    buffer_load_dword v15, v13, s[44:47], 0 offen
    s_mov_b64 exec, -1
    buffer_load_dwordx2 v[6:7], v2, s[48:51], 0 offen sc1
    s_lshl_b32 s72, s52, 4
    s_add_u32 s72, s72, s53
    s_lshl_b32 s72, s72, 7
    s_add_u32 s72, s72, {FLAG_OFF}
    s_add_u32 s73, s72, {16*16*128}
    s_lshr_b32 s74, s54, 1
    s_lshl_b32 s74, s74, 11
    s_add_u32 s74, s74, {FLAG_OFF}
    s_add_u32 s75, s74, {16*16*128}
    v_min_u32 v8, 13, v1
    v_lshlrev_b32 v8, 7, v8
    """)
    for i in range(9):
        a("s_barrier")
    a(f"""
    s_mov_b32 s76, 0
L_p_chknonce:
    s_waitcnt vmcnt(0)
    v_readfirstlane_b32 s70, v6
    v_readfirstlane_b32 s71, v7
    s_add_u32 s76, s76, 1
    s_nop 3
    s_or_b32 s56, s70, s71
    s_cmp_lg_u32 s56, 0
    s_cbranch_scc1 L_p_havenonce
    s_cmp_gt_u32 s76, 0x40000
    s_cbranch_scc1 L_p_havenonce
    buffer_load_dwordx2 v[6:7], v2, s[48:51], 0 offen sc1
    s_branch L_p_chknonce
L_p_havenonce:
    s_barrier                              ; R_9
    PST0
    s_mov_b64 exec, 1
    buffer_store_dwordx2 v[6:7], v2, s[40:43], s72 offen sc1     ; flag A
    s_mov_b64 exec, -1
    s_barrier                              ; R_10
    s_barrier                              ; R_11
    buffer_load_dwordx2 v[10:11], v8, s[40:43], s74 offen sc1
    s_barrier                              ; R_12
    s_mov_b32 s76, 0
L_p_pollA:
    s_waitcnt vmcnt(0)
    v_cmp_ne_u64 vcc, s[70:71], v[10:11]
    s_add_u32 s76, s76, 1
    s_nop 4
    s_cbranch_vccz L_p_gotA
    s_cmp_gt_u32 s76, 0x40000
    s_cbranch_scc1 L_p_gotA
    buffer_load_dwordx2 v[10:11], v8, s[40:43], s74 offen sc1
    s_branch L_p_pollA
L_p_gotA:
    PST1
    s_barrier                              ; R_13
    s_barrier                              ; R_14
    s_barrier                              ; G
    s_barrier                              ; S_B
    PST2
    s_mov_b64 exec, 1
    buffer_store_dwordx2 v[6:7], v2, s[40:43], s73 offen sc1     ; flag B
    s_mov_b64 exec, -1
    s_barrier                              ; E_half
    s_mov_b32 s76, 0
L_p_pollB:
    buffer_load_dwordx2 v[10:11], v8, s[40:43], s75 offen sc1
    s_waitcnt vmcnt(0)
    v_cmp_ne_u64 vcc, s[70:71], v[10:11]
    s_add_u32 s76, s76, 1
    s_nop 4
    s_cbranch_vccz L_p_gotB
    s_cmp_gt_u32 s76, 0x40000
    s_cbranch_scc1 L_p_gotB
    s_sleep 1
    s_branch L_p_pollB
L_p_gotB:
    PST3
    s_barrier                              ; P_B
    PST4
    PSTORE
    s_endpgm
L_helper:
    s_sub_u32 s56, s2, 224
    s_lshr_b32 s56, s56, 3
    s_mul_i32 s56, s56, 6
    s_add_u32 s56, s56, s18
    v_lshlrev_b32 v2, 4, v1
    s_waitcnt lgkmcnt(0)
    s_mov_b32 s36, s10
    s_mov_b32 s37, s11
    s_mov_b32 s38, {1792*896}
    s_mov_b32 s39, 0x20000
    s_mov_b32 s57, 0
L_h_loop:
    ; KB index k=s56 in [0,1568): part = k>=784 ; kk = k - 784*part ; block b = kk/56, off = kk%56 : addr = (128b + 64*part)*896 + off*1024
    s_cmp_ge_u32 s56, 784
    s_cselect_b32 s60, 784, 0
    s_cselect_b32 s61, {64*896}, 0
    s_sub_u32 s60, s56, s60
    s_mul_i32 s58, s60, 1171
    s_lshr_b32 s58, s58, 16               ; kk/56
    s_mul_i32 s59, s58, 56
    s_sub_u32 s59, s60, s59
    s_lshl_b32 s59, s59, 10
    s_mul_i32 s58, s58, {128*896}
    s_add_u32 s58, s58, s59
    s_add_u32 s58, s58, s61
    buffer_load_dwordx4 v[4:7], v2, s[36:39], s58 offen
    s_waitcnt vmcnt(40)
    s_add_u32 s56, s56, 24
    s_cmp_lt_u32 s56, 1568
    s_cbranch_scc1 L_h_loop
L_end:
    s_endpgm
    """)
    a(rodata_begin())
    a(descriptor(KN, vgpr=256, sgpr=102))
    txt = a.text()
    for k in range(5):
        txt = txt.replace(f"    PST{k}\n", f"    s_memrealtime s[{80+2*k}:{81+2*k}]\n" if o.stamps else "")
    txt = txt.replace("    PSTORE\n", ("s_add_u32 s2, s2, 256\n" + store_stamps(5, 16, 17, 2, vt=20, tmp=56)) if (o.stamps and not o.dbgst) else "")
    for k in range(6):
        txt = txt.replace(f"LST{k}\n", f"s_memrealtime s[{80+2*k}:{81+2*k}]\n" if o.stamps else "")
    txt = txt.replace("LSTORE\n", ("s_add_u32 s2, s2, 512\n" + store_stamps(6, 16, 17, 2, vt=20, tmp=56)) if (o.stamps and not o.dbgst) else "")
    open(name, "w").write(txt)

if __name__ == "__main__":
    o = Opt(); o.stamps = True; o.dbgst = True; gen("v10_dbg.s", o)
    o = Opt(); o.outsc = "sc1"; gen("v10_sc1.s", o)
    o = Opt(); o.outsc = "nt"; gen("v10_nt.s", o)
    o = Opt(); o.outsc = "sc0 sc1"; gen("v10_sc01.s", o)
    o = Opt(); o.helpers = False; gen("v10_nohelp.s", o)
    o = Opt(); gen("v10.s", o)
    o = Opt(); o.stamps = True; gen("v10s.s", o)
    for t in "CLSDK":
        o = Opt(); o.trace = t; gen(f"v10t{t}.s", o)
```

```python
import sys, struct
from asmlib import *

def f2u(x):
    return struct.unpack("<I", struct.pack("<f", x))[0]

C0 = -2.0 * 1.4426950408889634 * 0.7978845608028654
C1 = C0 * 0.044715
FLAG_OFF = 8 << 20
WS_SIZE = 9 << 20
MF = "v_mfma_f32_32x32x16_bf16"

def srd(a, d, lo, size):
    a(f"""
    s_mov_b32 s{d}, s{lo}
    s_mov_b32 s{d+1}, s{lo+1}
    s_mov_b32 s{d+2}, {size}
    s_mov_b32 s{d+3}, 0x20000
    """)

class Opt:
    stamps = False
    prefetch = True
    geglu_steps = 26
    abl = ""
    trace = ""
    rot = True
    wd_start = 11
    pk = True
    helpers = True
    wbx4 = True
    extraH = True
    flagA_bar = 9
    hrot = True
    hst = 'sc1'
    hld = 'sc1'
    hl_per_tile = (0, 0, 0, 0)
    pre_sb_last = 19
    hl_rate = 3
    g_loads = 4
    b_look = 2
    b_poll_step = 22
    outsc = 'sc1'
    dbgst = False
    sb_step = 15

def gen(name, o):
    a = Asm()
    NW = 6
    a(header([(KN, 256 if o.helpers else 224, NW * 64, 163840)]))
    a(kernel_begin(KN))
    st = (lambda k: a(f"s_memrealtime s[{80+2*k}:{81+2*k}]")) if o.stamps else (lambda k: None)
    cnt = {"C": 0, "L": 0, "S": 0, "P": 0, "D": 0, "K": 0}
    def trk():
        if o.trace == "K" and cnt["K"] < 16:
            k = cnt["K"]; cnt["K"] += 2
            a(f"s_memtime s[{70+2*k}:{71+2*k}]\ns_memrealtime s[{72+2*k}:{73+2*k}]")
    def tr(who):
        if o.trace == who and cnt[who] < 16:
            k = cnt[who]; cnt[who] += 1
            a(f"s_memtime s[{70+2*k}:{71+2*k}]")
    def tr_store(who, vt=0, tmp=24):
        if o.trace == who:
            a("s_waitcnt vmcnt(0) lgkmcnt(0)")
            for k in range(cnt[who], 16):
                a(f"s_mov_b32 s{70+2*k}, 0\ns_mov_b32 s{71+2*k}, 0")
            a(store_stamps(16, 16, 17, 2, base=70, nslot=16, vt=vt, tmp=tmp))
    a(f"""
    s_cmp_ge_u32 s2, {256 if o.helpers else 224}
    s_cbranch_scc1 L_end
    s_load_dwordx4 s[4:7], s[0:1], 0      ; x, wg
    s_load_dwordx4 s[8:11], s[0:1], 16
    s_load_dwordx4 s[12:15], s[0:1], 32
    s_load_dwordx2 s[16:17], s[0:1], 48   ; ws
    """)
    st(0); trk()
    a(f"""
    v_and_b32 v1, 63, v0                  ; lane
    v_lshrrev_b32 v2, 6, v0               ; wave
    s_and_b32 s19, s2, 7                  ; xcd
    v_readfirstlane_b32 s18, v2
    s_lshr_b32 s20, s2, 3                 ; within 0..27
    s_mul_i32 s21, s20, 37
    s_lshr_b32 s21, s21, 8                ; l4 = within/7  (0..3)
    s_mul_i32 s22, s21, 7
    s_sub_u32 s22, s20, s22               ; l7 = within%7  (0..6)
    s_and_b32 s52, s19, 3
    s_lshl_b32 s52, s52, 2
    s_add_u32 s52, s52, s21
    s_lshr_b32 s53, s19, 2
    s_mul_i32 s53, s53, 7
    s_add_u32 s53, s53, s22
    s_lshl_b32 s54, s19, 2
    s_add_u32 s54, s54, s21
    s_mov_b32 s55, s22
    s_lshl_b32 s23, s21, 1
    s_add_u32 s23, s23, s22
    s_cmp_ge_u32 s23, 7
    s_cselect_b32 s56, 7, 0
    s_sub_u32 s23, s23, s56
    """)
    if not o.rot: a("s_mov_b32 s23, 0")
    RT = 60
    for j in range(7):
        a(f"""
    s_add_u32 s{RT+j}, s23, {j}
    s_cmp_ge_u32 s{RT+j}, 7
    s_cselect_b32 s56, 7, 0
    s_sub_u32 s{RT+j}, s{RT+j}, s56
        """)
    a(f"""
    s_cmp_ge_u32 s2, 224
    s_cbranch_scc1 L_helper
    s_cmp_eq_u32 s18, 4
    s_cbranch_scc1 L_loader
    s_cmp_eq_u32 s18, 5
    s_cbranch_scc1 L_poller
    """)
    XF = 8; WB = 6; DB = 16; T = 24; PK = 40; FR = 48; ACCA = 112; ACCB = 176
    a(f"""
    v_lshrrev_b32 v24, 3, v1
    v_mul_u32_u24 v25, 896, v24
    v_and_b32 v26, 7, v1
    v_lshrrev_b32 v27, 4, v1
    v_xor_b32 v28, v26, v27
    v_lshl_add_u32 v2, v28, 4, v25
    v_xor_b32 v28, 4, v28
    v_lshl_add_u32 v3, v28, 4, v25
    s_mul_i32 s56, s52, {128*896}
    s_mul_i32 s57, s18, {32*896}
    s_add_u32 s56, s56, s57
    v_add_u32 v2, s56, v2
    s_add_u32 s56, s56, {8*896-1024}
    v_add_u32 v3, s56, v3
    v_add_u32 v4, {2*(8*896-1024)}, v2
    v_add_u32 v5, {2*(8*896-1024)}, v3
    v_mul_u32_u24 v25, 3584, v24
    v_bfe_u32 v27, v1, 4, 1
    v_lshlrev_b32 v28, 1, v27
    v_xor_b32 v28, v26, v28
    s_lshr_b32 s56, s18, 1
    s_lshl_b32 s57, s56, 2
    v_xor_b32 v28, s57, v28               ; ^ (mat<<2)
    v_lshl_add_u32 v48, v28, 4, v25
    s_lshl_b32 s57, s53, 8
    s_and_b32 s59, s18, 1
    s_mul_i32 s59, s59, {32*3584}
    s_add_u32 s57, s57, s59
    v_add_u32 v48, s57, v48
    v_add_u32 v49, {8*3584-1024}, v48
    v_add_u32 v50, {2*(8*3584-1024)}, v48
    v_add_u32 v51, {3*(8*3584-1024)}, v48
    s_lshl_b32 s57, s56, 13
    s_and_b32 s59, s18, 1
    s_lshl_b32 s59, s59, 12
    s_add_u32 s32, s57, s59
    s_add_u32 s32, s32, 114688
    s_lshl_b32 s58, s18, 12               ; c*4096
    s_waitcnt lgkmcnt(0)
    s_cmp_eq_u32 s56, 0
    s_cselect_b32 s28, s6, s8
    s_cselect_b32 s29, s7, s9
    s_mov_b32 s30, {448*3584}
    s_mov_b32 s31, 0x20000
    """)
    srd(a, 24, 4, 2048 * 896)
    def xdma(s):
        a(f"""
    s_add_u32 s57, s58, {s*16384}
    s_mov_b32 m0, s57
    s_lshl_b32 s59, s{RT+s}, 7
    buffer_load_dwordx4 v2, s[24:27], s59 offen lds
    buffer_load_dwordx4 v3, s[24:27], s59 offen offset:1024 lds
    buffer_load_dwordx4 v4, s[24:27], s59 offen offset:2048 lds
    buffer_load_dwordx4 v5, s[24:27], s59 offen offset:3072 lds
        """)
    def wq(s):
        a(f"""
    s_add_u32 s57, s32, {s*16384}
    s_mov_b32 m0, s57
    s_mul_i32 s59, s{RT+s}, {64*3584}
    buffer_load_dwordx4 v48, s[28:31], s59 offen lds
    buffer_load_dwordx4 v49, s[28:31], s59 offen offset:1024 lds
    buffer_load_dwordx4 v50, s[28:31], s59 offen offset:2048 lds
    buffer_load_dwordx4 v51, s[28:31], s59 offen offset:3072 lds
        """)
    tr("S")
    xdma(0); wq(0); xdma(1); wq(1)
    tr("S")
    a("s_barrier")
    tr("S")
    if o.trace == "S":
        for n in (12, 8, 4, 0):
            a(f"s_waitcnt vmcnt({n})"); tr("S")
    srd(a, 40, 16, WS_SIZE)
    srd(a, 44, 12, 2048 * 896)
    a(f"""
    ; W A-frag bases
    v_lshrrev_b32 v24, 5, v1              ; h
    v_bfe_u32 v25, v1, 4, 1               ; mat / grp
    v_bfe_u32 v26, v1, 2, 2               ; rr
    v_and_b32 v27, 3, v1                  ; cc
    v_lshl_add_u32 v28, v24, 3, v26       ; 8h+rr
    v_lshlrev_b32 v28, 7, v28
    v_lshl_add_u32 v28, v25, 13, v28
    v_lshl_add_u32 v28, v27, 3, v28
    v_add_u32 v28, 114688, v28
    v_bfe_u32 v29, v1, 3, 1
    v_lshl_add_u32 v29, v25, 1, v29       ; g
    s_lshr_b32 s56, s18, 1
    s_lshl_b32 s56, s56, 1                ; 2fh
    v_xor_b32 v30, s56, v29
    v_lshl_add_u32 v6, v30, 5, v28
    v_xor_b32 v7, 32, v6
    ; x frag bases
    v_and_b32 v26, 31, v1
    v_bfe_u32 v27, v1, 1, 3
    v_xor_b32 v27, v27, v24
    v_lshlrev_b32 v27, 4, v27
    v_lshl_add_u32 v27, v26, 7, v27
    s_and_b32 s56, s18, 1
    s_lshl_b32 s56, s56, 13
    v_add_u32 v8, s56, v27
    v_xor_b32 v9, 32, v8
    v_xor_b32 v10, 64, v8
    v_xor_b32 v11, 96, v8
    v_add_u32 v12, 0x10000, v8
    v_add_u32 v13, 0x10000, v9
    v_add_u32 v14, 0x10000, v10
    v_add_u32 v15, 0x10000, v11
    ; Wd A-frag bases: row = 64kh + 4h + rr ; granule = (grp ^ 2b) ^ (2*kh) for acc0 (n2=kh)
    v_bfe_u32 v26, v1, 2, 2
    v_lshl_add_u32 v26, v24, 2, v26       ; 4h+rr
    s_lshr_b32 s56, s18, 1                ; kh
    s_lshl_b32 s57, s56, 6
    v_add_u32 v26, s57, v26
    v_lshlrev_b32 v26, 7, v26
    v_bfe_u32 v27, v1, 3, 1
    v_lshlrev_b32 v27, 1, v27
    v_xor_b32 v27, v27, v25
    s_lshl_b32 s57, s56, 1
    v_xor_b32 v27, s57, v27
    v_lshl_add_u32 v26, v27, 5, v26
    v_and_b32 v27, 3, v1
    v_lshl_add_u32 v16, v27, 3, v26
    v_xor_b32 v17, 64, v16
    v_lshlrev_b32 v22, 4, v1
    s_mov_b32 s70, {f2u(C0)}
    s_mov_b32 s68, {f2u(C1)}
    s_mov_b32 s69, {f2u(C1)}
    v_mov_b32 v23, s70
    v_mov_b32 v52, s70
    v_mov_b32 v53, s70
    ; h store soffsets: ((mt*4 + 2mh)*112 + fc*8 + 2fh)*1024 ; +i*112K, +pass*4096, +j*1024
    s_and_b32 s56, s18, 1
    s_lshl_b32 s56, s56, 1
    s_lshl_b32 s57, s52, 2
    s_add_u32 s56, s56, s57
    s_mul_i32 s56, s56, 112
    s_lshl_b32 s57, s53, 3
    s_add_u32 s56, s56, s57
    s_lshr_b32 s57, s18, 1
    s_lshl_b32 s57, s57, 1
    s_add_u32 s56, s56, s57
    s_lshl_b32 s36, s56, 10               ; pass A, i=0
    s_add_u32 s37, s36, {112*1024}        ; i=1
    s_add_u32 s38, s36, 4096              ; pass B
    s_add_u32 s39, s37, 4096
    """.replace("s_mov_b32 s70,", "s_mov_b32 s67,").replace("v23, s70", "v23, s67").replace("v132, s70", "v134, s67").replace("v133, s70", "v135, s67"))
    for i in range(128):
        a(f"v_mov_b32 v{ACCA+i}, 0")

    def p1_reads(n):
        s, q = n >> 2, n & 3
        b = FR + 16 * (n & 3)
        unit = s % 7
        xb = XF + q + (4 if unit >= 4 else 0)
        xo = (unit & 3) * 16384
        slot = s % 3
        r = []
        for i in range(2):
            r.append(f"ds_read_b128 v[{b+4*i}:{b+4*i+3}], v{xb} offset:{xo+i*4096}")
        for j in range(2):
            for e in range(2):
                r.append(f"ds_read_b64_tr_b16 v[{b+8+4*j+2*e}:{b+8+4*j+2*e+1}], v{WB+j} offset:{slot*16384+q*2048+e*512}")
        return [r[0], r[2], r[3], r[1], r[4], r[5]]
    def p1_mfmas(n):
        b = FR + 16 * (n & 3)
        acc = ACCA if n < 28 else ACCB
        m = []
        for j in range(2):
            for i in range(2):
                c = acc + 16 * (2 * j + i)
                m.append(f"{MF} v[{c}:{c+15}], v[{b+8+4*j}:{b+8+4*j+3}], v[{b+4*i}:{b+4*i+3}], v[{c}:{c+15}]")
        return m
    def geglu_tile(acc, t, pas, tmp, pk, packed=False, cpair=None):
        j, i = t >> 1, t & 1
        g = acc + 16 * t
        L = []
        if not packed:
            for r in range(8): L.append((f"v_mul_f32 v{tmp+r}, v{g+r}, v{g+r}", 4))
            for r in range(8): L.append((f"v_fma_f32 v{tmp+r}, v{tmp+r}, s68, v23", 4))
            for r in range(8): L.append((f"v_mul_f32 v{tmp+r}, v{tmp+r}, v{g+r}", 4))
            for r in range(8): L.append((f"v_exp_f32 v{tmp+r}, v{tmp+r}", 8))
            for r in range(8): L.append((f"v_mul_f32 v{g+r}, v{g+r}, v{g+8+r}", 4))
            for r in range(8): L.append((f"v_add_f32 v{tmp+r}, 1.0, v{tmp+r}", 4))
            for r in range(8): L.append((f"v_rcp_f32 v{tmp+r}, v{tmp+r}", 8))
            L.append(("s_nop 0", 1))
            for r in range(8): L.append((f"v_mul_f32 v{g+r}, v{g+r}, v{tmp+r}", 4))
        else:
            P2 = lambda x: f"v[{x}:{x+1}]"
            for r in range(0, 8, 2): L.append((f"v_pk_mul_f32 {P2(tmp+r)}, {P2(g+r)}, {P2(g+r)}", 4))
            for r in range(0, 8, 2): L.append((f"v_pk_fma_f32 {P2(tmp+r)}, {P2(tmp+r)}, s[68:69], {P2(cpair)}", 4))
            for r in range(0, 8, 2): L.append((f"v_pk_mul_f32 {P2(tmp+r)}, {P2(tmp+r)}, {P2(g+r)}", 4))
            for r in range(8): L.append((f"v_exp_f32 v{tmp+r}, v{tmp+r}", 8))
            for r in range(0, 8, 2): L.append((f"v_pk_mul_f32 {P2(g+r)}, {P2(g+r)}, {P2(g+8+r)}", 4))
            for r in range(0, 8, 2): L.append((f"v_pk_add_f32 {P2(tmp+r)}, {P2(tmp+r)}, 1.0 op_sel_hi:[1,0]", 4))
            for r in range(8): L.append((f"v_rcp_f32 v{tmp+r}, v{tmp+r}", 8))
            L.append(("s_nop 0", 1))
            for r in range(0, 8, 2): L.append((f"v_pk_mul_f32 {P2(g+r)}, {P2(g+r)}, {P2(tmp+r)}", 4))
        for d in range(4): L.append((f"v_cvt_pk_bf16_f32 v{pk+d}, v{g+2*d}, v{g+2*d+1}", 4))
        so = 36 + 2 * pas + i
        L.append((f"buffer_store_dwordx4 v[{pk}:{pk+3}], v22, s[40:43], s{so} offen offset:{j*1024} {o.hst}", 4))
        return L
    a(f"""
    s_lshl_b32 s56, s54, 1
    s_and_b32 s57, s18, 1
    s_add_u32 s56, s56, s57
    s_mul_i32 s56, s56, 112
    s_lshr_b32 s57, s18, 1
    s_lshl_b32 s57, s57, 3
    s_add_u32 s56, s56, s57
    s_lshl_b32 s56, s56, 10
    v_mov_b32 v4, s67
    v_mov_b32 v5, s67
    """)
    a(f"""
    s_mov_b32 s24, s14
    s_mov_b32 s25, s15
    s_mov_b32 s26, 256
    s_mov_b32 s27, 0x20000
    ; per-lane B-flag offsets: lane j<7 -> producer fc' = 2*((r+j)%7) + kh
    v_min_u32 v2, 6, v1
    v_add_u32 v2, s23, v2
    v_subrev_u32 v3, 7, v2
    v_cmp_le_u32 vcc, 7, v2
    s_nop 1
    v_cndmask_b32 v2, v2, v3, vcc
    v_lshlrev_b32 v2, 1, v2
    s_lshr_b32 s57, s18, 1
    v_add_u32 v2, s57, v2
    v_lshlrev_b32 v2, 7, v2
    s_lshr_b32 s32, s54, 1
    s_lshl_b32 s32, s32, 11
    s_add_u32 s32, s32, {FLAG_OFF + 16*16*128}
    v_mov_b32 v3, 0
    """)
    UB = [48, 49, 50, 51, 33, 34, 35]
    for j in range(7):
        a(f"""
    s_cmp_eq_u32 s{RT+j}, 5
    s_cselect_b32 s57, 9, s{RT+j}
    s_cmp_eq_u32 s{RT+j}, 6
    s_cselect_b32 s57, 5, s57
    s_lshl_b32 s{UB[j]}, s57, 14
    s_lshl_b32 s{RT+j}, s{RT+j}, 14
    s_add_u32 s{RT+j}, s{RT+j}, s56
        """)
    ACC2 = 176
    AFS = [96, 104, 240, 248]
    def hreg(n):
        m = n % 28
        return 112 + 4 * m if m < 16 else 48 + 4 * (m - 16)
    def hload(n):
        p, j, v = n // 28, (n % 28) >> 2, n & 3
        b = hreg(n)
        r = []
        if p and v == 0: r.append(f"s_add_u32 s{RT+j}, s{RT+j}, 4096")
        r.append(f"buffer_load_dwordx4 v[{b}:{b+3}], v22, s[40:43], s{RT+j} offen offset:{v*1024} {o.hld}")
        return r

    vops = []
    a("s_waitcnt vmcnt(8)")
    tr("C")
    a("s_barrier")
    tr("C")
    st(1); trk()
    for ins in p1_reads(0): a(ins)
    for ins in p1_reads(1): a(ins)
    for n in range(56):
        s, q = n >> 2, n & 3
        if q == 2:
            w = "s_waitcnt lgkmcnt(0)"
            if s + 1 in (1, o.flagA_bar): w = "s_waitcnt vmcnt(0) lgkmcnt(0)"
            a(w)
            a("s_barrier")
            tr("C")
            if s + 1 in (2, 7): trk()
        else:
            a("s_waitcnt lgkmcnt(6)" if n + 1 < 56 else "s_waitcnt lgkmcnt(0)")
        rd = p1_reads(n + 2) if n + 2 < 56 else []
        mf = p1_mfmas(n)
        for k in range(4):
            a(mf[k])
            lo, hi = ([0, 3, 6, 6], [3, 6, 6, 6]) if q == 1 else ([0, 2, 4, 5], [2, 4, 5, 6])
            for ins in rd[lo[k]:hi[k]]: a(ins)
        if n == 44:
            a("buffer_load_dwordx2 v[40:41], v3, s[24:27], 0 offen sc1")
            vops.append(("N", 0))
        if 50 <= n <= 53:
            for ins in hload(n - 50): a(ins)
            vops.append(("L", n - 50))
        if n == 27:
            a("s_nop 7\ns_nop 7")
            for t in range(4):
                for ins, _ in geglu_tile(ACCA, t, 0, T + 8 * (t & 1), PK + 4 * (t & 1), packed=o.pk, cpair=4): a(ins)
    st(2); tr("D"); trk()
    pN = vops.index(("N", 0))
    a(f"""
    s_waitcnt vmcnt({len(vops) - 1 - pN})
    s_mov_b32 s28, 0
L_c_nonce:
    v_readfirstlane_b32 s30, v40
    v_readfirstlane_b32 s31, v41
    s_add_u32 s28, s28, 1
    s_nop 3
    s_or_b32 s29, s30, s31
    s_cmp_lg_u32 s29, 0
    s_cbranch_scc1 L_c_havenonce
    s_cmp_gt_u32 s28, 0x40000
    s_cbranch_scc1 L_c_havenonce
    buffer_load_dwordx2 v[40:41], v3, s[24:27], 0 offen sc1
    s_waitcnt vmcnt(0)
    s_branch L_c_nonce
L_c_havenonce:
    """)
    a("s_nop 7")
    nextL = 4
    for t in range(4):
        tile = geglu_tile(ACCB, t, 1, T + 8 * (t & 1), PK + 4 * (t & 1), packed=o.pk, cpair=4)
        nins = len(tile)
        nl = o.hl_per_tile[t]
        pos = [int((k + 0.5) * nins / nl) for k in range(nl)] if nl else []
        for idx, (ins, _) in enumerate(tile):
            if idx in pos:
                for li in hload(nextL): a(li)
                vops.append(("L", nextL)); nextL += 1
            a(ins)
            if ins.startswith("buffer_store"): vops.append(("S", t))
    tr("D")
    a("s_barrier")
    st(3); tr("D")
    def unit_sgpr(n):
        p, j = n // 28, (n % 28) >> 2
        if p == 0: return (UB[j], 0)
        if j < 3: return (None, [7, 6, 8][j] * 16384)
        return (UB[j - 3], 0)
    def p2_reads(n):
        v = n & 3
        sg, so = unit_sgpr(n)
        ch = n >> 2
        ab = 18 + 2 * (ch & 1)
        b = AFS[n & 3]
        r = []
        if v == 0:
            for n2 in range(2):
                if sg is None:
                    r.append(f"v_add_u32 v{ab+n2}, {so}, v{16+n2}")
                else:
                    r.append(f"v_add_u32 v{ab+n2}, s{sg}, v{16+n2}")
        for n2 in range(2):
            for ee in range(2):
                r.append(f"ds_read_b64_tr_b16 v[{b+4*n2+2*ee}:{b+4*n2+2*ee+1}], v{ab+n2} offset:{v*2048+ee*1024}")
        return r
    def p2_mfmas(n):
        b = AFS[n & 3]; hb = hreg(n)
        m = []
        for n2 in range(2):
            c = ACC2 + 16 * n2
            src = "0" if n == 0 else f"v[{c}:{c+15}]"
            m.append(f"{MF} v[{c}:{c+15}], v[{b+4*n2}:{b+4*n2+3}], v[{hb}:{hb+3}], {src}")
        return m
    for _ in range(o.g_loads):
        for li in hload(nextL): a(li)
        vops.append(("L", nextL)); nextL += 1
    for n in range(3):
        for ins in p2_reads(n): a(ins)
    last_rd = 2
    SB = o.sb_step
    assert SB >= 15
    def ensure(j):
        a(f"""
    s_bitcmp1_b32 s29, {j}
    s_cbranch_scc1 L_c_ok{j}
L_c_poll{j}:
    buffer_load_dwordx2 v[40:41], v2, s[40:43], s32 offen sc1
    s_waitcnt vmcnt(0)
    v_cmp_eq_u64 vcc, s[30:31], v[40:41]
    s_add_u32 s28, s28, 1
    s_nop 4
    s_and_b32 s29, vcc_lo, 0x7f
    s_cmp_gt_u32 s28, 0x80000
    s_cbranch_scc1 L_c_ok{j}
    s_bitcmp1_b32 s29, {j}
    s_cbranch_scc0 L_c_poll{j}
L_c_ok{j}:
        """)
    def loadB(j):
        for v in range(4):
            for li in hload(28 + 4 * j + v): a(li)
    LA = o.b_look
    for n in range(56):
        lg = 4 * (last_rd - n)
        assert 0 <= lg <= 12
        if n == SB:
            a(f"s_waitcnt vmcnt(0) lgkmcnt({lg})")
            tr("D")
            a("s_barrier")
            st(4); tr("D")
            vops = []
        elif n < 28:
            if ("L", n) in vops:
                p = vops.index(("L", n))
                a(f"s_waitcnt vmcnt({len(vops) - 1 - p}) lgkmcnt({lg})")
            else:
                a(f"s_waitcnt lgkmcnt({lg})")
        else:
            j, v = (n - 28) >> 2, n & 3
            if v == 0 and j + LA <= 6 and j > 0:
                ensure(j + LA); loadB(j + LA)
            issued_chunks = min(j + LA, 6)
            younger = (3 - v) + 4 * (issued_chunks - j)
            a(f"s_waitcnt vmcnt({younger}) lgkmcnt({lg})")
        if n in (0, 28, 29, 37, 44): tr("D")
        if n == 37: a("s_barrier")
        if n == 37: tr("D")
        nr = n + 3
        rd = []
        if nr < 56:
            rd = p2_reads(nr); last_rd = nr
        mf = p2_mfmas(n)
        a(mf[0])
        for ins in rd[:-2]: a(ins)
        a(mf[1])
        for ins in rd[-2:]: a(ins)
        if n < 28:
            lim = o.pre_sb_last if n < SB else 27
            for _ in range(o.hl_rate):
                if nextL <= lim:
                    for li in hload(nextL): a(li)
                    vops.append(("L", nextL)); nextL += 1
        if n == o.b_poll_step:
            a("buffer_load_dwordx2 v[40:41], v2, s[40:43], s32 offen sc1")
            vops.append(("P", 0))
        if n == 27:
            tr("D")
            a(f"""
    s_waitcnt vmcnt(0)
    v_cmp_eq_u64 vcc, s[30:31], v[40:41]
    s_mov_b32 s28, 0
    s_nop 4
    s_and_b32 s29, vcc_lo, 0x7f
            """)
            for j in range(LA + 1):
                ensure(j); loadB(j)
            st(5); tr("D"); trk()
    st(6); tr("D"); trk()
    a(f"""
    s_lshl_b32 s56, s18, 12
    s_add_u32 s56, s56, s{UB[4]}
    v_add_u32 v8, s56, v22
    s_xor_b32 s57, s18, 2
    s_lshl_b32 s57, s57, 12
    s_add_u32 s57, s57, s{UB[4]}
    v_add_u32 v9, s57, v22
    v_and_b32 v10, 31, v1
    s_lshl_b32 s56, s54, 6
    s_and_b32 s57, s18, 1
    s_lshl_b32 s57, s57, 5
    s_add_u32 s56, s56, s57
    v_add_u32 v10, s56, v10
    v_mul_u32_u24 v10, 896, v10
    v_lshrrev_b32 v11, 5, v1
    v_lshl_add_u32 v10, v11, 4, v10
    s_lshl_b32 s56, s55, 7
    s_lshr_b32 s57, s18, 1
    s_lshl_b32 s57, s57, 6
    s_add_u32 s56, s56, s57
    v_add_u32 v10, s56, v10
    s_nop 7
    """)
    for i in range(4):
        c = ACC2 + 16 + 4 * i
        a(f"ds_write_b128 v8, v[{c}:{c+3}] offset:{i*1024}")
    a("s_waitcnt lgkmcnt(0)\ns_barrier")
    for i in range(4):
        a(f"ds_read_b128 v[{48+4*i}:{51+4*i}], v9 offset:{i*1024}")
    for i in range(4):
        a(f"s_waitcnt lgkmcnt({3-i})")
        for k in range(4):
            a(f"v_add_f32 v{ACC2+4*i+k}, v{ACC2+4*i+k}, v{48+4*i+k}")
        a(f"v_cvt_pk_bf16_f32 v{64+2*i}, v{ACC2+4*i}, v{ACC2+4*i+1}")
        a(f"v_cvt_pk_bf16_f32 v{65+2*i}, v{ACC2+4*i+2}, v{ACC2+4*i+3}")
        if i & 1:
            b = 64 + 4 * (i >> 1)
            a("s_nop 1")
            a(f"v_permlane32_swap_b32 v{b}, v{b+2}")
            a(f"v_permlane32_swap_b32 v{b+1}, v{b+3}")
            a(f"buffer_store_dwordx4 v[{b}:{b+3}], v10, s[44:47], 0 offen offset:{(i>>1)*32} {o.outsc}")
    if o.trace in ("C", "S", "D", "K"):
        trk()
        tr("D")
        a("s_cmp_lg_u32 s18, 0\ns_cbranch_scc1 L_end")
        tr_store(o.trace)
    if o.stamps:
        a("s_waitcnt vmcnt(0)")
        st(7)
        a("s_cmp_lg_u32 s18, 0\ns_cbranch_scc1 L_end")
        if o.dbgst:
            a("s_cmp_lg_u32 s2, 100\ns_cbranch_scc1 L_end\ns_waitcnt lgkmcnt(0)")
            a("s_mov_b32 s48, s14\ns_mov_b32 s49, s15\ns_mov_b32 s50, 256\ns_mov_b32 s51, 0x20000\nv_mov_b32 v0, 0\ns_mov_b64 exec, 1")
            a("v_mov_b32 v2, s80\nbuffer_store_dword v2, v0, s[48:51], 0 offen offset:16")
            for k in range(1, 8):
                a(f"s_sub_u32 s56, s{80+2*k}, s80\nv_mov_b32 v2, s56\nbuffer_store_dword v2, v0, s[48:51], 0 offen offset:{16+4*k}\ns_nop 1")
        else:
            a(store_stamps(8, 16, 17, 2, vt=0, tmp=72))
    a("s_endpgm")

    a("L_loader:")
    a(f"""
    s_setprio 3
    v_lshrrev_b32 v24, 3, v1
    v_mul_u32_u24 v25, 3584, v24
    v_and_b32 v26, 7, v1
    v_bfe_u32 v27, v1, 4, 1
    v_lshlrev_b32 v28, 1, v27
    v_xor_b32 v28, v26, v28               ; c gate
    v_lshl_add_u32 v2, v28, 4, v25
    v_xor_b32 v28, 4, v28
    v_lshl_add_u32 v6, v28, 4, v25
    s_lshl_b32 s56, s53, 8
    v_add_u32 v2, s56, v2
    v_add_u32 v6, s56, v6
    """)
    for k in range(1, 4):
        a(f"v_add_u32 v{2+k}, {k*(8*3584-1024)}, v2\nv_add_u32 v{6+k}, {k*(8*3584-1024)}, v6")
    a(f"""
    v_mul_u32_u24 v25, 896, v24
    v_lshlrev_b32 v28, 2, v27
    v_xor_b32 v28, v26, v28
    v_lshl_add_u32 v10, v28, 4, v25
    s_lshl_b32 s56, s55, 7
    v_add_u32 v10, s56, v10
    """)
    for k in range(1, 4):
        a(f"v_add_u32 v{10+k}, {k*(8*896-1024)}, v10")
    a(f"""
    v_lshrrev_b32 v27, 4, v1
    v_xor_b32 v28, v26, v27
    v_lshl_add_u32 v14, v28, 4, v25
    v_xor_b32 v28, 4, v28
    v_lshl_add_u32 v15, v28, 4, v25
    s_mul_i32 s56, s52, {128*896}
    v_add_u32 v14, s56, v14
    s_add_u32 s56, s56, {8*896-1024}
    v_add_u32 v15, s56, v15
    v_add_u32 v16, {2*(8*896-1024)}, v14
    v_add_u32 v17, {2*(8*896-1024)}, v15
    """)
    LT = 70 if o.trace == "L" else 80
    XT, WT, DT = 20, 44, 36+16
    for j in range(4):
        a(f"""
    s_cmp_eq_u32 s{RT+j}, 5
    s_cselect_b32 s56, 9, s{RT+j}
    s_cmp_eq_u32 s{RT+j}, 6
    s_cselect_b32 s56, 5, s56
    s_lshl_b32 s{72+j}, s56, 14
        """)
    for j in range(7):
        a(f"s_lshl_b32 s{33+j}, s{RT+j}, 7")
        a(f"s_mul_i32 s{44+j}, s{RT+j}, {64*3584}")
        a(f"s_mul_i32 s{RT+j}, s{RT+j}, {256*896}")
    a("s_waitcnt lgkmcnt(0)")
    srd(a, 24, 4, 2048 * 896)
    srd(a, 28, 6, 448 * 3584)
    a(f"""
    s_mov_b32 s56, s8
    s_mov_b32 s57, s9
    s_mov_b32 s58, {448*3584}
    s_mov_b32 s59, 0x20000
    s_mov_b32 s68, s10
    s_mov_b32 s69, s11
    """)
    a(f"""
    s_mov_b32 s20, s10
    s_mov_b32 s21, s11
    s_mov_b32 s22, {1792*896}
    s_mov_b32 s23, 0x20000
    """)
    order = []
    def xdmaL(s):
        for g in range(4):
            a(f"s_mov_b32 m0, {s*16384 + g*4096}")
            a(f"s_add_u32 s67, s{33+s}, {g*32*896}")
            for k in range(4):
                a(f"buffer_load_dwordx4 v{14+k}, s[24:27], s67 offen offset:{k*1024} lds")
                order.append(("W", s))
    def wdma(s):
        slot = s % 3; pas = s // 7; ss = s % 7
        for mat in range(2):
            sr = "s[28:31]" if mat == 0 else "s[56:59]"
            for g in range(2):
                a(f"s_mov_b32 m0, {114688 + slot*16384 + mat*8192 + g*4096}")
                a(f"s_add_u32 s67, s{44+ss}, {32*g*3584 + pas*128}")
                for k in range(4):
                    a(f"buffer_load_dwordx4 v{2+4*mat+k}, {sr}, s67 offen offset:{k*1024} lds")
                    order.append(("W", s))
    def ddma(p, j, unit, phys=False, dyn_unit=None):
        for g in range(4):
            if dyn_unit is None:
                a(f"s_mov_b32 m0, {unit*16384 + g*4096}")
            else:
                a(f"s_add_u32 m0, s{dyn_unit}, {g*4096}")
            if phys:
                a(f"s_mov_b32 s67, {(256*j + 128*(g>>1) + 64*p + 32*(g&1))*896}")
            else:
                a(f"s_add_u32 s67, s{RT+j}, {(128*(g>>1) + 64*p + 32*(g&1))*896}")
            for k in range(4):
                a(f"buffer_load_dwordx4 v{10+k}, s[20:23], s67 offen offset:{k*1024} lds")
                order.append(("D", p, j))
    def wait_tag(tag):
        last = max(i for i, t in enumerate(order) if t == tag)
        n = len(order) - 1 - last
        a(f"s_waitcnt vmcnt({min(n, 63)})")
    def room(k):
        a(f"s_waitcnt vmcnt({63-k})")
    tr("L")
    a("s_barrier")
    nextA = 0
    for i in range(15):
        if 2 <= i <= 13: wait_tag(("W", i))
        tr("L")
        a("s_barrier")
        if i + 2 <= 6:
            room(16); xdmaL(i + 2)
        if i + 2 <= 13:
            room(16); wdma(i + 2)
        if 8 <= i <= 12:
            room(16); ddma(0, i - 8, i - 8, phys=True)
        if i == 12:
            room(16); ddma(0, 5, 9, phys=True)
        if i == 13:
            room(16); ddma(0, 6, 5, phys=True)
            room(16); ddma(1, 0, 7)
        if i == 14:
            room(16); ddma(1, 1, 6)
            room(16); ddma(1, 2, 8)
    a("s_waitcnt vmcnt(0)")
    a("LST0")
    a("s_barrier")
    a("s_barrier")
    a("LST1")
    for j in (3, 4, 5, 6):
        room(16); ddma(1, j, None, dyn_unit=72 + j - 3)
    a("LST2")
    a("s_waitcnt vmcnt(0)")
    a("LST4")
    a("s_barrier")
    a("LSTORE")
    tr_store("L", tmp=24)
    a("s_endpgm")

    a("L_poller:")
    a(f"""
    s_setprio 3
    s_mul_i32 s56, s21, 112
    v_lshrrev_b32 v4, 3, v1
    v_add_u32 v4, s56, v4
    v_mul_u32_u24 v4, 3584, v4
    v_and_b32 v5, 7, v1
    v_lshl_add_u32 v4, v5, 4, v4
    s_lshl_b32 s56, s53, 8
    s_add_u32 s56, s56, 128
    v_add_u32 v4, s56, v4
    v_mov_b32 v2, 0
    v_lshlrev_b32 v13, 20, v1
    s_waitcnt lgkmcnt(0)
    """)
    srd(a, 28, 6, 448 * 3584)
    srd(a, 32, 8, 448 * 3584)
    srd(a, 40, 16, WS_SIZE)
    srd(a, 44, 12, 2048 * 896)
    srd(a, 48, 14, 256)
    a(f"""
    s_cmp_lg_u32 s2, 0
    s_cbranch_scc1 L_p_nonce
    s_memrealtime s[70:71]
    s_waitcnt lgkmcnt(0)
    v_mov_b32 v6, s70
    v_mov_b32 v7, s71
    s_mov_b64 exec, 1
    buffer_store_dwordx2 v[6:7], v2, s[48:51], 0 offen sc1
    s_mov_b64 exec, -1
L_p_nonce:
    s_barrier                              ; T0
    """)
    if o.prefetch:
        for k in range(14):
            a(f"s_mov_b32 s56, {k*8*3584}")
            a(f"buffer_load_dwordx4 v[{20+8*(k%8)}:{23+8*(k%8)}], v4, s[28:31], s56 offen")
            a(f"buffer_load_dwordx4 v[{24+8*(k%8)}:{27+8*(k%8)}], v4, s[32:35], s56 offen")
    a(f"""
    s_mov_b64 exec, 0x1ff
    buffer_load_dword v14, v13, s[40:43], 0 offen
    s_mov_b64 exec, 3
    buffer_load_dword v15, v13, s[44:47], 0 offen
    s_mov_b64 exec, -1
    buffer_load_dwordx2 v[6:7], v2, s[48:51], 0 offen sc1
    s_lshl_b32 s72, s52, 4
    s_add_u32 s72, s72, s53
    s_lshl_b32 s72, s72, 7
    s_add_u32 s72, s72, {FLAG_OFF}
    s_add_u32 s73, s72, {16*16*128}
    s_lshr_b32 s74, s54, 1
    s_lshl_b32 s74, s74, 11
    s_add_u32 s74, s74, {FLAG_OFF}
    s_add_u32 s75, s74, {16*16*128}
    v_min_u32 v8, 13, v1
    v_lshlrev_b32 v8, 7, v8
    """)
    for i in range(9):
        a("s_barrier")
    a(f"""
    s_mov_b32 s76, 0
L_p_chknonce:
    s_waitcnt vmcnt(0)
    v_readfirstlane_b32 s70, v6
    v_readfirstlane_b32 s71, v7
    s_add_u32 s76, s76, 1
    s_nop 3
    s_or_b32 s56, s70, s71
    s_cmp_lg_u32 s56, 0
    s_cbranch_scc1 L_p_havenonce
    s_cmp_gt_u32 s76, 0x40000
    s_cbranch_scc1 L_p_havenonce
    buffer_load_dwordx2 v[6:7], v2, s[48:51], 0 offen sc1
    s_branch L_p_chknonce
L_p_havenonce:
    s_barrier                              ; R_9
    PST0
    s_mov_b64 exec, 1
    buffer_store_dwordx2 v[6:7], v2, s[40:43], s72 offen sc1     ; flag A
    s_mov_b64 exec, -1
    s_barrier                              ; R_10
    s_barrier                              ; R_11
    buffer_load_dwordx2 v[10:11], v8, s[40:43], s74 offen sc1
    s_barrier                              ; R_12
    s_mov_b32 s76, 0
L_p_pollA:
    s_waitcnt vmcnt(0)
    v_cmp_ne_u64 vcc, s[70:71], v[10:11]
    s_add_u32 s76, s76, 1
    s_nop 4
    s_cbranch_vccz L_p_gotA
    s_cmp_gt_u32 s76, 0x40000
    s_cbranch_scc1 L_p_gotA
    buffer_load_dwordx2 v[10:11], v8, s[40:43], s74 offen sc1
    s_branch L_p_pollA
L_p_gotA:
    PST1
    s_barrier                              ; R_13
    s_barrier                              ; R_14
    s_barrier                              ; G
    s_barrier                              ; S_B
    PST2
    s_mov_b64 exec, 1
    buffer_store_dwordx2 v[6:7], v2, s[40:43], s73 offen sc1     ; flag B
    s_mov_b64 exec, -1
    PST4
    PSTORE
    s_endpgm
L_helper:
    s_sub_u32 s56, s2, 224
    s_lshr_b32 s56, s56, 3
    s_mul_i32 s56, s56, 6
    s_add_u32 s56, s56, s18
    v_lshlrev_b32 v2, 4, v1
    s_waitcnt lgkmcnt(0)
    s_mov_b32 s36, s10
    s_mov_b32 s37, s11
    s_mov_b32 s38, {1792*896}
    s_mov_b32 s39, 0x20000
    s_mul_i32 s62, s19, 7
    s_lshr_b32 s62, s62, 2
HROT
L_h_loop:
    ; KB index k=s56 in [0,1568): part = k>=784 ; kk = k - 784*part ; block b = kk/56, off = kk%56 : addr = (128b + 64*part)*896 + off*1024
    s_cmp_ge_u32 s56, 784
    s_cselect_b32 s60, 784, 0
    s_cselect_b32 s61, {64*896}, 0
    s_sub_u32 s60, s56, s60
    s_mul_i32 s58, s60, 1171
    s_lshr_b32 s58, s58, 16               ; kk/56
    s_mul_i32 s59, s58, 56
    s_sub_u32 s59, s60, s59
    s_lshl_b32 s59, s59, 10
    s_add_u32 s58, s58, s62
    s_cmp_ge_u32 s58, 14
    s_cselect_b32 s63, 14, 0
    s_sub_u32 s58, s58, s63
    s_mul_i32 s58, s58, {128*896}
    s_add_u32 s58, s58, s59
    s_add_u32 s58, s58, s61
    buffer_load_dwordx4 v[4:7], v2, s[36:39], s58 offen
    s_waitcnt vmcnt(40)
    s_add_u32 s56, s56, 24
    s_cmp_lt_u32 s56, 1568
    s_cbranch_scc1 L_h_loop
L_end:
    s_endpgm
    """)
    a(rodata_begin())
    a(descriptor(KN, vgpr=256, sgpr=102))
    txt = a.text()
    txt = txt.replace("HROT\n", "" if o.hrot else "    s_mov_b32 s62, 0\n")
    for k in range(5):
        txt = txt.replace(f"    PST{k}\n", f"    s_memrealtime s[{80+2*k}:{81+2*k}]\n" if o.stamps else "")
    txt = txt.replace("    PSTORE\n", ("s_add_u32 s2, s2, 256\n" + store_stamps(5, 16, 17, 2, vt=20, tmp=56)) if (o.stamps and not o.dbgst) else "")
    for k in range(6):
        txt = txt.replace(f"LST{k}\n", f"s_memrealtime s[{80+2*k}:{81+2*k}]\n" if o.stamps else "")
    txt = txt.replace("LSTORE\n", ("s_add_u32 s2, s2, 512\n" + store_stamps(6, 16, 17, 2, vt=20, tmp=56)) if (o.stamps and not o.dbgst) else "")
    open(name, "w").write(txt)

if __name__ == "__main__":
    o = Opt(); gen("v13.s", o)
    o = Opt(); o.stamps = True; gen("v13s.s", o)
    o = Opt(); o.sb_step = 17; o.pre_sb_last = 23; gen("v13_d.s", o)
    o = Opt(); o.b_look = 6; gen("v13_e.s", o)
    o = Opt(); o.b_look = 3; o.b_poll_step = 24; gen("v13_f.s", o)
    for t in "CD":
        o = Opt(); o.trace = t; gen(f"v13t{t}.s", o)
```

```python
import sys, struct
from asmlib import *

def f2u(x):
    return struct.unpack("<I", struct.pack("<f", x))[0]

C0 = -2.0 * 1.4426950408889634 * 0.7978845608028654
C1 = C0 * 0.044715
FLAG_OFF = 8 << 20
WS_SIZE = 9 << 20
MF = "v_mfma_f32_32x32x16_bf16"

def srd(a, d, lo, size):
    a(f"""
    s_mov_b32 s{d}, s{lo}
    s_mov_b32 s{d+1}, s{lo+1}
    s_mov_b32 s{d+2}, {size}
    s_mov_b32 s{d+3}, 0x20000
    """)

class Opt:
    stamps = False
    prefetch = True
    geglu_steps = 26
    abl = ""
    trace = ""
    rot = True
    wd_start = 11
    pk = True
    helpers = True
    wbx4 = True
    extraH = True
    flagA_bar = 9
    hrot = True
    hst = 'sc1'
    hld = 'sc1'
    hl_per_tile = (0, 0, 0, 0)
    pre_sb_last = 19
    hl_rate = 3
    g_loads = 4
    codepf = True
    fb_step = 4
    rmul = 2
    hdelay = 0
    delay_end = 0
    b_look = 2
    b_poll_step = 22
    outsc = 'sc1'
    dbgst = False
    sb_step = 15

def gen(name, o):
    a = Asm()
    NW = 6
    a(header([(KN, 256 if o.helpers else 224, NW * 64, 163840)]))
    a(kernel_begin(KN))
    st = (lambda k: a(f"s_memrealtime s[{80+2*k}:{81+2*k}]")) if o.stamps else (lambda k: None)
    cnt = {"C": 0, "L": 0, "S": 0, "P": 0, "D": 0, "K": 0, "U": 0}
    def tru():
        if o.trace == "U" and cnt["U"] < 16:
            k = cnt["U"]; cnt["U"] += 1
            if k == 1: k = cnt["U"]; cnt["U"] += 1
            a(f"s_memrealtime s[{70+2*k}:{71+2*k}]")
    def trk():
        if o.trace == "K" and cnt["K"] < 16:
            k = cnt["K"]; cnt["K"] += 2
            a(f"s_memtime s[{70+2*k}:{71+2*k}]\ns_memrealtime s[{72+2*k}:{73+2*k}]")
    def tr(who):
        if o.trace == who and cnt[who] < 16:
            k = cnt[who]; cnt[who] += 1
            a(f"s_memtime s[{70+2*k}:{71+2*k}]")
    def tr_store(who, vt=0, tmp=24):
        if o.trace == who:
            a("s_waitcnt vmcnt(0) lgkmcnt(0)")
            for k in range(cnt[who], 16):
                a(f"s_mov_b32 s{70+2*k}, 0\ns_mov_b32 s{71+2*k}, 0")
            a(store_stamps(16, 16, 17, 2, base=70, nslot=16, vt=vt, tmp=tmp))
    a(f"""
    s_cmp_ge_u32 s2, {256 if o.helpers else 224}
    s_cbranch_scc1 L_end
    s_load_dwordx4 s[4:7], s[0:1], 0      ; x, wg
    s_load_dwordx4 s[8:11], s[0:1], 16
    s_load_dwordx4 s[12:15], s[0:1], 32
    s_load_dwordx2 s[16:17], s[0:1], 48   ; ws
    """)
    st(0); trk(); tru()
    a(f"""
    v_and_b32 v1, 63, v0                  ; lane
    v_lshrrev_b32 v2, 6, v0               ; wave
    s_and_b32 s19, s2, 7                  ; xcd
    v_readfirstlane_b32 s18, v2
    s_lshr_b32 s20, s2, 3                 ; within 0..27
    s_mul_i32 s21, s20, 37
    s_lshr_b32 s21, s21, 8                ; l4 = within/7  (0..3)
    s_mul_i32 s22, s21, 7
    s_sub_u32 s22, s20, s22               ; l7 = within%7  (0..6)
    s_and_b32 s52, s19, 3
    s_lshl_b32 s52, s52, 2
    s_add_u32 s52, s52, s21
    s_lshr_b32 s53, s19, 2
    s_mul_i32 s53, s53, 7
    s_add_u32 s53, s53, s22
    s_lshl_b32 s54, s19, 2
    s_add_u32 s54, s54, s21
    s_mov_b32 s55, s22
    s_mul_i32 s23, s21, {o.rmul}
    s_add_u32 s23, s23, s22
    s_cmp_ge_u32 s23, 7
    s_cselect_b32 s56, 7, 0
    s_sub_u32 s23, s23, s56
    """)
    if not o.rot: a("s_mov_b32 s23, 0")
    RT = 60
    for j in range(7):
        a(f"""
    s_add_u32 s{RT+j}, s23, {j}
    s_cmp_ge_u32 s{RT+j}, 7
    s_cselect_b32 s56, 7, 0
    s_sub_u32 s{RT+j}, s{RT+j}, s56
        """)
    a(f"""
    s_cmp_ge_u32 s2, 224
    s_cbranch_scc1 L_helper
    s_cmp_eq_u32 s18, 4
    s_cbranch_scc1 L_loader
    s_cmp_eq_u32 s18, 5
    s_cbranch_scc1 L_poller
    """)
    XF = 8; WB = 6; DB = 16; T = 24; PK = 40; FR = 48; ACCA = 112; ACCB = 176
    a(f"""
    v_lshrrev_b32 v24, 3, v1
    v_mul_u32_u24 v25, 896, v24
    v_and_b32 v26, 7, v1
    v_lshrrev_b32 v27, 4, v1
    v_xor_b32 v28, v26, v27
    v_lshl_add_u32 v2, v28, 4, v25
    v_xor_b32 v28, 4, v28
    v_lshl_add_u32 v3, v28, 4, v25
    s_mul_i32 s56, s52, {128*896}
    s_mul_i32 s57, s18, {32*896}
    s_add_u32 s56, s56, s57
    v_add_u32 v2, s56, v2
    s_add_u32 s56, s56, {8*896-1024}
    v_add_u32 v3, s56, v3
    v_add_u32 v4, {2*(8*896-1024)}, v2
    v_add_u32 v5, {2*(8*896-1024)}, v3
    v_mul_u32_u24 v25, 3584, v24
    v_bfe_u32 v27, v1, 4, 1
    v_lshlrev_b32 v28, 1, v27
    v_xor_b32 v28, v26, v28
    s_lshr_b32 s56, s18, 1
    s_lshl_b32 s57, s56, 2
    v_xor_b32 v28, s57, v28               ; ^ (mat<<2)
    v_lshl_add_u32 v48, v28, 4, v25
    s_lshl_b32 s57, s53, 8
    s_and_b32 s59, s18, 1
    s_mul_i32 s59, s59, {32*3584}
    s_add_u32 s57, s57, s59
    v_add_u32 v48, s57, v48
    v_add_u32 v49, {8*3584-1024}, v48
    v_add_u32 v50, {2*(8*3584-1024)}, v48
    v_add_u32 v51, {3*(8*3584-1024)}, v48
    s_lshl_b32 s57, s56, 13
    s_and_b32 s59, s18, 1
    s_lshl_b32 s59, s59, 12
    s_add_u32 s32, s57, s59
    s_add_u32 s32, s32, 114688
    s_lshl_b32 s58, s18, 12               ; c*4096
    s_waitcnt lgkmcnt(0)
    TRU
    s_cmp_eq_u32 s56, 0
    s_cselect_b32 s28, s6, s8
    s_cselect_b32 s29, s7, s9
    s_mov_b32 s30, {448*3584}
    s_mov_b32 s31, 0x20000
    """)
    srd(a, 24, 4, 2048 * 896)
    def xdma(s):
        a(f"""
    s_add_u32 s57, s58, {s*16384}
    s_mov_b32 m0, s57
    s_lshl_b32 s59, s{RT+s}, 7
    buffer_load_dwordx4 v2, s[24:27], s59 offen lds
    buffer_load_dwordx4 v3, s[24:27], s59 offen offset:1024 lds
    buffer_load_dwordx4 v4, s[24:27], s59 offen offset:2048 lds
    buffer_load_dwordx4 v5, s[24:27], s59 offen offset:3072 lds
        """)
    def wq(s):
        a(f"""
    s_add_u32 s57, s32, {s*16384}
    s_mov_b32 m0, s57
    s_mul_i32 s59, s{RT+s}, {64*3584}
    buffer_load_dwordx4 v48, s[28:31], s59 offen lds
    buffer_load_dwordx4 v49, s[28:31], s59 offen offset:1024 lds
    buffer_load_dwordx4 v50, s[28:31], s59 offen offset:2048 lds
    buffer_load_dwordx4 v51, s[28:31], s59 offen offset:3072 lds
        """)
    tr("S")
    xdma(0); wq(0); xdma(1); wq(1)
    tr("S"); tru()
    a("s_barrier")
    tr("S"); tru()
    if o.trace == "U":
        for n in (12, 8, 4, 0):
            a(f"s_waitcnt vmcnt({n})"); tru()
    if o.trace == "S":
        for n in (12, 8, 4, 0):
            a(f"s_waitcnt vmcnt({n})"); tr("S")
    srd(a, 40, 16, WS_SIZE)
    srd(a, 44, 12, 2048 * 896)
    a(f"""
    ; W A-frag bases
    v_lshrrev_b32 v24, 5, v1              ; h
    v_bfe_u32 v25, v1, 4, 1               ; mat / grp
    v_bfe_u32 v26, v1, 2, 2               ; rr
    v_and_b32 v27, 3, v1                  ; cc
    v_lshl_add_u32 v28, v24, 3, v26       ; 8h+rr
    v_lshlrev_b32 v28, 7, v28
    v_lshl_add_u32 v28, v25, 13, v28
    v_lshl_add_u32 v28, v27, 3, v28
    v_add_u32 v28, 114688, v28
    v_bfe_u32 v29, v1, 3, 1
    v_lshl_add_u32 v29, v25, 1, v29       ; g
    s_lshr_b32 s56, s18, 1
    s_lshl_b32 s56, s56, 1                ; 2fh
    v_xor_b32 v30, s56, v29
    v_lshl_add_u32 v6, v30, 5, v28
    v_xor_b32 v7, 32, v6
    ; x frag bases
    v_and_b32 v26, 31, v1
    v_bfe_u32 v27, v1, 1, 3
    v_xor_b32 v27, v27, v24
    v_lshlrev_b32 v27, 4, v27
    v_lshl_add_u32 v27, v26, 7, v27
    s_and_b32 s56, s18, 1
    s_lshl_b32 s56, s56, 13
    v_add_u32 v8, s56, v27
    v_xor_b32 v9, 32, v8
    v_xor_b32 v10, 64, v8
    v_xor_b32 v11, 96, v8
    v_add_u32 v12, 0x10000, v8
    v_add_u32 v13, 0x10000, v9
    v_add_u32 v14, 0x10000, v10
    v_add_u32 v15, 0x10000, v11
    ; Wd A-frag bases: row = 64kh + 4h + rr ; granule = (grp ^ 2b) ^ (2*kh) for acc0 (n2=kh)
    v_bfe_u32 v26, v1, 2, 2
    v_lshl_add_u32 v26, v24, 2, v26       ; 4h+rr
    s_lshr_b32 s56, s18, 1                ; kh
    s_lshl_b32 s57, s56, 6
    v_add_u32 v26, s57, v26
    v_lshlrev_b32 v26, 7, v26
    v_bfe_u32 v27, v1, 3, 1
    v_lshlrev_b32 v27, 1, v27
    v_xor_b32 v27, v27, v25
    s_lshl_b32 s57, s56, 1
    v_xor_b32 v27, s57, v27
    v_lshl_add_u32 v26, v27, 5, v26
    v_and_b32 v27, 3, v1
    v_lshl_add_u32 v16, v27, 3, v26
    v_xor_b32 v17, 64, v16
    v_lshlrev_b32 v22, 4, v1
    s_mov_b32 s70, {f2u(C0)}
    s_mov_b32 s68, {f2u(C1)}
    s_mov_b32 s69, {f2u(C1)}
    v_mov_b32 v23, s70
    v_mov_b32 v52, s70
    v_mov_b32 v53, s70
    ; h store soffsets: ((mt*4 + 2mh)*112 + fc*8 + 2fh)*1024 ; +i*112K, +pass*4096, +j*1024
    s_and_b32 s56, s18, 1
    s_lshl_b32 s56, s56, 1
    s_lshl_b32 s57, s52, 2
    s_add_u32 s56, s56, s57
    s_mul_i32 s56, s56, 112
    s_lshl_b32 s57, s53, 3
    s_add_u32 s56, s56, s57
    s_lshr_b32 s57, s18, 1
    s_lshl_b32 s57, s57, 1
    s_add_u32 s56, s56, s57
    s_lshl_b32 s36, s56, 10               ; pass A, i=0
    s_add_u32 s37, s36, {112*1024}        ; i=1
    s_add_u32 s38, s36, 4096              ; pass B
    s_add_u32 s39, s37, 4096
    """.replace("s_mov_b32 s70,", "s_mov_b32 s67,").replace("v23, s70", "v23, s67").replace("v162, s70", "v164, s67").replace("v163, s70", "v165, s67"))
    for i in range(128):
        a(f"v_mov_b32 v{ACCA+i}, 0")

    def p1_reads(n):
        s, q = n >> 2, n & 3
        b = FR + 16 * (n & 3)
        unit = s % 7
        xb = XF + q + (4 if unit >= 4 else 0)
        xo = (unit & 3) * 16384
        slot = s % 3
        r = []
        for i in range(2):
            r.append(f"ds_read_b128 v[{b+4*i}:{b+4*i+3}], v{xb} offset:{xo+i*4096}")
        for j in range(2):
            for e in range(2):
                r.append(f"ds_read_b64_tr_b16 v[{b+8+4*j+2*e}:{b+8+4*j+2*e+1}], v{WB+j} offset:{slot*16384+q*2048+e*512}")
        return [r[0], r[2], r[3], r[1], r[4], r[5]]
    def p1_mfmas(n):
        b = FR + 16 * (n & 3)
        acc = ACCA if n < 28 else ACCB
        m = []
        for j in range(2):
            for i in range(2):
                c = acc + 16 * (2 * j + i)
                m.append(f"{MF} v[{c}:{c+15}], v[{b+8+4*j}:{b+8+4*j+3}], v[{b+4*i}:{b+4*i+3}], v[{c}:{c+15}]")
        return m
    def geglu_tile(acc, t, pas, tmp, pk, packed=False, cpair=None):
        j, i = t >> 1, t & 1
        g = acc + 16 * t
        L = []
        if not packed:
            for r in range(8): L.append((f"v_mul_f32 v{tmp+r}, v{g+r}, v{g+r}", 4))
            for r in range(8): L.append((f"v_fma_f32 v{tmp+r}, v{tmp+r}, s68, v23", 4))
            for r in range(8): L.append((f"v_mul_f32 v{tmp+r}, v{tmp+r}, v{g+r}", 4))
            for r in range(8): L.append((f"v_exp_f32 v{tmp+r}, v{tmp+r}", 8))
            for r in range(8): L.append((f"v_mul_f32 v{g+r}, v{g+r}, v{g+8+r}", 4))
            for r in range(8): L.append((f"v_add_f32 v{tmp+r}, 1.0, v{tmp+r}", 4))
            for r in range(8): L.append((f"v_rcp_f32 v{tmp+r}, v{tmp+r}", 8))
            L.append(("s_nop 0", 1))
            for r in range(8): L.append((f"v_mul_f32 v{g+r}, v{g+r}, v{tmp+r}", 4))
        else:
            P2 = lambda x: f"v[{x}:{x+1}]"
            for r in range(0, 8, 2): L.append((f"v_pk_mul_f32 {P2(tmp+r)}, {P2(g+r)}, {P2(g+r)}", 4))
            for r in range(0, 8, 2): L.append((f"v_pk_fma_f32 {P2(tmp+r)}, {P2(tmp+r)}, s[68:69], {P2(cpair)}", 4))
            for r in range(0, 8, 2): L.append((f"v_pk_mul_f32 {P2(tmp+r)}, {P2(tmp+r)}, {P2(g+r)}", 4))
            for r in range(8): L.append((f"v_exp_f32 v{tmp+r}, v{tmp+r}", 8))
            for r in range(0, 8, 2): L.append((f"v_pk_mul_f32 {P2(g+r)}, {P2(g+r)}, {P2(g+8+r)}", 4))
            for r in range(0, 8, 2): L.append((f"v_pk_add_f32 {P2(tmp+r)}, {P2(tmp+r)}, 1.0 op_sel_hi:[1,0]", 4))
            for r in range(8): L.append((f"v_rcp_f32 v{tmp+r}, v{tmp+r}", 8))
            L.append(("s_nop 0", 1))
            for r in range(0, 8, 2): L.append((f"v_pk_mul_f32 {P2(g+r)}, {P2(g+r)}, {P2(tmp+r)}", 4))
        for d in range(4): L.append((f"v_cvt_pk_bf16_f32 v{pk+d}, v{g+2*d}, v{g+2*d+1}", 4))
        so = 36 + 2 * pas + i
        L.append((f"buffer_store_dwordx4 v[{pk}:{pk+3}], v22, s[40:43], s{so} offen offset:{j*1024} {o.hst}", 4))
        return L
    a(f"""
    s_lshl_b32 s56, s54, 1
    s_and_b32 s57, s18, 1
    s_add_u32 s56, s56, s57
    s_mul_i32 s56, s56, 112
    s_lshr_b32 s57, s18, 1
    s_lshl_b32 s57, s57, 3
    s_add_u32 s56, s56, s57
    s_lshl_b32 s56, s56, 10
    v_mov_b32 v4, s67
    v_mov_b32 v5, s67
    """)
    a(f"""
    s_mov_b32 s24, s14
    s_mov_b32 s25, s15
    s_mov_b32 s26, 256
    s_mov_b32 s27, 0x20000
    ; per-lane B-flag offsets: lane = 2j + w2 (j<7): line of producer fc' = 2*((r+j)%7)+kh ; word 8*(mh_p + 2*w2)
    v_min_u32 v2, 13, v1
    v_and_b32 v3, 1, v2                   ; w2
    v_lshrrev_b32 v2, 1, v2               ; j
    v_add_u32 v2, s23, v2
    v_subrev_u32 v24, 7, v2
    v_cmp_le_u32 vcc, 7, v2
    s_nop 1
    v_cndmask_b32 v2, v2, v24, vcc
    v_lshlrev_b32 v2, 1, v2
    s_lshr_b32 s57, s18, 1
    v_add_u32 v2, s57, v2
    v_lshlrev_b32 v2, 7, v2
    v_lshl_add_u32 v2, v3, 4, v2          ; + 16*w2
    s_and_b32 s57, s54, 1
    s_lshl_b32 s57, s57, 3
    v_add_u32 v2, s57, v2                 ; + 8*mh_p
    s_lshr_b32 s32, s54, 1
    s_lshl_b32 s32, s32, 11
    s_add_u32 s32, s32, {FLAG_OFF + 16*16*128}
    s_lshl_b32 s21, s52, 4
    s_add_u32 s21, s21, s53
    s_lshl_b32 s21, s21, 7
    s_lshl_b32 s57, s18, 3
    s_add_u32 s21, s21, s57
    s_add_u32 s21, s21, {FLAG_OFF + 16*16*128}
    v_mov_b32 v3, 0
    """)
    UB = [48, 49, 50, 51, 33, 34, 35]
    for j in range(7):
        a(f"""
    s_cmp_eq_u32 s{RT+j}, 5
    s_cselect_b32 s57, 9, s{RT+j}
    s_cmp_eq_u32 s{RT+j}, 6
    s_cselect_b32 s57, 5, s57
    s_lshl_b32 s{UB[j]}, s57, 14
    s_lshl_b32 s{RT+j}, s{RT+j}, 14
    s_add_u32 s{RT+j}, s{RT+j}, s56
        """)
    ACC2 = 176
    AFS = [96, 104, 240, 248]
    def hreg(n):
        m = n % 28
        return 112 + 4 * m if m < 16 else 48 + 4 * (m - 16)
    def hload(n):
        p, j, v = n // 28, (n % 28) >> 2, n & 3
        b = hreg(n)
        r = []
        if p and v == 0: r.append(f"s_add_u32 s{RT+j}, s{RT+j}, 4096")
        r.append(f"buffer_load_dwordx4 v[{b}:{b+3}], v22, s[40:43], s{RT+j} offen offset:{v*1024} {o.hld}")
        return r

    vops = []
    a("s_waitcnt vmcnt(8)")
    tr("C")
    a("s_barrier")
    tr("C")
    st(1); trk()
    for ins in p1_reads(0): a(ins)
    for ins in p1_reads(1): a(ins)
    for n in range(56):
        s, q = n >> 2, n & 3
        if q == 2:
            w = "s_waitcnt lgkmcnt(0)"
            if s + 1 in (1, o.flagA_bar): w = "s_waitcnt vmcnt(0) lgkmcnt(0)"
            a(w)
            a("s_barrier")
            tr("C")
            if s + 1 in (2, 7): trk()
        else:
            a("s_waitcnt lgkmcnt(6)" if n + 1 < 56 else "s_waitcnt lgkmcnt(0)")
        rd = p1_reads(n + 2) if n + 2 < 56 else []
        mf = p1_mfmas(n)
        for k in range(4):
            a(mf[k])
            lo, hi = ([0, 3, 6, 6], [3, 6, 6, 6]) if q == 1 else ([0, 2, 4, 5], [2, 4, 5, 6])
            for ins in rd[lo[k]:hi[k]]: a(ins)
        if n == 44:
            a("buffer_load_dwordx2 v[40:41], v3, s[24:27], 0 offen sc1")
            vops.append(("N", 0))
        if 50 <= n <= 53:
            for ins in hload(n - 50): a(ins)
            vops.append(("L", n - 50))
        if n == 27:
            a("s_nop 7\ns_nop 7")
            for t in range(4):
                for ins, _ in geglu_tile(ACCA, t, 0, T + 8 * (t & 1), PK + 4 * (t & 1), packed=o.pk, cpair=4): a(ins)
    st(2); tr("D"); trk()
    pN = vops.index(("N", 0))
    a(f"""
    s_waitcnt vmcnt({len(vops) - 1 - pN})
    s_mov_b32 s28, 0
L_c_nonce:
    v_readfirstlane_b32 s30, v40
    v_readfirstlane_b32 s31, v41
    s_add_u32 s28, s28, 1
    s_nop 3
    s_or_b32 s29, s30, s31
    s_cmp_lg_u32 s29, 0
    s_cbranch_scc1 L_c_havenonce
    s_cmp_gt_u32 s28, 0x40000
    s_cbranch_scc1 L_c_havenonce
    buffer_load_dwordx2 v[40:41], v3, s[24:27], 0 offen sc1
    s_waitcnt vmcnt(0)
    s_branch L_c_nonce
L_c_havenonce:
    """)
    a("s_nop 7")
    nextL = 4
    for t in range(4):
        tile = geglu_tile(ACCB, t, 1, T + 8 * (t & 1), PK + 4 * (t & 1), packed=o.pk, cpair=4)
        nins = len(tile)
        nl = o.hl_per_tile[t]
        pos = [int((k + 0.5) * nins / nl) for k in range(nl)] if nl else []
        for idx, (ins, _) in enumerate(tile):
            if idx in pos:
                for li in hload(nextL): a(li)
                vops.append(("L", nextL)); nextL += 1
            a(ins)
            if ins.startswith("buffer_store"): vops.append(("S", t))
    tr("D")
    a("s_barrier")
    st(3); tr("D")
    def unit_sgpr(n):
        p, j = n // 28, (n % 28) >> 2
        if p == 0: return (UB[j], 0)
        if j < 3: return (None, [7, 6, 8][j] * 16384)
        return (UB[j - 3], 0)
    def p2_reads(n):
        v = n & 3
        sg, so = unit_sgpr(n)
        ch = n >> 2
        ab = 18 + 2 * (ch & 1)
        b = AFS[n & 3]
        r = []
        if v == 0:
            for n2 in range(2):
                if sg is None:
                    r.append(f"v_add_u32 v{ab+n2}, {so}, v{16+n2}")
                else:
                    r.append(f"v_add_u32 v{ab+n2}, s{sg}, v{16+n2}")
        for n2 in range(2):
            for ee in range(2):
                r.append(f"ds_read_b64_tr_b16 v[{b+4*n2+2*ee}:{b+4*n2+2*ee+1}], v{ab+n2} offset:{v*2048+ee*1024}")
        return r
    def p2_mfmas(n):
        b = AFS[n & 3]; hb = hreg(n)
        m = []
        for n2 in range(2):
            c = ACC2 + 16 * n2
            src = "0" if n == 0 else f"v[{c}:{c+15}]"
            m.append(f"{MF} v[{c}:{c+15}], v[{b+4*n2}:{b+4*n2+3}], v[{hb}:{hb+3}], {src}")
        return m
    for n in range(3):
        for ins in p2_reads(n): a(ins)
    last_rd = 2
    def ensure(j):
        a(f"""
    s_lshr_b32 s20, s29, {2*j}
    s_and_b32 s20, s20, 3
    s_cmp_eq_u32 s20, 3
    s_cbranch_scc1 L_c_ok{j}
L_c_poll{j}:
    buffer_load_dwordx2 v[40:41], v2, s[40:43], s32 offen sc1
    s_waitcnt vmcnt(0)
    v_cmp_eq_u64 vcc, s[30:31], v[40:41]
    s_add_u32 s28, s28, 1
    s_nop 4
    s_and_b32 s29, vcc_lo, 0x3fff
    s_cmp_gt_u32 s28, 0x80000
    s_cbranch_scc1 L_c_ok{j}
    s_lshr_b32 s20, s29, {2*j}
    s_and_b32 s20, s20, 3
    s_cmp_eq_u32 s20, 3
    s_cbranch_scc0 L_c_poll{j}
L_c_ok{j}:
        """)
    def loadB(j):
        for v in range(4):
            for li in hload(28 + 4 * j + v):
                a(li)
    LA = o.b_look
    flag_done = False
    def issue_hA(k):
        nonlocal nextL
        for _ in range(k):
            if nextL <= 27:
                for li in hload(nextL): a(li)
                vops.append(("L", nextL)); nextL += 1
    issue_hA(o.g_loads)
    for n in range(56):
        lg = 4 * (last_rd - n)
        assert 0 <= lg <= 12
        if n == o.fb_step:
            pS = vops.index(("S", 3))
            a(f"s_waitcnt vmcnt({len(vops) - 1 - pS})")
            tr("D")
            a(f"""
    v_mov_b32 v42, s30
    v_mov_b32 v43, s31
    s_mov_b64 exec, 1
    buffer_store_dwordx2 v[42:43], v3, s[40:43], s21 offen sc1
    s_mov_b64 exec, -1
            """)
            vops.append(("F", 0))
            st(4); tr("D")
        if n < 28:
            if ("L", n) in vops:
                p = vops.index(("L", n))
                a(f"s_waitcnt vmcnt({len(vops) - 1 - p}) lgkmcnt({lg})")
            else:
                a(f"s_waitcnt lgkmcnt({lg})")
        else:
            j, v = (n - 28) >> 2, n & 3
            if v == 0 and j + LA <= 6 and j > 0:
                ensure(j + LA); loadB(j + LA)
            issued_chunks = min(j + LA, 6)
            younger = (3 - v) + 4 * (issued_chunks - j)
            a(f"s_waitcnt vmcnt({younger}) lgkmcnt({lg})")
        if n in (0, 28, 29, 37, 44): tr("D")
        if n == 15: a("s_barrier")
        if n == 37: a("s_barrier")
        if n == 37: tr("D")
        nr = n + 3
        rd = []
        if nr < 56:
            rd = p2_reads(nr); last_rd = nr
        mf = p2_mfmas(n)
        a(mf[0])
        for ins in rd[:-2]: a(ins)
        a(mf[1])
        for ins in rd[-2:]: a(ins)
        if n < 28: issue_hA(o.hl_rate)
        if n == o.b_poll_step:
            assert nextL == 28
            a("buffer_load_dwordx2 v[40:41], v2, s[40:43], s32 offen sc1")
            vops.append(("P", 0))
        if n == 27:
            tr("D")
            a(f"""
    s_waitcnt vmcnt(0)
    v_cmp_eq_u64 vcc, s[30:31], v[40:41]
    s_mov_b32 s28, 0
    s_nop 4
    s_and_b32 s29, vcc_lo, 0x3fff
            """)
            for j in range(LA + 1):
                ensure(j); loadB(j)
            st(5); tr("D"); trk()
    st(6); tr("D"); trk()
    a(f"""
    s_lshl_b32 s56, s18, 12
    s_add_u32 s56, s56, s{UB[4]}
    v_add_u32 v8, s56, v22
    s_xor_b32 s57, s18, 2
    s_lshl_b32 s57, s57, 12
    s_add_u32 s57, s57, s{UB[4]}
    v_add_u32 v9, s57, v22
    v_and_b32 v10, 31, v1
    s_lshl_b32 s56, s54, 6
    s_and_b32 s57, s18, 1
    s_lshl_b32 s57, s57, 5
    s_add_u32 s56, s56, s57
    v_add_u32 v10, s56, v10
    v_mul_u32_u24 v10, 896, v10
    v_lshrrev_b32 v11, 5, v1
    v_lshl_add_u32 v10, v11, 4, v10
    s_lshl_b32 s56, s55, 7
    s_lshr_b32 s57, s18, 1
    s_lshl_b32 s57, s57, 6
    s_add_u32 s56, s56, s57
    v_add_u32 v10, s56, v10
    s_nop 7
    """)
    for i in range(4):
        c = ACC2 + 16 + 4 * i
        a(f"ds_write_b128 v8, v[{c}:{c+3}] offset:{i*1024}")
    a("s_waitcnt lgkmcnt(0)\ns_barrier")
    for i in range(4):
        a(f"ds_read_b128 v[{48+4*i}:{51+4*i}], v9 offset:{i*1024}")
    for i in range(4):
        a(f"s_waitcnt lgkmcnt({3-i})")
        for k in range(4):
            a(f"v_add_f32 v{ACC2+4*i+k}, v{ACC2+4*i+k}, v{48+4*i+k}")
        a(f"v_cvt_pk_bf16_f32 v{64+2*i}, v{ACC2+4*i}, v{ACC2+4*i+1}")
        a(f"v_cvt_pk_bf16_f32 v{65+2*i}, v{ACC2+4*i+2}, v{ACC2+4*i+3}")
        if i & 1:
            b = 64 + 4 * (i >> 1)
            a("s_nop 1")
            a(f"v_permlane32_swap_b32 v{b}, v{b+2}")
            a(f"v_permlane32_swap_b32 v{b+1}, v{b+3}")
            a(f"buffer_store_dwordx4 v[{b}:{b+3}], v10, s[44:47], 0 offen offset:{(i>>1)*32} {o.outsc}")
    if o.delay_end:
        a(f"s_mov_b32 s56, {o.delay_end // 20}\nL_dly:\ns_nop 15\ns_sub_u32 s56, s56, 1\ns_cmp_lg_u32 s56, 0\ns_cbranch_scc1 L_dly")
    if o.trace in ("C", "S", "D", "K", "U"):
        trk()
        tr("D")
        a("s_cmp_lg_u32 s18, 0\ns_cbranch_scc1 L_end")
        tr_store(o.trace)
    if o.stamps:
        a("s_waitcnt vmcnt(0)")
        st(7)
        a("s_cmp_lg_u32 s18, 0\ns_cbranch_scc1 L_end")
        if o.dbgst:
            a("s_cmp_lg_u32 s2, 100\ns_cbranch_scc1 L_end\ns_waitcnt lgkmcnt(0)")
            a("s_mov_b32 s48, s14\ns_mov_b32 s49, s15\ns_mov_b32 s50, 256\ns_mov_b32 s51, 0x20000\nv_mov_b32 v0, 0\ns_mov_b64 exec, 1")
            a("v_mov_b32 v2, s80\nbuffer_store_dword v2, v0, s[48:51], 0 offen offset:16")
            for k in range(1, 8):
                a(f"s_sub_u32 s56, s{80+2*k}, s80\nv_mov_b32 v2, s56\nbuffer_store_dword v2, v0, s[48:51], 0 offen offset:{16+4*k}\ns_nop 1")
        else:
            a(store_stamps(8, 16, 17, 2, vt=0, tmp=72))
    a("s_endpgm")

    a("L_loader:")
    a(f"""
    s_setprio 3
    v_lshrrev_b32 v24, 3, v1
    v_mul_u32_u24 v25, 3584, v24
    v_and_b32 v26, 7, v1
    v_bfe_u32 v27, v1, 4, 1
    v_lshlrev_b32 v28, 1, v27
    v_xor_b32 v28, v26, v28               ; c gate
    v_lshl_add_u32 v2, v28, 4, v25
    v_xor_b32 v28, 4, v28
    v_lshl_add_u32 v6, v28, 4, v25
    s_lshl_b32 s56, s53, 8
    v_add_u32 v2, s56, v2
    v_add_u32 v6, s56, v6
    """)
    for k in range(1, 4):
        a(f"v_add_u32 v{2+k}, {k*(8*3584-1024)}, v2\nv_add_u32 v{6+k}, {k*(8*3584-1024)}, v6")
    a(f"""
    v_mul_u32_u24 v25, 896, v24
    v_lshlrev_b32 v28, 2, v27
    v_xor_b32 v28, v26, v28
    v_lshl_add_u32 v10, v28, 4, v25
    s_lshl_b32 s56, s55, 7
    v_add_u32 v10, s56, v10
    """)
    for k in range(1, 4):
        a(f"v_add_u32 v{10+k}, {k*(8*896-1024)}, v10")
    a(f"""
    v_lshrrev_b32 v27, 4, v1
    v_xor_b32 v28, v26, v27
    v_lshl_add_u32 v14, v28, 4, v25
    v_xor_b32 v28, 4, v28
    v_lshl_add_u32 v15, v28, 4, v25
    s_mul_i32 s56, s52, {128*896}
    v_add_u32 v14, s56, v14
    s_add_u32 s56, s56, {8*896-1024}
    v_add_u32 v15, s56, v15
    v_add_u32 v16, {2*(8*896-1024)}, v14
    v_add_u32 v17, {2*(8*896-1024)}, v15
    """)
    LT = 70 if o.trace == "L" else 80
    XT, WT, DT = 20, 44, 36+16
    for j in range(4):
        a(f"""
    s_cmp_eq_u32 s{RT+j}, 5
    s_cselect_b32 s56, 9, s{RT+j}
    s_cmp_eq_u32 s{RT+j}, 6
    s_cselect_b32 s56, 5, s56
    s_lshl_b32 s{72+j}, s56, 14
        """)
    for j in range(7):
        a(f"s_lshl_b32 s{33+j}, s{RT+j}, 7")
        a(f"s_mul_i32 s{44+j}, s{RT+j}, {64*3584}")
        a(f"s_mul_i32 s{RT+j}, s{RT+j}, {256*896}")
    a("s_waitcnt lgkmcnt(0)")
    srd(a, 24, 4, 2048 * 896)
    srd(a, 28, 6, 448 * 3584)
    a(f"""
    s_mov_b32 s56, s8
    s_mov_b32 s57, s9
    s_mov_b32 s58, {448*3584}
    s_mov_b32 s59, 0x20000
    s_mov_b32 s68, s10
    s_mov_b32 s69, s11
    """)
    a(f"""
    s_mov_b32 s20, s10
    s_mov_b32 s21, s11
    s_mov_b32 s22, {1792*896}
    s_mov_b32 s23, 0x20000
    """)
    order = []
    def xdmaL(s):
        for g in range(4):
            a(f"s_mov_b32 m0, {s*16384 + g*4096}")
            a(f"s_add_u32 s67, s{33+s}, {g*32*896}")
            for k in range(4):
                a(f"buffer_load_dwordx4 v{14+k}, s[24:27], s67 offen offset:{k*1024} lds")
                order.append(("W", s))
    def wdma(s):
        slot = s % 3; pas = s // 7; ss = s % 7
        for mat in range(2):
            sr = "s[28:31]" if mat == 0 else "s[56:59]"
            for g in range(2):
                a(f"s_mov_b32 m0, {114688 + slot*16384 + mat*8192 + g*4096}")
                a(f"s_add_u32 s67, s{44+ss}, {32*g*3584 + pas*128}")
                for k in range(4):
                    a(f"buffer_load_dwordx4 v{2+4*mat+k}, {sr}, s67 offen offset:{k*1024} lds")
                    order.append(("W", s))
    def ddma(p, j, unit, phys=False, dyn_unit=None):
        for g in range(4):
            if dyn_unit is None:
                a(f"s_mov_b32 m0, {unit*16384 + g*4096}")
            else:
                a(f"s_add_u32 m0, s{dyn_unit}, {g*4096}")
            if phys:
                a(f"s_mov_b32 s67, {(256*j + 128*(g>>1) + 64*p + 32*(g&1))*896}")
            else:
                a(f"s_add_u32 s67, s{RT+j}, {(128*(g>>1) + 64*p + 32*(g&1))*896}")
            for k in range(4):
                a(f"buffer_load_dwordx4 v{10+k}, s[20:23], s67 offen offset:{k*1024} lds")
                order.append(("D", p, j))
    def wait_tag(tag):
        last = max(i for i, t in enumerate(order) if t == tag)
        n = len(order) - 1 - last
        a(f"s_waitcnt vmcnt({min(n, 63)})")
    def room(k):
        a(f"s_waitcnt vmcnt({63-k})")
    tr("L")
    a("s_barrier")
    nextA = 0
    for i in range(15):
        if 2 <= i <= 13: wait_tag(("W", i))
        tr("L")
        a("s_barrier")
        if i + 2 <= 6:
            room(16); xdmaL(i + 2)
        if i + 2 <= 13:
            room(16); wdma(i + 2)
        if 8 <= i <= 12:
            room(16); ddma(0, i - 8, i - 8, phys=True)
        if i == 12:
            room(16); ddma(0, 5, 9, phys=True)
        if i == 13:
            room(16); ddma(0, 6, 5, phys=True)
            room(16); ddma(1, 0, 7)
        if i == 14:
            room(16); ddma(1, 1, 6)
            room(16); ddma(1, 2, 8)
    a("s_waitcnt vmcnt(0)")
    a("LST0")
    a("s_barrier")
    a("s_barrier")
    a("LST1")
    for j in (3, 4, 5, 6):
        room(16); ddma(1, j, None, dyn_unit=72 + j - 3)
    a("LST2")
    a("s_waitcnt vmcnt(0)")
    a("LST4")
    a("s_barrier")
    a("LSTORE")
    tr_store("L", tmp=24)
    a("s_endpgm")

    a("L_poller:")
    a(f"""
    s_setprio 3
    s_mul_i32 s56, s21, 112
    v_lshrrev_b32 v4, 3, v1
    v_add_u32 v4, s56, v4
    v_mul_u32_u24 v4, 3584, v4
    v_and_b32 v5, 7, v1
    v_lshl_add_u32 v4, v5, 4, v4
    s_lshl_b32 s56, s53, 8
    s_add_u32 s56, s56, 128
    v_add_u32 v4, s56, v4
    v_lshrrev_b32 v16, 3, v1
    s_and_b32 s56, s21, 1
    s_lshl_b32 s56, s56, 5
    v_add_u32 v16, s56, v16
    v_mul_u32_u24 v16, 3584, v16
    v_lshl_add_u32 v16, v5, 4, v16
    s_lshl_b32 s56, s53, 8
    v_add_u32 v16, s56, v16
    s_add_u32 s60, s22, 4
    s_cmp_ge_u32 s60, 7
    s_cselect_b32 s56, 7, 0
    s_sub_u32 s60, s60, s56
    s_add_u32 s61, s60, 1
    s_cmp_ge_u32 s61, 7
    s_cselect_b32 s56, 7, 0
    s_sub_u32 s61, s61, s56
    s_add_u32 s62, s61, 1
    s_cmp_ge_u32 s62, 7
    s_cselect_b32 s56, 7, 0
    s_sub_u32 s62, s62, s56
    s_mul_i32 s60, s60, {64*3584}
    s_mul_i32 s61, s61, {64*3584}
    s_mul_i32 s62, s62, {64*3584}
    v_mov_b32 v2, 0
    v_lshlrev_b32 v13, 20, v1
    s_waitcnt lgkmcnt(0)
    """)
    srd(a, 28, 6, 448 * 3584)
    srd(a, 32, 8, 448 * 3584)
    srd(a, 40, 16, WS_SIZE)
    srd(a, 44, 12, 2048 * 896)
    srd(a, 48, 14, 256)
    a(f"""
    s_lshr_b32 s56, s21, 1
    s_cmp_eq_u32 s56, 0
    s_cselect_b32 s64, s6, s8
    s_cselect_b32 s65, s7, s9
    s_mov_b32 s66, {448*3584}
    s_mov_b32 s67, 0x20000
    """)
    def wa_rest(sreg, base):
        for i in range(4):
            a(f"s_add_u32 s56, s{sreg}, {i*8*3584}")
            a(f"buffer_load_dwordx4 v[{base+4*i}:{base+4*i+3}], v16, s[64:67], s56 offen")
    if o.prefetch and o.rmul == 1:
        wa_rest(60, 100)
    a(f"""
    s_cmp_lg_u32 s2, 0
    s_cbranch_scc1 L_p_nonce
    s_memrealtime s[70:71]
    s_waitcnt lgkmcnt(0)
    v_mov_b32 v6, s70
    v_mov_b32 v7, s71
    s_mov_b64 exec, 1
    buffer_store_dwordx2 v[6:7], v2, s[48:51], 0 offen sc1
    s_mov_b64 exec, -1
L_p_nonce:
    s_barrier                              ; T0
    """)
    if o.prefetch and o.rmul == 1:
        wa_rest(61, 116); wa_rest(62, 132)
    if o.prefetch:
        for k in range(14):
            a(f"s_mov_b32 s56, {k*8*3584}")
            a(f"buffer_load_dwordx4 v[{20+8*(k%8)}:{23+8*(k%8)}], v4, s[28:31], s56 offen")
            a(f"buffer_load_dwordx4 v[{24+8*(k%8)}:{27+8*(k%8)}], v4, s[32:35], s56 offen")
    a(f"""
    s_mov_b64 exec, 0x1ff
    buffer_load_dword v14, v13, s[40:43], 0 offen
    s_mov_b64 exec, 3
    buffer_load_dword v15, v13, s[44:47], 0 offen
    s_mov_b64 exec, -1
    buffer_load_dwordx2 v[6:7], v2, s[48:51], 0 offen sc1
    s_lshl_b32 s72, s52, 4
    s_add_u32 s72, s72, s53
    s_lshl_b32 s72, s72, 7
    s_add_u32 s72, s72, {FLAG_OFF}
    s_add_u32 s73, s72, {16*16*128}
    s_lshr_b32 s74, s54, 1
    s_lshl_b32 s74, s74, 11
    s_add_u32 s74, s74, {FLAG_OFF}
    s_add_u32 s75, s74, {16*16*128}
    v_min_u32 v8, 13, v1
    v_lshlrev_b32 v8, 7, v8
    """)
    for i in range(9):
        a("s_barrier")
    a(f"""
    s_mov_b32 s76, 0
L_p_chknonce:
    s_waitcnt vmcnt(0)
    v_readfirstlane_b32 s70, v6
    v_readfirstlane_b32 s71, v7
    s_add_u32 s76, s76, 1
    s_nop 3
    s_or_b32 s56, s70, s71
    s_cmp_lg_u32 s56, 0
    s_cbranch_scc1 L_p_havenonce
    s_cmp_gt_u32 s76, 0x40000
    s_cbranch_scc1 L_p_havenonce
    buffer_load_dwordx2 v[6:7], v2, s[48:51], 0 offen sc1
    s_branch L_p_chknonce
L_p_havenonce:
    s_barrier                              ; R_9
    PST0
    s_mov_b64 exec, 1
    buffer_store_dwordx2 v[6:7], v2, s[40:43], s72 offen sc1     ; flag A
    s_mov_b64 exec, -1
    s_barrier                              ; R_10
    s_barrier                              ; R_11
    buffer_load_dwordx2 v[10:11], v8, s[40:43], s74 offen sc1
    s_barrier                              ; R_12
    s_mov_b32 s76, 0
L_p_pollA:
    s_waitcnt vmcnt(0)
    v_cmp_ne_u64 vcc, s[70:71], v[10:11]
    s_add_u32 s76, s76, 1
    s_nop 4
    s_cbranch_vccz L_p_gotA
    s_cmp_gt_u32 s76, 0x40000
    s_cbranch_scc1 L_p_gotA
    buffer_load_dwordx2 v[10:11], v8, s[40:43], s74 offen sc1
    s_branch L_p_pollA
L_p_gotA:
    PST1
    s_barrier                              ; R_13
    s_barrier                              ; R_14
    s_barrier                              ; G
    PST4
    PSTORE
    s_endpgm
L_helper:
    s_sub_u32 s56, s2, 224
    s_lshr_b32 s56, s56, 3
    s_mul_i32 s56, s56, 6
    s_add_u32 s56, s56, s18
    v_lshlrev_b32 v2, 4, v1
CODEPF
    s_waitcnt lgkmcnt(0)
    s_mov_b32 s36, s10
    s_mov_b32 s37, s11
    s_mov_b32 s38, {1792*896}
    s_mov_b32 s39, 0x20000
    s_mul_i32 s62, s19, 7
    s_lshr_b32 s62, s62, 2
HROT
HDELAY
L_h_loop:
    ; KB index k=s56 in [0,1568): part = k>=784 ; kk = k - 784*part ; block b = kk/56, off = kk%56 : addr = (128b + 64*part)*896 + off*1024
    s_cmp_ge_u32 s56, 784
    s_cselect_b32 s60, 784, 0
    s_cselect_b32 s61, {64*896}, 0
    s_sub_u32 s60, s56, s60
    s_mul_i32 s58, s60, 1171
    s_lshr_b32 s58, s58, 16               ; kk/56
    s_mul_i32 s59, s58, 56
    s_sub_u32 s59, s60, s59
    s_lshl_b32 s59, s59, 10
    s_add_u32 s58, s58, s62
    s_cmp_ge_u32 s58, 14
    s_cselect_b32 s63, 14, 0
    s_sub_u32 s58, s58, s63
    s_mul_i32 s58, s58, {128*896}
    s_add_u32 s58, s58, s59
    s_add_u32 s58, s58, s61
    buffer_load_dwordx4 v[4:7], v2, s[36:39], s58 offen
    s_waitcnt vmcnt(40)
    s_add_u32 s56, s56, 24
    s_cmp_lt_u32 s56, 1568
    s_cbranch_scc1 L_h_loop
L_end:
    s_endpgm
    """)
    a(rodata_begin())
    a(descriptor(KN, vgpr=256, sgpr=102))
    txt = a.text()
    codepf = """    ; prefetch this kernel's code into the XCD's L2: wave index hx*6+w loads KB number k, k+24
    s_getpc_b64 s[40:41]
L_pc_here:
    s_add_u32 s40, s40, KSTART-L_pc_here
    s_addc_u32 s41, s41, -1
    s_lshl_b32 s57, s56, 10
    v_add_u32 v3, s57, v2
    v_min_u32 v3, KEND-KSTART-16, v3
    global_load_dwordx4 v[8:11], v3, s[40:41]
    v_add_u32 v3, 24576, v3
    v_min_u32 v3, KEND-KSTART-16, v3
    global_load_dwordx4 v[12:15], v3, s[40:41]
"""
    txt = txt.replace("CODEPF\n", codepf if o.codepf else "")
    txt = txt.replace(KN + ":\n", KN + ":\nKSTART:\n", 1)
    txt = txt.replace("L_end:\n    s_endpgm\n", "L_end:\n    s_endpgm\nKEND:\n")
    txt = txt.replace("    TRU\n", "    s_memrealtime s[72:73]\n" if o.trace == "U" else "")
    txt = txt.replace("HROT\n", "" if o.hrot else "    s_mov_b32 s62, 0\n")
    txt = txt.replace("HDELAY\n", "".join("    s_sleep 16\n" for _ in range(o.hdelay)))
    for k in range(5):
        txt = txt.replace(f"    PST{k}\n", f"    s_memrealtime s[{80+2*k}:{81+2*k}]\n" if o.stamps else "")
    txt = txt.replace("    PSTORE\n", ("s_add_u32 s2, s2, 256\n" + store_stamps(5, 16, 17, 2, vt=20, tmp=56)) if (o.stamps and not o.dbgst) else "")
    for k in range(6):
        txt = txt.replace(f"LST{k}\n", f"s_memrealtime s[{80+2*k}:{81+2*k}]\n" if o.stamps else "")
    txt = txt.replace("LSTORE\n", ("s_add_u32 s2, s2, 512\n" + store_stamps(6, 16, 17, 2, vt=20, tmp=56)) if (o.stamps and not o.dbgst) else "")
    open(name, "w").write(txt)

if __name__ == "__main__":
    o = Opt(); gen("v16.s", o)
    o = Opt(); o.stamps = True; gen("v16s.s", o)
    o = Opt(); o.codepf = False; gen("v16_np.s", o)
    o = Opt(); o.codepf = False; o.stamps = True; gen("v16s_np.s", o)
    o = Opt(); o.b_look = 3; gen("v16_l3.s", o)
    o = Opt(); o.hl_rate = 2; o.g_loads = 6; gen("v16_r2.s", o)
    o = Opt(); o.b_poll_step = 25; gen("v16_p25.s", o)
    for t in "CD":
        o = Opt(); o.trace = t; gen(f"v16t{t}.s", o)
```

```python
import sys, struct
from asmlib import *

def f2u(x):
    return struct.unpack("<I", struct.pack("<f", x))[0]

C0 = -2.0 * 1.4426950408889634 * 0.7978845608028654
C1 = C0 * 0.044715
FLAG_OFF = 8 << 20
WS_SIZE = 9 << 20
MF = "v_mfma_f32_32x32x16_bf16"

def srd(a, d, lo, size):
    a(f"""
    s_mov_b32 s{d}, s{lo}
    s_mov_b32 s{d+1}, s{lo+1}
    s_mov_b32 s{d+2}, {size}
    s_mov_b32 s{d+3}, 0x20000
    """)

class Opt:
    stamps = False
    prefetch = True
    geglu_steps = 26
    abl = ""
    trace = ""
    rot = True
    wd_start = 11
    pk = True
    helpers = True
    wbx4 = True
    extraH = True
    flagA_bar = 9
    hrot = True
    hst = 'sc1'
    hld = 'sc1'
    hl_per_tile = (0, 0, 0, 0)
    pre_sb_last = 19
    hl_rate = 3
    g_loads = 4
    two_l = True
    p_order = 0
    codepf = True
    fb_step = 4
    rmul = 2
    hdelay = 0
    delay_end = 0
    b_look = 2
    b_poll_step = 22
    outsc = 'sc1'
    dbgst = False
    sb_step = 15

def gen(name, o):
    a = Asm()
    NW = 7 if o.two_l else 6
    a(header([(KN, 256 if o.helpers else 224, NW * 64, 163840)]))
    a(kernel_begin(KN))
    st = (lambda k: a(f"s_memrealtime s[{80+2*k}:{81+2*k}]")) if o.stamps else (lambda k: None)
    cnt = {"C": 0, "L": 0, "S": 0, "P": 0, "D": 0, "K": 0, "U": 0}
    def tru():
        if o.trace == "U" and cnt["U"] < 16:
            k = cnt["U"]; cnt["U"] += 1
            if k == 1: k = cnt["U"]; cnt["U"] += 1
            a(f"s_memrealtime s[{70+2*k}:{71+2*k}]")
    def trk():
        if o.trace == "K" and cnt["K"] < 16:
            k = cnt["K"]; cnt["K"] += 2
            a(f"s_memtime s[{70+2*k}:{71+2*k}]\ns_memrealtime s[{72+2*k}:{73+2*k}]")
    def tr(who):
        if o.trace == who and cnt[who] < 16:
            k = cnt[who]; cnt[who] += 1
            a(f"s_memtime s[{70+2*k}:{71+2*k}]")
    def tr_store(who, vt=0, tmp=24):
        if o.trace == who:
            a("s_waitcnt vmcnt(0) lgkmcnt(0)")
            for k in range(cnt[who], 16):
                a(f"s_mov_b32 s{70+2*k}, 0\ns_mov_b32 s{71+2*k}, 0")
            a(store_stamps(16, 16, 17, 2, base=70, nslot=16, vt=vt, tmp=tmp))
    a(f"""
    s_cmp_ge_u32 s2, {256 if o.helpers else 224}
    s_cbranch_scc1 L_end
    s_load_dwordx4 s[4:7], s[0:1], 0      ; x, wg
    s_load_dwordx4 s[8:11], s[0:1], 16
    s_load_dwordx4 s[12:15], s[0:1], 32
    s_load_dwordx2 s[16:17], s[0:1], 48   ; ws
    """)
    st(0); trk(); tru()
    a(f"""
    v_and_b32 v1, 63, v0                  ; lane
    v_lshrrev_b32 v2, 6, v0               ; wave
    s_and_b32 s19, s2, 7                  ; xcd
    v_readfirstlane_b32 s18, v2
    s_lshr_b32 s20, s2, 3                 ; within 0..27
    s_mul_i32 s21, s20, 37
    s_lshr_b32 s21, s21, 8                ; l4 = within/7  (0..3)
    s_mul_i32 s22, s21, 7
    s_sub_u32 s22, s20, s22               ; l7 = within%7  (0..6)
    s_and_b32 s52, s19, 3
    s_lshl_b32 s52, s52, 2
    s_add_u32 s52, s52, s21
    s_lshr_b32 s53, s19, 2
    s_mul_i32 s53, s53, 7
    s_add_u32 s53, s53, s22
    s_lshl_b32 s54, s19, 2
    s_add_u32 s54, s54, s21
    s_mov_b32 s55, s22
    s_mul_i32 s23, s21, {o.rmul}
    s_add_u32 s23, s23, s22
    s_cmp_ge_u32 s23, 7
    s_cselect_b32 s56, 7, 0
    s_sub_u32 s23, s23, s56
    """)
    if not o.rot: a("s_mov_b32 s23, 0")
    RT = 60
    for j in range(7):
        a(f"""
    s_add_u32 s{RT+j}, s23, {j}
    s_cmp_ge_u32 s{RT+j}, 7
    s_cselect_b32 s56, 7, 0
    s_sub_u32 s{RT+j}, s{RT+j}, s56
        """)
    a(f"""
    s_cmp_ge_u32 s2, 224
    s_cbranch_scc1 L_helper
    s_cmp_eq_u32 s18, 4
    s_cbranch_scc1 L_loader
    s_cmp_eq_u32 s18, 6
    s_cbranch_scc1 L_loader
    s_cmp_eq_u32 s18, 5
    s_cbranch_scc1 L_poller
    """)
    XF = 8; WB = 6; DB = 16; T = 24; PK = 40; FR = 48; ACCA = 112; ACCB = 176
    a(f"""
    v_lshrrev_b32 v24, 3, v1
    v_mul_u32_u24 v25, 896, v24
    v_and_b32 v26, 7, v1
    v_lshrrev_b32 v27, 4, v1
    v_xor_b32 v28, v26, v27
    v_lshl_add_u32 v2, v28, 4, v25
    v_xor_b32 v28, 4, v28
    v_lshl_add_u32 v3, v28, 4, v25
    s_mul_i32 s56, s52, {128*896}
    s_mul_i32 s57, s18, {32*896}
    s_add_u32 s56, s56, s57
    v_add_u32 v2, s56, v2
    s_add_u32 s56, s56, {8*896-1024}
    v_add_u32 v3, s56, v3
    v_add_u32 v4, {2*(8*896-1024)}, v2
    v_add_u32 v5, {2*(8*896-1024)}, v3
    v_mul_u32_u24 v25, 3584, v24
    v_bfe_u32 v27, v1, 4, 1
    v_lshlrev_b32 v28, 1, v27
    v_xor_b32 v28, v26, v28
    s_lshr_b32 s56, s18, 1
    s_lshl_b32 s57, s56, 2
    v_xor_b32 v28, s57, v28               ; ^ (mat<<2)
    v_lshl_add_u32 v48, v28, 4, v25
    s_lshl_b32 s57, s53, 8
    s_and_b32 s59, s18, 1
    s_mul_i32 s59, s59, {32*3584}
    s_add_u32 s57, s57, s59
    v_add_u32 v48, s57, v48
    v_add_u32 v49, {8*3584-1024}, v48
    v_add_u32 v50, {2*(8*3584-1024)}, v48
    v_add_u32 v51, {3*(8*3584-1024)}, v48
    s_lshl_b32 s57, s56, 13
    s_and_b32 s59, s18, 1
    s_lshl_b32 s59, s59, 12
    s_add_u32 s32, s57, s59
    s_add_u32 s32, s32, 114688
    s_lshl_b32 s58, s18, 12               ; c*4096
    s_waitcnt lgkmcnt(0)
    TRU
    s_cmp_eq_u32 s56, 0
    s_cselect_b32 s28, s6, s8
    s_cselect_b32 s29, s7, s9
    s_mov_b32 s30, {448*3584}
    s_mov_b32 s31, 0x20000
    """)
    srd(a, 24, 4, 2048 * 896)
    def xdma(s):
        a(f"""
    s_add_u32 s57, s58, {s*16384}
    s_mov_b32 m0, s57
    s_lshl_b32 s59, s{RT+s}, 7
    buffer_load_dwordx4 v2, s[24:27], s59 offen lds
    buffer_load_dwordx4 v3, s[24:27], s59 offen offset:1024 lds
    buffer_load_dwordx4 v4, s[24:27], s59 offen offset:2048 lds
    buffer_load_dwordx4 v5, s[24:27], s59 offen offset:3072 lds
        """)
    def wq(s):
        a(f"""
    s_add_u32 s57, s32, {s*16384}
    s_mov_b32 m0, s57
    s_mul_i32 s59, s{RT+s}, {64*3584}
    buffer_load_dwordx4 v48, s[28:31], s59 offen lds
    buffer_load_dwordx4 v49, s[28:31], s59 offen offset:1024 lds
    buffer_load_dwordx4 v50, s[28:31], s59 offen offset:2048 lds
    buffer_load_dwordx4 v51, s[28:31], s59 offen offset:3072 lds
        """)
    tr("S")
    if o.p_order == 1:
        xdma(0); wq(0)
        a("s_barrier")
        a("s_barrier")
        xdma(1); wq(1)
    else:
        xdma(0); wq(0); xdma(1); wq(1)
    tr("S"); tru()
    a("s_barrier")
    tr("S"); tru()
    if o.trace == "U":
        for n in (12, 8, 4, 0):
            a(f"s_waitcnt vmcnt({n})"); tru()
    if o.trace == "S":
        for n in (12, 8, 4, 0):
            a(f"s_waitcnt vmcnt({n})"); tr("S")
    srd(a, 40, 16, WS_SIZE)
    srd(a, 44, 12, 2048 * 896)
    a(f"""
    ; W A-frag bases
    v_lshrrev_b32 v24, 5, v1              ; h
    v_bfe_u32 v25, v1, 4, 1               ; mat / grp
    v_bfe_u32 v26, v1, 2, 2               ; rr
    v_and_b32 v27, 3, v1                  ; cc
    v_lshl_add_u32 v28, v24, 3, v26       ; 8h+rr
    v_lshlrev_b32 v28, 7, v28
    v_lshl_add_u32 v28, v25, 13, v28
    v_lshl_add_u32 v28, v27, 3, v28
    v_add_u32 v28, 114688, v28
    v_bfe_u32 v29, v1, 3, 1
    v_lshl_add_u32 v29, v25, 1, v29       ; g
    s_lshr_b32 s56, s18, 1
    s_lshl_b32 s56, s56, 1                ; 2fh
    v_xor_b32 v30, s56, v29
    v_lshl_add_u32 v6, v30, 5, v28
    v_xor_b32 v7, 32, v6
    ; x frag bases
    v_and_b32 v26, 31, v1
    v_bfe_u32 v27, v1, 1, 3
    v_xor_b32 v27, v27, v24
    v_lshlrev_b32 v27, 4, v27
    v_lshl_add_u32 v27, v26, 7, v27
    s_and_b32 s56, s18, 1
    s_lshl_b32 s56, s56, 13
    v_add_u32 v8, s56, v27
    v_xor_b32 v9, 32, v8
    v_xor_b32 v10, 64, v8
    v_xor_b32 v11, 96, v8
    v_add_u32 v12, 0x10000, v8
    v_add_u32 v13, 0x10000, v9
    v_add_u32 v14, 0x10000, v10
    v_add_u32 v15, 0x10000, v11
    ; Wd A-frag bases: row = 64kh + 4h + rr ; granule = (grp ^ 2b) ^ (2*kh) for acc0 (n2=kh)
    v_bfe_u32 v26, v1, 2, 2
    v_lshl_add_u32 v26, v24, 2, v26       ; 4h+rr
    s_lshr_b32 s56, s18, 1                ; kh
    s_lshl_b32 s57, s56, 6
    v_add_u32 v26, s57, v26
    v_lshlrev_b32 v26, 7, v26
    v_bfe_u32 v27, v1, 3, 1
    v_lshlrev_b32 v27, 1, v27
    v_xor_b32 v27, v27, v25
    s_lshl_b32 s57, s56, 1
    v_xor_b32 v27, s57, v27
    v_lshl_add_u32 v26, v27, 5, v26
    v_and_b32 v27, 3, v1
    v_lshl_add_u32 v16, v27, 3, v26
    v_xor_b32 v17, 64, v16
    v_lshlrev_b32 v22, 4, v1
    s_mov_b32 s70, {f2u(C0)}
    s_mov_b32 s68, {f2u(C1)}
    s_mov_b32 s69, {f2u(C1)}
    v_mov_b32 v23, s70
    v_mov_b32 v52, s70
    v_mov_b32 v53, s70
    ; h store soffsets: ((mt*4 + 2mh)*112 + fc*8 + 2fh)*1024 ; +i*112K, +pass*4096, +j*1024
    s_and_b32 s56, s18, 1
    s_lshl_b32 s56, s56, 1
    s_lshl_b32 s57, s52, 2
    s_add_u32 s56, s56, s57
    s_mul_i32 s56, s56, 112
    s_lshl_b32 s57, s53, 3
    s_add_u32 s56, s56, s57
    s_lshr_b32 s57, s18, 1
    s_lshl_b32 s57, s57, 1
    s_add_u32 s56, s56, s57
    s_lshl_b32 s36, s56, 10               ; pass A, i=0
    s_add_u32 s37, s36, {112*1024}        ; i=1
    s_add_u32 s38, s36, 4096              ; pass B
    s_add_u32 s39, s37, 4096
    """.replace("s_mov_b32 s70,", "s_mov_b32 s67,").replace("v23, s70", "v23, s67").replace("v172, s70", "v174, s67").replace("v173, s70", "v175, s67"))
    for i in range(128):
        a(f"v_mov_b32 v{ACCA+i}, 0")

    def p1_reads(n):
        s, q = n >> 2, n & 3
        b = FR + 16 * (n & 3)
        unit = s % 7
        xb = XF + q + (4 if unit >= 4 else 0)
        xo = (unit & 3) * 16384
        slot = s % 3
        r = []
        for i in range(2):
            r.append(f"ds_read_b128 v[{b+4*i}:{b+4*i+3}], v{xb} offset:{xo+i*4096}")
        for j in range(2):
            for e in range(2):
                r.append(f"ds_read_b64_tr_b16 v[{b+8+4*j+2*e}:{b+8+4*j+2*e+1}], v{WB+j} offset:{slot*16384+q*2048+e*512}")
        return [r[0], r[2], r[3], r[1], r[4], r[5]]
    def p1_mfmas(n):
        b = FR + 16 * (n & 3)
        acc = ACCA if n < 28 else ACCB
        m = []
        for j in range(2):
            for i in range(2):
                c = acc + 16 * (2 * j + i)
                m.append(f"{MF} v[{c}:{c+15}], v[{b+8+4*j}:{b+8+4*j+3}], v[{b+4*i}:{b+4*i+3}], v[{c}:{c+15}]")
        return m
    def geglu_tile(acc, t, pas, tmp, pk, packed=False, cpair=None):
        j, i = t >> 1, t & 1
        g = acc + 16 * t
        L = []
        if not packed:
            for r in range(8): L.append((f"v_mul_f32 v{tmp+r}, v{g+r}, v{g+r}", 4))
            for r in range(8): L.append((f"v_fma_f32 v{tmp+r}, v{tmp+r}, s68, v23", 4))
            for r in range(8): L.append((f"v_mul_f32 v{tmp+r}, v{tmp+r}, v{g+r}", 4))
            for r in range(8): L.append((f"v_exp_f32 v{tmp+r}, v{tmp+r}", 8))
            for r in range(8): L.append((f"v_mul_f32 v{g+r}, v{g+r}, v{g+8+r}", 4))
            for r in range(8): L.append((f"v_add_f32 v{tmp+r}, 1.0, v{tmp+r}", 4))
            for r in range(8): L.append((f"v_rcp_f32 v{tmp+r}, v{tmp+r}", 8))
            L.append(("s_nop 0", 1))
            for r in range(8): L.append((f"v_mul_f32 v{g+r}, v{g+r}, v{tmp+r}", 4))
        else:
            P2 = lambda x: f"v[{x}:{x+1}]"
            for r in range(0, 8, 2): L.append((f"v_pk_mul_f32 {P2(tmp+r)}, {P2(g+r)}, {P2(g+r)}", 4))
            for r in range(0, 8, 2): L.append((f"v_pk_fma_f32 {P2(tmp+r)}, {P2(tmp+r)}, s[68:69], {P2(cpair)}", 4))
            for r in range(0, 8, 2): L.append((f"v_pk_mul_f32 {P2(tmp+r)}, {P2(tmp+r)}, {P2(g+r)}", 4))
            for r in range(8): L.append((f"v_exp_f32 v{tmp+r}, v{tmp+r}", 8))
            for r in range(0, 8, 2): L.append((f"v_pk_mul_f32 {P2(g+r)}, {P2(g+r)}, {P2(g+8+r)}", 4))
            for r in range(0, 8, 2): L.append((f"v_pk_add_f32 {P2(tmp+r)}, {P2(tmp+r)}, 1.0 op_sel_hi:[1,0]", 4))
            for r in range(8): L.append((f"v_rcp_f32 v{tmp+r}, v{tmp+r}", 8))
            L.append(("s_nop 0", 1))
            for r in range(0, 8, 2): L.append((f"v_pk_mul_f32 {P2(g+r)}, {P2(g+r)}, {P2(tmp+r)}", 4))
        for d in range(4): L.append((f"v_cvt_pk_bf16_f32 v{pk+d}, v{g+2*d}, v{g+2*d+1}", 4))
        so = 36 + 2 * pas + i
        L.append((f"buffer_store_dwordx4 v[{pk}:{pk+3}], v22, s[40:43], s{so} offen offset:{j*1024} {o.hst}", 4))
        return L
    a(f"""
    s_lshl_b32 s56, s54, 1
    s_and_b32 s57, s18, 1
    s_add_u32 s56, s56, s57
    s_mul_i32 s56, s56, 112
    s_lshr_b32 s57, s18, 1
    s_lshl_b32 s57, s57, 3
    s_add_u32 s56, s56, s57
    s_lshl_b32 s56, s56, 10
    v_mov_b32 v4, s67
    v_mov_b32 v5, s67
    """)
    a(f"""
    s_mov_b32 s24, s14
    s_mov_b32 s25, s15
    s_mov_b32 s26, 256
    s_mov_b32 s27, 0x20000
    ; per-lane B-flag offsets: lane = 2j + w2 (j<7): line of producer fc' = 2*((r+j)%7)+kh ; word 8*(mh_p + 2*w2)
    v_min_u32 v2, 13, v1
    v_and_b32 v3, 1, v2                   ; w2
    v_lshrrev_b32 v2, 1, v2               ; j
    v_add_u32 v2, s23, v2
    v_subrev_u32 v24, 7, v2
    v_cmp_le_u32 vcc, 7, v2
    s_nop 1
    v_cndmask_b32 v2, v2, v24, vcc
    v_lshlrev_b32 v2, 1, v2
    s_lshr_b32 s57, s18, 1
    v_add_u32 v2, s57, v2
    v_lshlrev_b32 v2, 7, v2
    v_lshl_add_u32 v2, v3, 4, v2          ; + 16*w2
    s_and_b32 s57, s54, 1
    s_lshl_b32 s57, s57, 3
    v_add_u32 v2, s57, v2                 ; + 8*mh_p
    s_lshr_b32 s32, s54, 1
    s_lshl_b32 s32, s32, 11
    s_add_u32 s32, s32, {FLAG_OFF + 16*16*128}
    s_lshl_b32 s21, s52, 4
    s_add_u32 s21, s21, s53
    s_lshl_b32 s21, s21, 7
    s_lshl_b32 s57, s18, 3
    s_add_u32 s21, s21, s57
    s_add_u32 s21, s21, {FLAG_OFF + 16*16*128}
    v_mov_b32 v3, 0
    """)
    UB = [48, 49, 50, 51, 33, 34, 35]
    for j in range(7):
        a(f"""
    s_cmp_eq_u32 s{RT+j}, 5
    s_cselect_b32 s57, 9, s{RT+j}
    s_cmp_eq_u32 s{RT+j}, 6
    s_cselect_b32 s57, 5, s57
    s_lshl_b32 s{UB[j]}, s57, 14
    s_lshl_b32 s{RT+j}, s{RT+j}, 14
    s_add_u32 s{RT+j}, s{RT+j}, s56
        """)
    ACC2 = 176
    AFS = [96, 104, 240, 248]
    def hreg(n):
        m = n % 28
        return 112 + 4 * m if m < 16 else 48 + 4 * (m - 16)
    def hload(n):
        p, j, v = n // 28, (n % 28) >> 2, n & 3
        b = hreg(n)
        r = []
        if p and v == 0: r.append(f"s_add_u32 s{RT+j}, s{RT+j}, 4096")
        r.append(f"buffer_load_dwordx4 v[{b}:{b+3}], v22, s[40:43], s{RT+j} offen offset:{v*1024} {o.hld}")
        return r

    vops = []
    a("s_waitcnt vmcnt(8)")
    tr("C")
    a("s_barrier")
    tr("C")
    st(1); trk()
    for ins in p1_reads(0): a(ins)
    for ins in p1_reads(1): a(ins)
    for n in range(56):
        s, q = n >> 2, n & 3
        if q == 2:
            w = "s_waitcnt lgkmcnt(0)"
            if s + 1 in (1, o.flagA_bar): w = "s_waitcnt vmcnt(0) lgkmcnt(0)"
            a(w)
            a("s_barrier")
            tr("C")
            if s + 1 in (2, 7): trk()
        else:
            a("s_waitcnt lgkmcnt(6)" if n + 1 < 56 else "s_waitcnt lgkmcnt(0)")
        rd = p1_reads(n + 2) if n + 2 < 56 else []
        mf = p1_mfmas(n)
        for k in range(4):
            a(mf[k])
            lo, hi = ([0, 3, 6, 6], [3, 6, 6, 6]) if q == 1 else ([0, 2, 4, 5], [2, 4, 5, 6])
            for ins in rd[lo[k]:hi[k]]: a(ins)
        if n == 44:
            a("buffer_load_dwordx2 v[40:41], v3, s[24:27], 0 offen sc1")
            vops.append(("N", 0))
        if 50 <= n <= 53:
            for ins in hload(n - 50): a(ins)
            vops.append(("L", n - 50))
        if n == 27:
            a("s_nop 7\ns_nop 7")
            for t in range(4):
                for ins, _ in geglu_tile(ACCA, t, 0, T + 8 * (t & 1), PK + 4 * (t & 1), packed=o.pk, cpair=4): a(ins)
    st(2); tr("D"); trk()
    pN = vops.index(("N", 0))
    a(f"""
    s_waitcnt vmcnt({len(vops) - 1 - pN})
    s_mov_b32 s28, 0
L_c_nonce:
    v_readfirstlane_b32 s30, v40
    v_readfirstlane_b32 s31, v41
    s_add_u32 s28, s28, 1
    s_nop 3
    s_or_b32 s29, s30, s31
    s_cmp_lg_u32 s29, 0
    s_cbranch_scc1 L_c_havenonce
    s_cmp_gt_u32 s28, 0x40000
    s_cbranch_scc1 L_c_havenonce
    buffer_load_dwordx2 v[40:41], v3, s[24:27], 0 offen sc1
    s_waitcnt vmcnt(0)
    s_branch L_c_nonce
L_c_havenonce:
    """)
    a("s_nop 7")
    nextL = 4
    for t in range(4):
        tile = geglu_tile(ACCB, t, 1, T + 8 * (t & 1), PK + 4 * (t & 1), packed=o.pk, cpair=4)
        nins = len(tile)
        nl = o.hl_per_tile[t]
        pos = [int((k + 0.5) * nins / nl) for k in range(nl)] if nl else []
        for idx, (ins, _) in enumerate(tile):
            if idx in pos:
                for li in hload(nextL): a(li)
                vops.append(("L", nextL)); nextL += 1
            a(ins)
            if ins.startswith("buffer_store"): vops.append(("S", t))
    tr("D")
    a("s_barrier")
    st(3); tr("D")
    def unit_sgpr(n):
        p, j = n // 28, (n % 28) >> 2
        if p == 0: return (UB[j], 0)
        if j < 3: return (None, [7, 6, 8][j] * 16384)
        return (UB[j - 3], 0)
    def p2_reads(n):
        v = n & 3
        sg, so = unit_sgpr(n)
        ch = n >> 2
        ab = 18 + 2 * (ch & 1)
        b = AFS[n & 3]
        r = []
        if v == 0:
            for n2 in range(2):
                if sg is None:
                    r.append(f"v_add_u32 v{ab+n2}, {so}, v{16+n2}")
                else:
                    r.append(f"v_add_u32 v{ab+n2}, s{sg}, v{16+n2}")
        for n2 in range(2):
            for ee in range(2):
                r.append(f"ds_read_b64_tr_b16 v[{b+4*n2+2*ee}:{b+4*n2+2*ee+1}], v{ab+n2} offset:{v*2048+ee*1024}")
        return r
    def p2_mfmas(n):
        b = AFS[n & 3]; hb = hreg(n)
        m = []
        for n2 in range(2):
            c = ACC2 + 16 * n2
            src = "0" if n == 0 else f"v[{c}:{c+15}]"
            m.append(f"{MF} v[{c}:{c+15}], v[{b+4*n2}:{b+4*n2+3}], v[{hb}:{hb+3}], {src}")
        return m
    for n in range(3):
        for ins in p2_reads(n): a(ins)
    last_rd = 2
    def ensure(j):
        a(f"""
    s_lshr_b32 s20, s29, {2*j}
    s_and_b32 s20, s20, 3
    s_cmp_eq_u32 s20, 3
    s_cbranch_scc1 L_c_ok{j}
L_c_poll{j}:
    buffer_load_dwordx2 v[40:41], v2, s[40:43], s32 offen sc1
    s_waitcnt vmcnt(0)
    v_cmp_eq_u64 vcc, s[30:31], v[40:41]
    s_add_u32 s28, s28, 1
    s_nop 4
    s_and_b32 s29, vcc_lo, 0x3fff
    s_cmp_gt_u32 s28, 0x80000
    s_cbranch_scc1 L_c_ok{j}
    s_lshr_b32 s20, s29, {2*j}
    s_and_b32 s20, s20, 3
    s_cmp_eq_u32 s20, 3
    s_cbranch_scc0 L_c_poll{j}
L_c_ok{j}:
        """)
    def loadB(j):
        for v in range(4):
            for li in hload(28 + 4 * j + v):
                a(li)
    LA = o.b_look
    flag_done = False
    def issue_hA(k):
        nonlocal nextL
        for _ in range(k):
            if nextL <= 27:
                for li in hload(nextL): a(li)
                vops.append(("L", nextL)); nextL += 1
    issue_hA(o.g_loads)
    for n in range(56):
        lg = 4 * (last_rd - n)
        assert 0 <= lg <= 12
        if n == o.fb_step:
            pS = vops.index(("S", 3))
            a(f"s_waitcnt vmcnt({len(vops) - 1 - pS})")
            tr("D")
            a(f"""
    v_mov_b32 v42, s30
    v_mov_b32 v43, s31
    s_mov_b64 exec, 1
    buffer_store_dwordx2 v[42:43], v3, s[40:43], s21 offen sc1
    s_mov_b64 exec, -1
            """)
            vops.append(("F", 0))
            st(4); tr("D")
        if n < 28:
            if ("L", n) in vops:
                p = vops.index(("L", n))
                a(f"s_waitcnt vmcnt({len(vops) - 1 - p}) lgkmcnt({lg})")
            else:
                a(f"s_waitcnt lgkmcnt({lg})")
        else:
            j, v = (n - 28) >> 2, n & 3
            if v == 0 and j + LA <= 6 and j > 0:
                ensure(j + LA); loadB(j + LA)
            issued_chunks = min(j + LA, 6)
            younger = (3 - v) + 4 * (issued_chunks - j)
            a(f"s_waitcnt vmcnt({younger}) lgkmcnt({lg})")
        if n in (0, 28, 29, 37, 44): tr("D")
        if n == 15: a("s_barrier")
        if n == 37: a("s_barrier")
        if n == 37: tr("D")
        nr = n + 3
        rd = []
        if nr < 56:
            rd = p2_reads(nr); last_rd = nr
        mf = p2_mfmas(n)
        a(mf[0])
        for ins in rd[:-2]: a(ins)
        a(mf[1])
        for ins in rd[-2:]: a(ins)
        if n < 28: issue_hA(o.hl_rate)
        if n == o.b_poll_step:
            assert nextL == 28
            a("buffer_load_dwordx2 v[40:41], v2, s[40:43], s32 offen sc1")
            vops.append(("P", 0))
        if n == 27:
            tr("D")
            a(f"""
    s_waitcnt vmcnt(0)
    v_cmp_eq_u64 vcc, s[30:31], v[40:41]
    s_mov_b32 s28, 0
    s_nop 4
    s_and_b32 s29, vcc_lo, 0x3fff
            """)
            for j in range(LA + 1):
                ensure(j); loadB(j)
            st(5); tr("D"); trk()
    st(6); tr("D"); trk()
    a(f"""
    s_lshl_b32 s56, s18, 12
    s_add_u32 s56, s56, s{UB[4]}
    v_add_u32 v8, s56, v22
    s_xor_b32 s57, s18, 2
    s_lshl_b32 s57, s57, 12
    s_add_u32 s57, s57, s{UB[4]}
    v_add_u32 v9, s57, v22
    v_and_b32 v10, 31, v1
    s_lshl_b32 s56, s54, 6
    s_and_b32 s57, s18, 1
    s_lshl_b32 s57, s57, 5
    s_add_u32 s56, s56, s57
    v_add_u32 v10, s56, v10
    v_mul_u32_u24 v10, 896, v10
    v_lshrrev_b32 v11, 5, v1
    v_lshl_add_u32 v10, v11, 4, v10
    s_lshl_b32 s56, s55, 7
    s_lshr_b32 s57, s18, 1
    s_lshl_b32 s57, s57, 6
    s_add_u32 s56, s56, s57
    v_add_u32 v10, s56, v10
    s_nop 7
    """)
    for i in range(4):
        c = ACC2 + 16 + 4 * i
        a(f"ds_write_b128 v8, v[{c}:{c+3}] offset:{i*1024}")
    a("s_waitcnt lgkmcnt(0)\ns_barrier")
    for i in range(4):
        a(f"ds_read_b128 v[{48+4*i}:{51+4*i}], v9 offset:{i*1024}")
    for i in range(4):
        a(f"s_waitcnt lgkmcnt({3-i})")
        for k in range(4):
            a(f"v_add_f32 v{ACC2+4*i+k}, v{ACC2+4*i+k}, v{48+4*i+k}")
        a(f"v_cvt_pk_bf16_f32 v{64+2*i}, v{ACC2+4*i}, v{ACC2+4*i+1}")
        a(f"v_cvt_pk_bf16_f32 v{65+2*i}, v{ACC2+4*i+2}, v{ACC2+4*i+3}")
        if i & 1:
            b = 64 + 4 * (i >> 1)
            a("s_nop 1")
            a(f"v_permlane32_swap_b32 v{b}, v{b+2}")
            a(f"v_permlane32_swap_b32 v{b+1}, v{b+3}")
            a(f"buffer_store_dwordx4 v[{b}:{b+3}], v10, s[44:47], 0 offen offset:{(i>>1)*32} {o.outsc}")
    if o.delay_end:
        a(f"s_mov_b32 s56, {o.delay_end // 20}\nL_dly:\ns_nop 15\ns_sub_u32 s56, s56, 1\ns_cmp_lg_u32 s56, 0\ns_cbranch_scc1 L_dly")
    if o.trace in ("C", "S", "D", "K", "U"):
        trk()
        tr("D")
        a("s_cmp_lg_u32 s18, 0\ns_cbranch_scc1 L_end")
        tr_store(o.trace)
    if o.stamps:
        a("s_waitcnt vmcnt(0)")
        st(7)
        a("s_cmp_lg_u32 s18, 0\ns_cbranch_scc1 L_end")
        if o.dbgst:
            a("s_cmp_lg_u32 s2, 100\ns_cbranch_scc1 L_end\ns_waitcnt lgkmcnt(0)")
            a("s_mov_b32 s48, s14\ns_mov_b32 s49, s15\ns_mov_b32 s50, 256\ns_mov_b32 s51, 0x20000\nv_mov_b32 v0, 0\ns_mov_b64 exec, 1")
            a("v_mov_b32 v2, s80\nbuffer_store_dword v2, v0, s[48:51], 0 offen offset:16")
            for k in range(1, 8):
                a(f"s_sub_u32 s56, s{80+2*k}, s80\nv_mov_b32 v2, s56\nbuffer_store_dword v2, v0, s[48:51], 0 offen offset:{16+4*k}\ns_nop 1")
        else:
            a(store_stamps(8, 16, 17, 2, vt=0, tmp=72))
    a("s_endpgm")

    a("L_loader:")
    a(f"""
    s_setprio 3
    v_lshrrev_b32 v24, 3, v1
    v_mul_u32_u24 v25, 3584, v24
    v_and_b32 v26, 7, v1
    v_bfe_u32 v27, v1, 4, 1
    v_lshlrev_b32 v28, 1, v27
    v_xor_b32 v28, v26, v28               ; c gate
    v_lshl_add_u32 v2, v28, 4, v25
    v_xor_b32 v28, 4, v28
    v_lshl_add_u32 v6, v28, 4, v25
    s_lshl_b32 s56, s53, 8
    v_add_u32 v2, s56, v2
    v_add_u32 v6, s56, v6
    """)
    for k in range(1, 4):
        a(f"v_add_u32 v{2+k}, {k*(8*3584-1024)}, v2\nv_add_u32 v{6+k}, {k*(8*3584-1024)}, v6")
    a(f"""
    v_mul_u32_u24 v25, 896, v24
    v_lshlrev_b32 v28, 2, v27
    v_xor_b32 v28, v26, v28
    v_lshl_add_u32 v10, v28, 4, v25
    s_lshl_b32 s56, s55, 7
    v_add_u32 v10, s56, v10
    """)
    for k in range(1, 4):
        a(f"v_add_u32 v{10+k}, {k*(8*896-1024)}, v10")
    a(f"""
    v_lshrrev_b32 v27, 4, v1
    v_xor_b32 v28, v26, v27
    v_lshl_add_u32 v14, v28, 4, v25
    v_xor_b32 v28, 4, v28
    v_lshl_add_u32 v15, v28, 4, v25
    s_mul_i32 s56, s52, {128*896}
    v_add_u32 v14, s56, v14
    s_add_u32 s56, s56, {8*896-1024}
    v_add_u32 v15, s56, v15
    v_add_u32 v16, {2*(8*896-1024)}, v14
    v_add_u32 v17, {2*(8*896-1024)}, v15
    """)
    LT = 70 if o.trace == "L" else 80
    XT, WT, DT = 20, 44, 36+16
    for j in range(4):
        a(f"""
    s_cmp_eq_u32 s{RT+j}, 5
    s_cselect_b32 s56, 9, s{RT+j}
    s_cmp_eq_u32 s{RT+j}, 6
    s_cselect_b32 s56, 5, s56
    s_lshl_b32 s{72+j}, s56, 14
        """)
    for j in range(7):
        a(f"s_lshl_b32 s{33+j}, s{RT+j}, 7")
        a(f"s_mul_i32 s{44+j}, s{RT+j}, {64*3584}")
        a(f"s_mul_i32 s{RT+j}, s{RT+j}, {256*896}")
    a("s_waitcnt lgkmcnt(0)")
    srd(a, 24, 4, 2048 * 896)
    srd(a, 28, 6, 448 * 3584)
    a(f"""
    s_mov_b32 s56, s8
    s_mov_b32 s57, s9
    s_mov_b32 s58, {448*3584}
    s_mov_b32 s59, 0x20000
    s_mov_b32 s68, s10
    s_mov_b32 s69, s11
    """)
    a(f"""
    s_mov_b32 s20, s10
    s_mov_b32 s21, s11
    s_mov_b32 s22, {1792*896}
    s_mov_b32 s23, 0x20000
    """)
    def loader_body(role):
        order = []
        def xdmaL(s):
            for g in range(4):
                a(f"s_mov_b32 m0, {s*16384 + g*4096}")
                a(f"s_add_u32 s67, s{33+s}, {g*32*896}")
                for k in range(4):
                    a(f"buffer_load_dwordx4 v{14+k}, s[24:27], s67 offen offset:{k*1024} lds")
                    order.append(("W", s))
        def wdma(s):
            slot = s % 3; pas = s // 7; ss = s % 7
            for mat in range(2):
                sr = "s[28:31]" if mat == 0 else "s[56:59]"
                for g in range(2):
                    a(f"s_mov_b32 m0, {114688 + slot*16384 + mat*8192 + g*4096}")
                    a(f"s_add_u32 s67, s{44+ss}, {32*g*3584 + pas*128}")
                    for k in range(4):
                        a(f"buffer_load_dwordx4 v{2+4*mat+k}, {sr}, s67 offen offset:{k*1024} lds")
                        order.append(("W", s))
        def ddma(p, j, unit, phys=False, dyn_unit=None):
            for g in range(4):
                if dyn_unit is None:
                    a(f"s_mov_b32 m0, {unit*16384 + g*4096}")
                else:
                    a(f"s_add_u32 m0, s{dyn_unit}, {g*4096}")
                if phys:
                    a(f"s_mov_b32 s67, {(256*j + 128*(g>>1) + 64*p + 32*(g&1))*896}")
                else:
                    a(f"s_add_u32 s67, s{RT+j}, {(128*(g>>1) + 64*p + 32*(g&1))*896}")
                for k in range(4):
                    a(f"buffer_load_dwordx4 v{10+k}, s[20:23], s67 offen offset:{k*1024} lds")
                    order.append(("D", p, j))
        def wait_tag(tag):
            idx = [i for i, t in enumerate(order) if t == tag]
            if not idx: return
            n = len(order) - 1 - max(idx)
            a(f"s_waitcnt vmcnt({min(n, 63)})")
        def room(k):
            a(f"s_waitcnt vmcnt({63-k})")
        doW = role in ("all", "W"); doX = role in ("all", "X")
        tr("L")
        if o.p_order == 1:
            a("s_barrier\ns_barrier")
        a("s_barrier")
        for i in range(15):
            if 2 <= i <= 13: wait_tag(("W", i))
            tr("L")
            a("s_barrier")
            if doX and i + 2 <= 6:
                room(16); xdmaL(i + 2)
            if doW and i + 2 <= 13:
                room(16); wdma(i + 2)
            if doX:
                if 8 <= i <= 12:
                    room(16); ddma(0, i - 8, i - 8, phys=True)
                if i == 12:
                    room(16); ddma(0, 5, 9, phys=True)
                if i == 13:
                    room(16); ddma(0, 6, 5, phys=True)
                    room(16); ddma(1, 0, 7)
                if i == 14:
                    room(16); ddma(1, 1, 6)
                    room(16); ddma(1, 2, 8)
        if role == "W":
            a("s_endpgm")
            return
        a("s_waitcnt vmcnt(0)")
        a("LST0")
        a("s_barrier")
        a("s_barrier")
        a("LST1")
        for j in (3, 4, 5, 6):
            room(16); ddma(1, j, None, dyn_unit=72 + j - 3)
        a("LST2")
        a("s_waitcnt vmcnt(0)")
        a("LST4")
        a("s_barrier")
        a("LSTORE")
        tr_store("L", tmp=24)
        a("s_endpgm")
    if o.two_l:
        a("s_cmp_eq_u32 s18, 6\ns_cbranch_scc1 L_loaderX")
        loader_body("W")
        a("L_loaderX:")
        loader_body("X")
    else:
        loader_body("all")

    a("L_poller:")
    a(f"""
    s_setprio 3
    s_mul_i32 s56, s21, 112
    v_lshrrev_b32 v4, 3, v1
    v_add_u32 v4, s56, v4
    v_mul_u32_u24 v4, 3584, v4
    v_and_b32 v5, 7, v1
    v_lshl_add_u32 v4, v5, 4, v4
    s_lshl_b32 s56, s53, 8
    s_add_u32 s56, s56, 128
    v_add_u32 v4, s56, v4
    v_lshrrev_b32 v16, 3, v1
    s_and_b32 s56, s21, 1
    s_lshl_b32 s56, s56, 5
    v_add_u32 v16, s56, v16
    v_mul_u32_u24 v16, 3584, v16
    v_lshl_add_u32 v16, v5, 4, v16
    s_lshl_b32 s56, s53, 8
    v_add_u32 v16, s56, v16
    s_add_u32 s60, s22, 4
    s_cmp_ge_u32 s60, 7
    s_cselect_b32 s56, 7, 0
    s_sub_u32 s60, s60, s56
    s_add_u32 s61, s60, 1
    s_cmp_ge_u32 s61, 7
    s_cselect_b32 s56, 7, 0
    s_sub_u32 s61, s61, s56
    s_add_u32 s62, s61, 1
    s_cmp_ge_u32 s62, 7
    s_cselect_b32 s56, 7, 0
    s_sub_u32 s62, s62, s56
    s_mul_i32 s60, s60, {64*3584}
    s_mul_i32 s61, s61, {64*3584}
    s_mul_i32 s62, s62, {64*3584}
    v_mov_b32 v2, 0
    v_lshlrev_b32 v13, 20, v1
    s_waitcnt lgkmcnt(0)
    """)
    srd(a, 28, 6, 448 * 3584)
    srd(a, 32, 8, 448 * 3584)
    srd(a, 40, 16, WS_SIZE)
    srd(a, 44, 12, 2048 * 896)
    srd(a, 48, 14, 256)
    a(f"""
    s_lshr_b32 s56, s21, 1
    s_cmp_eq_u32 s56, 0
    s_cselect_b32 s64, s6, s8
    s_cselect_b32 s65, s7, s9
    s_mov_b32 s66, {448*3584}
    s_mov_b32 s67, 0x20000
    """)
    def wa_rest(sreg, base):
        for i in range(4):
            a(f"s_add_u32 s56, s{sreg}, {i*8*3584}")
            a(f"buffer_load_dwordx4 v[{base+4*i}:{base+4*i+3}], v16, s[64:67], s56 offen")
    if o.prefetch and o.rmul == 1:
        wa_rest(60, 100)
    a(f"""
    s_cmp_lg_u32 s2, 0
    s_cbranch_scc1 L_p_nonce
    s_memrealtime s[70:71]
    s_waitcnt lgkmcnt(0)
    v_mov_b32 v6, s70
    v_mov_b32 v7, s71
    s_mov_b64 exec, 1
    buffer_store_dwordx2 v[6:7], v2, s[48:51], 0 offen sc1
    s_mov_b64 exec, -1
L_p_nonce:
    """)
    def pbatch():
        if o.prefetch:
            for k in range(14):
                a(f"s_mov_b32 s56, {k*8*3584}")
                a(f"buffer_load_dwordx4 v[{20+8*(k%8)}:{23+8*(k%8)}], v4, s[28:31], s56 offen")
                a(f"buffer_load_dwordx4 v[{24+8*(k%8)}:{27+8*(k%8)}], v4, s[32:35], s56 offen")
    if o.p_order == 1:
        a("s_barrier"); pbatch(); a("s_barrier")
    a("s_barrier")
    if o.p_order == 0: pbatch()
    a(f"""
    s_mov_b64 exec, 0x1ff
    buffer_load_dword v14, v13, s[40:43], 0 offen
    s_mov_b64 exec, 3
    buffer_load_dword v15, v13, s[44:47], 0 offen
    s_mov_b64 exec, -1
    buffer_load_dwordx2 v[6:7], v2, s[48:51], 0 offen sc1
    s_lshl_b32 s72, s52, 4
    s_add_u32 s72, s72, s53
    s_lshl_b32 s72, s72, 7
    s_add_u32 s72, s72, {FLAG_OFF}
    s_add_u32 s73, s72, {16*16*128}
    s_lshr_b32 s74, s54, 1
    s_lshl_b32 s74, s74, 11
    s_add_u32 s74, s74, {FLAG_OFF}
    s_add_u32 s75, s74, {16*16*128}
    v_min_u32 v8, 13, v1
    v_lshlrev_b32 v8, 7, v8
    """)
    for i in range(9):
        a("s_barrier")
        if o.p_order == 2 and i == 0:
            for _ in range(5): a("s_nop 15")
            pbatch()
        if o.p_order == 3 and i == 1:
            pbatch()
    a(f"""
    s_mov_b32 s76, 0
L_p_chknonce:
    s_waitcnt vmcnt(0)
    v_readfirstlane_b32 s70, v6
    v_readfirstlane_b32 s71, v7
    s_add_u32 s76, s76, 1
    s_nop 3
    s_or_b32 s56, s70, s71
    s_cmp_lg_u32 s56, 0
    s_cbranch_scc1 L_p_havenonce
    s_cmp_gt_u32 s76, 0x40000
    s_cbranch_scc1 L_p_havenonce
    buffer_load_dwordx2 v[6:7], v2, s[48:51], 0 offen sc1
    s_branch L_p_chknonce
L_p_havenonce:
    s_barrier                              ; R_9
    PST0
    s_mov_b64 exec, 1
    buffer_store_dwordx2 v[6:7], v2, s[40:43], s72 offen sc1     ; flag A
    s_mov_b64 exec, -1
    s_barrier                              ; R_10
    s_barrier                              ; R_11
    buffer_load_dwordx2 v[10:11], v8, s[40:43], s74 offen sc1
    s_barrier                              ; R_12
    s_mov_b32 s76, 0
L_p_pollA:
    s_waitcnt vmcnt(0)
    v_cmp_ne_u64 vcc, s[70:71], v[10:11]
    s_add_u32 s76, s76, 1
    s_nop 4
    s_cbranch_vccz L_p_gotA
    s_cmp_gt_u32 s76, 0x40000
    s_cbranch_scc1 L_p_gotA
    buffer_load_dwordx2 v[10:11], v8, s[40:43], s74 offen sc1
    s_branch L_p_pollA
L_p_gotA:
    PST1
    s_barrier                              ; R_13
    s_barrier                              ; R_14
    s_barrier                              ; G
    PST4
    PSTORE
    s_endpgm
L_helper:
    s_sub_u32 s56, s2, 224
    s_lshr_b32 s56, s56, 3
    s_mul_i32 s56, s56, {NW}
    s_add_u32 s56, s56, s18
    v_lshlrev_b32 v2, 4, v1
CODEPF
    s_waitcnt lgkmcnt(0)
    s_mov_b32 s36, s10
    s_mov_b32 s37, s11
    s_mov_b32 s38, {1792*896}
    s_mov_b32 s39, 0x20000
    s_mul_i32 s62, s19, 7
    s_lshr_b32 s62, s62, 2
HROT
HDELAY
L_h_loop:
    ; KB index k=s56 in [0,1568): part = k>=784 ; kk = k - 784*part ; block b = kk/56, off = kk%56 : addr = (128b + 64*part)*896 + off*1024
    s_cmp_ge_u32 s56, 784
    s_cselect_b32 s60, 784, 0
    s_cselect_b32 s61, {64*896}, 0
    s_sub_u32 s60, s56, s60
    s_mul_i32 s58, s60, 1171
    s_lshr_b32 s58, s58, 16               ; kk/56
    s_mul_i32 s59, s58, 56
    s_sub_u32 s59, s60, s59
    s_lshl_b32 s59, s59, 10
    s_add_u32 s58, s58, s62
    s_cmp_ge_u32 s58, 14
    s_cselect_b32 s63, 14, 0
    s_sub_u32 s58, s58, s63
    s_mul_i32 s58, s58, {128*896}
    s_add_u32 s58, s58, s59
    s_add_u32 s58, s58, s61
    buffer_load_dwordx4 v[4:7], v2, s[36:39], s58 offen
    s_waitcnt vmcnt(40)
    s_add_u32 s56, s56, {4*NW}
    s_cmp_lt_u32 s56, 1568
    s_cbranch_scc1 L_h_loop
L_end:
    s_endpgm
    """)
    a(rodata_begin())
    a(descriptor(KN, vgpr=256, sgpr=102))
    txt = a.text()
    codepf = """    ; prefetch this kernel's code into the XCD's L2: wave index hx*6+w loads KB number k, k+24
    s_getpc_b64 s[40:41]
L_pc_here:
    s_add_u32 s40, s40, KSTART-L_pc_here
    s_addc_u32 s41, s41, -1
    s_lshl_b32 s57, s56, 10
    v_add_u32 v3, s57, v2
    v_min_u32 v3, KEND-KSTART-16, v3
    global_load_dwordx4 v[8:11], v3, s[40:41]
    v_add_u32 v3, 24576, v3
    v_min_u32 v3, KEND-KSTART-16, v3
    global_load_dwordx4 v[12:15], v3, s[40:41]
"""
    txt = txt.replace("CODEPF\n", codepf if o.codepf else "")
    txt = txt.replace(KN + ":\n", KN + ":\nKSTART:\n", 1)
    txt = txt.replace("L_end:\n    s_endpgm\n", "L_end:\n    s_endpgm\nKEND:\n")
    txt = txt.replace("    TRU\n", "    s_memrealtime s[72:73]\n" if o.trace == "U" else "")
    txt = txt.replace("HROT\n", "" if o.hrot else "    s_mov_b32 s62, 0\n")
    txt = txt.replace("HDELAY\n", "".join("    s_sleep 16\n" for _ in range(o.hdelay)))
    for k in range(5):
        txt = txt.replace(f"    PST{k}\n", f"    s_memrealtime s[{80+2*k}:{81+2*k}]\n" if o.stamps else "")
    txt = txt.replace("    PSTORE\n", ("s_add_u32 s2, s2, 256\n" + store_stamps(5, 16, 17, 2, vt=20, tmp=56)) if (o.stamps and not o.dbgst) else "")
    for k in range(6):
        txt = txt.replace(f"LST{k}\n", f"s_memrealtime s[{80+2*k}:{81+2*k}]\n" if o.stamps else "")
    txt = txt.replace("LSTORE\n", ("s_add_u32 s2, s2, 512\n" + store_stamps(6, 16, 17, 2, vt=20, tmp=56)) if (o.stamps and not o.dbgst) else "")
    open(name, "w").write(txt)

if __name__ == "__main__":
    o = Opt(); gen("v17.s", o)
    o = Opt(); o.stamps = True; gen("v17s.s", o)
    o = Opt(); o.two_l = False; gen("v17_1l.s", o)
    for po in (1, 2, 3):
        o = Opt(); o.p_order = po; gen(f"v17_p{po}.s", o)
        o = Opt(); o.p_order = po; o.trace = "C"; gen(f"v17_p{po}tC.s", o)
    for t in "CD":
        o = Opt(); o.trace = t; gen(f"v17t{t}.s", o)
```

```python
import sys, struct
from asmlib import *

def f2u(x):
    return struct.unpack("<I", struct.pack("<f", x))[0]

C0 = -2.0 * 1.4426950408889634 * 0.7978845608028654
C1 = C0 * 0.044715
FLAG_OFF = 8 << 20
SPIN = 0x4000
WS_SIZE = 9 << 20
MF = "v_mfma_f32_32x32x16_bf16"

def srd(a, d, lo, size):
    a(f"""
    s_mov_b32 s{d}, s{lo}
    s_mov_b32 s{d+1}, s{lo+1}
    s_mov_b32 s{d+2}, {size}
    s_mov_b32 s{d+3}, 0x20000
    """)

class Opt:
    stamps = False
    prefetch = True
    geglu_steps = 26
    abl = ""
    trace = ""
    rot = True
    wd_start = 11
    pk = True
    helpers = True
    wbx4 = True
    extraH = True
    flagA_bar = 9
    hrot = True
    hst = 'sc1'
    hld = 'sc1'
    hl_per_tile = (0, 0, 0, 0)
    pre_sb_last = 19
    hl_rate = 3
    g_loads = 4
    pre_h = 8
    b12_late = True
    late_st = False
    poll_k = 1
    two_l = True
    p_order = 0
    codepf = True
    fb_step = 0
    rmul = 2
    hdelay = 0
    delay_end = 0
    b_look = 2
    b_poll_step = 14
    b_sched = (22, 24, 26, 29, 32, 36, 40)
    outsc = 'sc1'
    dbgst = False
    sb_step = 15

def gen(name, o):
    a = Asm()
    NW = 7 if o.two_l else 6
    a(header([(KN, 256 if o.helpers else 224, NW * 64, 163840)]))
    a(kernel_begin(KN))
    st = (lambda k: a(f"s_memrealtime s[{80+2*k}:{81+2*k}]")) if o.stamps else (lambda k: None)
    cnt = {"C": 0, "L": 0, "S": 0, "P": 0, "D": 0, "K": 0, "U": 0, "E": 0}
    def tre():
        if o.trace == "E" and cnt["E"] < 14:
            k = cnt["E"]; cnt["E"] += 1
            a(f"s_memrealtime s[{70+2*k}:{71+2*k}]")
    def tru():
        if o.trace == "U" and cnt["U"] < 16:
            k = cnt["U"]; cnt["U"] += 1
            if k == 1: k = cnt["U"]; cnt["U"] += 1
            a(f"s_memrealtime s[{70+2*k}:{71+2*k}]")
    def trk():
        if o.trace == "K" and cnt["K"] < 16:
            k = cnt["K"]; cnt["K"] += 2
            a(f"s_memtime s[{70+2*k}:{71+2*k}]\ns_memrealtime s[{72+2*k}:{73+2*k}]")
    def tr(who):
        if o.trace == who and cnt[who] < 16:
            k = cnt[who]; cnt[who] += 1
            a(f"s_memtime s[{70+2*k}:{71+2*k}]")
    def tr_store(who, vt=0, tmp=24):
        if o.trace == who:
            a("s_waitcnt vmcnt(0) lgkmcnt(0)")
            for k in range(cnt[who], 14 if who == "E" else 16):
                a(f"s_mov_b32 s{70+2*k}, 0\ns_mov_b32 s{71+2*k}, 0")
            a(store_stamps(16, 16, 17, 2, base=70, nslot=16, vt=vt, tmp=tmp))
    a(f"""
    s_cmp_ge_u32 s2, {256 if o.helpers else 224}
    s_cbranch_scc1 L_end
    s_load_dwordx4 s[4:7], s[0:1], 0      ; x, wg
    s_load_dwordx4 s[8:11], s[0:1], 16
    s_load_dwordx4 s[12:15], s[0:1], 32
    s_load_dwordx2 s[16:17], s[0:1], 48   ; ws
    """)
    st(0); trk(); tru()
    a(f"""
    v_and_b32 v1, 63, v0                  ; lane
    v_lshrrev_b32 v2, 6, v0               ; wave
    s_and_b32 s19, s2, 7                  ; xcd
    v_readfirstlane_b32 s18, v2
    s_lshr_b32 s20, s2, 3                 ; within 0..27
    s_mul_i32 s21, s20, 37
    s_lshr_b32 s21, s21, 8                ; l4 = within/7  (0..3)
    s_mul_i32 s22, s21, 7
    s_sub_u32 s22, s20, s22               ; l7 = within%7  (0..6)
    s_and_b32 s52, s19, 3
    s_lshl_b32 s52, s52, 2
    s_add_u32 s52, s52, s21
    s_lshr_b32 s53, s19, 2
    s_mul_i32 s53, s53, 7
    s_add_u32 s53, s53, s22
    s_lshl_b32 s54, s19, 2
    s_add_u32 s54, s54, s21
    s_mov_b32 s55, s22
    s_mul_i32 s23, s21, {o.rmul}
    s_add_u32 s23, s23, s22
    s_cmp_ge_u32 s23, 7
    s_cselect_b32 s56, 7, 0
    s_sub_u32 s23, s23, s56
    """)
    if not o.rot: a("s_mov_b32 s23, 0")
    RT = 60
    for j in range(7):
        a(f"""
    s_add_u32 s{RT+j}, s23, {j}
    s_cmp_ge_u32 s{RT+j}, 7
    s_cselect_b32 s56, 7, 0
    s_sub_u32 s{RT+j}, s{RT+j}, s56
        """)
    a(f"""
    s_cmp_ge_u32 s2, 224
    s_cbranch_scc1 L_helper
    s_cmp_eq_u32 s18, 4
    s_cbranch_scc1 L_loader
    s_cmp_eq_u32 s18, 6
    s_cbranch_scc1 L_loader
    s_cmp_eq_u32 s18, 5
    s_cbranch_scc1 L_poller
    """)
    XF = 8; WB = 6; DB = 16; T = 24; PK = 40; FR = 48; ACCA = 112; ACCB = 176
    a(f"""
    v_lshrrev_b32 v24, 3, v1
    v_mul_u32_u24 v25, 896, v24
    v_and_b32 v26, 7, v1
    v_lshrrev_b32 v27, 4, v1
    v_xor_b32 v28, v26, v27
    v_lshl_add_u32 v2, v28, 4, v25
    v_xor_b32 v28, 4, v28
    v_lshl_add_u32 v3, v28, 4, v25
    s_mul_i32 s56, s52, {128*896}
    s_mul_i32 s57, s18, {32*896}
    s_add_u32 s56, s56, s57
    v_add_u32 v2, s56, v2
    s_add_u32 s56, s56, {8*896-1024}
    v_add_u32 v3, s56, v3
    v_add_u32 v4, {2*(8*896-1024)}, v2
    v_add_u32 v5, {2*(8*896-1024)}, v3
    v_mul_u32_u24 v25, 3584, v24
    v_bfe_u32 v27, v1, 4, 1
    v_lshlrev_b32 v28, 1, v27
    v_xor_b32 v28, v26, v28
    s_lshr_b32 s56, s18, 1
    s_lshl_b32 s57, s56, 2
    v_xor_b32 v28, s57, v28               ; ^ (mat<<2)
    v_lshl_add_u32 v48, v28, 4, v25
    s_lshl_b32 s57, s53, 8
    s_and_b32 s59, s18, 1
    s_mul_i32 s59, s59, {32*3584}
    s_add_u32 s57, s57, s59
    v_add_u32 v48, s57, v48
    v_add_u32 v49, {8*3584-1024}, v48
    v_add_u32 v50, {2*(8*3584-1024)}, v48
    v_add_u32 v51, {3*(8*3584-1024)}, v48
    s_lshl_b32 s57, s56, 13
    s_and_b32 s59, s18, 1
    s_lshl_b32 s59, s59, 12
    s_add_u32 s32, s57, s59
    s_add_u32 s32, s32, 114688
    s_lshl_b32 s58, s18, 12               ; c*4096
    s_waitcnt lgkmcnt(0)
    TRU
    s_cmp_eq_u32 s56, 0
    s_cselect_b32 s28, s6, s8
    s_cselect_b32 s29, s7, s9
    s_mov_b32 s30, {448*3584}
    s_mov_b32 s31, 0x20000
    """)
    srd(a, 24, 4, 2048 * 896)
    def xdma(s):
        a(f"""
    s_add_u32 s57, s58, {s*16384}
    s_mov_b32 m0, s57
    s_lshl_b32 s59, s{RT+s}, 7
    buffer_load_dwordx4 v2, s[24:27], s59 offen lds
    buffer_load_dwordx4 v3, s[24:27], s59 offen offset:1024 lds
    buffer_load_dwordx4 v4, s[24:27], s59 offen offset:2048 lds
    buffer_load_dwordx4 v5, s[24:27], s59 offen offset:3072 lds
        """)
    def wq(s):
        a(f"""
    s_add_u32 s57, s32, {s*16384}
    s_mov_b32 m0, s57
    s_mul_i32 s59, s{RT+s}, {64*3584}
    buffer_load_dwordx4 v48, s[28:31], s59 offen lds
    buffer_load_dwordx4 v49, s[28:31], s59 offen offset:1024 lds
    buffer_load_dwordx4 v50, s[28:31], s59 offen offset:2048 lds
    buffer_load_dwordx4 v51, s[28:31], s59 offen offset:3072 lds
        """)
    tr("S")
    if o.p_order == 1:
        xdma(0); wq(0)
        a("s_barrier")
        a("s_barrier")
        xdma(1); wq(1)
    else:
        xdma(0); wq(0); xdma(1); wq(1)
    tr("S"); tru()
    a("s_barrier")
    tr("S"); tru()
    if o.trace == "U":
        for n in (12, 8, 4, 0):
            a(f"s_waitcnt vmcnt({n})"); tru()
    if o.trace == "S":
        for n in (12, 8, 4, 0):
            a(f"s_waitcnt vmcnt({n})"); tr("S")
    srd(a, 40, 16, WS_SIZE)
    srd(a, 44, 12, 2048 * 896)
    a(f"""
    ; W A-frag bases
    v_lshrrev_b32 v24, 5, v1              ; h
    v_bfe_u32 v25, v1, 4, 1               ; mat / grp
    v_bfe_u32 v26, v1, 2, 2               ; rr
    v_and_b32 v27, 3, v1                  ; cc
    v_lshl_add_u32 v28, v24, 3, v26       ; 8h+rr
    v_lshlrev_b32 v28, 7, v28
    v_lshl_add_u32 v28, v25, 13, v28
    v_lshl_add_u32 v28, v27, 3, v28
    v_add_u32 v28, 114688, v28
    v_bfe_u32 v29, v1, 3, 1
    v_lshl_add_u32 v29, v25, 1, v29       ; g
    s_lshr_b32 s56, s18, 1
    s_lshl_b32 s56, s56, 1                ; 2fh
    v_xor_b32 v30, s56, v29
    v_lshl_add_u32 v6, v30, 5, v28
    v_xor_b32 v7, 32, v6
    ; x frag bases
    v_and_b32 v26, 31, v1
    v_bfe_u32 v27, v1, 1, 3
    v_xor_b32 v27, v27, v24
    v_lshlrev_b32 v27, 4, v27
    v_lshl_add_u32 v27, v26, 7, v27
    s_and_b32 s56, s18, 1
    s_lshl_b32 s56, s56, 13
    v_add_u32 v8, s56, v27
    v_xor_b32 v9, 32, v8
    v_xor_b32 v10, 64, v8
    v_xor_b32 v11, 96, v8
    v_add_u32 v12, 0x10000, v8
    v_add_u32 v13, 0x10000, v9
    v_add_u32 v14, 0x10000, v10
    v_add_u32 v15, 0x10000, v11
    ; Wd A-frag bases: row = 64kh + 4h + rr ; granule = (grp ^ 2b) ^ (2*kh) for acc0 (n2=kh)
    v_bfe_u32 v26, v1, 2, 2
    v_lshl_add_u32 v26, v24, 2, v26       ; 4h+rr
    s_lshr_b32 s56, s18, 1                ; kh
    s_lshl_b32 s57, s56, 6
    v_add_u32 v26, s57, v26
    v_lshlrev_b32 v26, 7, v26
    v_bfe_u32 v27, v1, 3, 1
    v_lshlrev_b32 v27, 1, v27
    v_xor_b32 v27, v27, v25
    s_lshl_b32 s57, s56, 1
    v_xor_b32 v27, s57, v27
    v_lshl_add_u32 v26, v27, 5, v26
    v_and_b32 v27, 3, v1
    v_lshl_add_u32 v16, v27, 3, v26
    v_xor_b32 v17, 64, v16
    v_lshlrev_b32 v22, 4, v1
    s_mov_b32 s70, {f2u(C0)}
    s_mov_b32 s68, {f2u(C1)}
    s_mov_b32 s69, {f2u(C1)}
    v_mov_b32 v23, s70
    v_mov_b32 v52, s70
    v_mov_b32 v53, s70
    ; h store soffsets: ((mt*4 + 2mh)*112 + fc*8 + 2fh)*1024 ; +i*112K, +pass*4096, +j*1024
    s_and_b32 s56, s18, 1
    s_lshl_b32 s56, s56, 1
    s_lshl_b32 s57, s52, 2
    s_add_u32 s56, s56, s57
    s_mul_i32 s56, s56, 112
    s_lshl_b32 s57, s53, 3
    s_add_u32 s56, s56, s57
    s_lshr_b32 s57, s18, 1
    s_lshl_b32 s57, s57, 1
    s_add_u32 s56, s56, s57
    s_lshl_b32 s36, s56, 10               ; pass A, i=0
    s_add_u32 s37, s36, {112*1024}        ; i=1
    s_add_u32 s38, s36, 4096              ; pass B
    s_add_u32 s39, s37, 4096
    """.replace("s_mov_b32 s70,", "s_mov_b32 s67,").replace("v23, s70", "v23, s67").replace("v202, s70", "v204, s67").replace("v203, s70", "v205, s67"))
    for i in range(128):
        a(f"v_mov_b32 v{ACCA+i}, 0")

    def p1_reads(n):
        s, q = n >> 2, n & 3
        b = FR + 16 * (n & 3)
        unit = s % 7
        xb = XF + q + (4 if unit >= 4 else 0)
        xo = (unit & 3) * 16384
        slot = s % 3
        r = []
        for i in range(2):
            r.append(f"ds_read_b128 v[{b+4*i}:{b+4*i+3}], v{xb} offset:{xo+i*4096}")
        for j in range(2):
            for e in range(2):
                r.append(f"ds_read_b64_tr_b16 v[{b+8+4*j+2*e}:{b+8+4*j+2*e+1}], v{WB+j} offset:{slot*16384+q*2048+e*512}")
        return [r[0], r[2], r[3], r[1], r[4], r[5]]
    def p1_mfmas(n):
        b = FR + 16 * (n & 3)
        acc = ACCA if n < 28 else ACCB
        m = []
        for j in range(2):
            for i in range(2):
                c = acc + 16 * (2 * j + i)
                m.append(f"{MF} v[{c}:{c+15}], v[{b+8+4*j}:{b+8+4*j+3}], v[{b+4*i}:{b+4*i+3}], v[{c}:{c+15}]")
        return m
    def geglu_tile(acc, t, pas, tmp, pk, packed=False, cpair=None):
        j, i = t >> 1, t & 1
        g = acc + 16 * t
        L = []
        if not packed:
            for r in range(8): L.append((f"v_mul_f32 v{tmp+r}, v{g+r}, v{g+r}", 4))
            for r in range(8): L.append((f"v_fma_f32 v{tmp+r}, v{tmp+r}, s68, v23", 4))
            for r in range(8): L.append((f"v_mul_f32 v{tmp+r}, v{tmp+r}, v{g+r}", 4))
            for r in range(8): L.append((f"v_exp_f32 v{tmp+r}, v{tmp+r}", 8))
            for r in range(8): L.append((f"v_mul_f32 v{g+r}, v{g+r}, v{g+8+r}", 4))
            for r in range(8): L.append((f"v_add_f32 v{tmp+r}, 1.0, v{tmp+r}", 4))
            for r in range(8): L.append((f"v_rcp_f32 v{tmp+r}, v{tmp+r}", 8))
            L.append(("s_nop 0", 1))
            for r in range(8): L.append((f"v_mul_f32 v{g+r}, v{g+r}, v{tmp+r}", 4))
        else:
            P2 = lambda x: f"v[{x}:{x+1}]"
            for r in range(0, 8, 2): L.append((f"v_pk_mul_f32 {P2(tmp+r)}, {P2(g+r)}, {P2(g+r)}", 4))
            for r in range(0, 8, 2): L.append((f"v_pk_fma_f32 {P2(tmp+r)}, {P2(tmp+r)}, s[68:69], {P2(cpair)}", 4))
            for r in range(0, 8, 2): L.append((f"v_pk_mul_f32 {P2(tmp+r)}, {P2(tmp+r)}, {P2(g+r)}", 4))
            for r in range(8): L.append((f"v_exp_f32 v{tmp+r}, v{tmp+r}", 8))
            for r in range(0, 8, 2): L.append((f"v_pk_mul_f32 {P2(g+r)}, {P2(g+r)}, {P2(g+8+r)}", 4))
            for r in range(0, 8, 2): L.append((f"v_pk_add_f32 {P2(tmp+r)}, {P2(tmp+r)}, 1.0 op_sel_hi:[1,0]", 4))
            for r in range(8): L.append((f"v_rcp_f32 v{tmp+r}, v{tmp+r}", 8))
            L.append(("s_nop 0", 1))
            for r in range(0, 8, 2): L.append((f"v_pk_mul_f32 {P2(g+r)}, {P2(g+r)}, {P2(tmp+r)}", 4))
        for d in range(4): L.append((f"v_cvt_pk_bf16_f32 v{pk+d}, v{g+2*d}, v{g+2*d+1}", 4))
        so = 36 + 2 * pas + i
        L.append((f"buffer_store_dwordx4 v[{pk}:{pk+3}], v22, s[40:43], s{so} offen offset:{j*1024} {o.hst}", 4))
        return L
    a(f"""
    s_lshl_b32 s56, s54, 1
    s_and_b32 s57, s18, 1
    s_add_u32 s56, s56, s57
    s_mul_i32 s56, s56, 112
    s_lshr_b32 s57, s18, 1
    s_lshl_b32 s57, s57, 3
    s_add_u32 s56, s56, s57
    s_lshl_b32 s56, s56, 10
    v_mov_b32 v4, s67
    v_mov_b32 v5, s67
    """)
    a(f"""
    s_mov_b32 s24, s14
    s_mov_b32 s25, s15
    s_mov_b32 s26, 256
    s_mov_b32 s27, 0x20000
    ; per-lane B-flag offsets: lane = 2j + w2 (j<7): line of producer fc' = 2*((r+j)%7)+kh ; word 8*(mh_p + 2*w2)
    v_min_u32 v2, 13, v1
    v_and_b32 v3, 1, v2                   ; w2
    v_lshrrev_b32 v2, 1, v2               ; j
    v_add_u32 v2, s23, v2
    v_subrev_u32 v24, 7, v2
    v_cmp_le_u32 vcc, 7, v2
    s_nop 1
    v_cndmask_b32 v2, v2, v24, vcc
    v_lshlrev_b32 v2, 1, v2
    s_lshr_b32 s57, s18, 1
    v_add_u32 v2, s57, v2
    v_lshlrev_b32 v2, 7, v2
    v_lshl_add_u32 v2, v3, 4, v2          ; + 16*w2
    s_and_b32 s57, s54, 1
    s_lshl_b32 s57, s57, 3
    v_add_u32 v2, s57, v2                 ; + 8*mh_p
    s_lshr_b32 s32, s54, 1
    s_lshl_b32 s32, s32, 11
    s_add_u32 s32, s32, {FLAG_OFF + 16*16*128}
    s_lshl_b32 s21, s52, 4
    s_add_u32 s21, s21, s53
    s_lshl_b32 s21, s21, 7
    s_lshl_b32 s57, s18, 3
    s_add_u32 s21, s21, s57
    s_add_u32 s21, s21, {FLAG_OFF + 16*16*128}
    v_mov_b32 v3, 0
    """)
    UB = [48, 49, 50, 51, 33, 34, 35]
    for j in range(7):
        a(f"""
    s_cmp_eq_u32 s{RT+j}, 5
    s_cselect_b32 s57, 9, s{RT+j}
    s_cmp_eq_u32 s{RT+j}, 6
    s_cselect_b32 s57, 5, s57
    s_lshl_b32 s{UB[j]}, s57, 14
    s_lshl_b32 s{RT+j}, s{RT+j}, 14
    s_add_u32 s{RT+j}, s{RT+j}, s56
        """)
    ACC2 = 176
    AFS = [96, 104, 240, 248]
    def hreg(n):
        m = n % 28
        return 112 + 4 * m if m < 16 else 48 + 4 * (m - 16)
    def hload(n):
        p, j, v = n // 28, (n % 28) >> 2, n & 3
        b = hreg(n)
        r = []
        if p and v == 0: r.append(f"s_add_u32 s{RT+j}, s{RT+j}, 4096")
        r.append(f"buffer_load_dwordx4 v[{b}:{b+3}], v22, s[40:43], s{RT+j} offen offset:{v*1024} {o.hld}")
        return r

    vops = []
    preL = 0
    a("s_waitcnt vmcnt(8)")
    tr("C")
    a("s_barrier")
    tr("C")
    st(1); trk()
    for ins in p1_reads(0): a(ins)
    for ins in p1_reads(1): a(ins)
    for n in range(56):
        s, q = n >> 2, n & 3
        if q == 2:
            w = "s_waitcnt lgkmcnt(0)"
            if s + 1 in (1, o.flagA_bar): w = "s_waitcnt vmcnt(0) lgkmcnt(0)"
            a(w)
            a("s_barrier")
            tr("C")
            if s + 1 in (2, 7): trk()
        else:
            a("s_waitcnt lgkmcnt(6)" if n + 1 < 56 else "s_waitcnt lgkmcnt(0)")
        rd = p1_reads(n + 2) if n + 2 < 56 else []
        mf = p1_mfmas(n)
        for k in range(4):
            a(mf[k])
            lo, hi = ([0, 3, 6, 6], [3, 6, 6, 6]) if q == 1 else ([0, 2, 4, 5], [2, 4, 5, 6])
            for ins in rd[lo[k]:hi[k]]: a(ins)
        if n == 44:
            a("buffer_load_dwordx2 v[40:41], v3, s[24:27], 0 offen sc1")
            vops.append(("N", 0))
        if 50 <= n <= 55:
            per = [(o.pre_h + 5 - i) // 6 for i in range(6)] if o.pre_h > 4 else [1, 1, 1, 1, 0, 0]
            for _ in range(per[n - 50]):
                for ins in hload(preL): a(ins)
                vops.append(("L", preL)); preL += 1
        if n == 27:
            a("s_nop 7\ns_nop 7")
            for t in range(4):
                for ins, _ in geglu_tile(ACCA, t, 0, T + 8 * (t & 1), PK + 4 * (t & 1), packed=o.pk, cpair=4): a(ins)
    st(2); tr("D"); trk()
    pN = vops.index(("N", 0))
    a(f"""
    s_waitcnt vmcnt({len(vops) - 1 - pN})
    s_mov_b32 s28, 0
L_c_nonce:
    v_readfirstlane_b32 s30, v40
    v_readfirstlane_b32 s31, v41
    s_add_u32 s28, s28, 1
    s_nop 3
    s_or_b32 s29, s30, s31
    s_cmp_lg_u32 s29, 0
    s_cbranch_scc1 L_c_havenonce
    s_cmp_gt_u32 s28, {SPIN}
    s_cbranch_scc1 L_c_havenonce
    buffer_load_dwordx2 v[40:41], v3, s[24:27], 0 offen sc1
    s_waitcnt vmcnt(0)
    s_branch L_c_nonce
L_c_havenonce:
    """)
    a("s_nop 7")
    nextL = preL
    late_stores = []
    for t in range(4):
        pkreg = (240 + 4 * t) if o.late_st else (PK + 4 * (t & 1))
        tile = geglu_tile(ACCB, t, 1, T + 8 * (t & 1), pkreg, packed=o.pk, cpair=4)
        nins = len(tile)
        nl = o.hl_per_tile[t]
        pos = [int((k + 0.5) * nins / nl) for k in range(nl)] if nl else []
        for idx, (ins, _) in enumerate(tile):
            if idx in pos:
                for li in hload(nextL): a(li)
                vops.append(("L", nextL)); nextL += 1
            if ins.startswith("buffer_store"):
                if o.late_st:
                    late_stores.append((ins, t)); continue
                vops.append(("S", t))
            a(ins)
    for ins, t in late_stores:
        a(ins); vops.append(("S", t))
    tr("D")
    a("s_barrier")
    st(3); tr("D"); tre()
    def unit_sgpr(n):
        p, j = n // 28, (n % 28) >> 2
        if p == 0: return (UB[j], 0)
        if j < 3: return (None, [7, 6, 8][j] * 16384)
        return (UB[j - 3], 0)
    def p2_reads(n):
        v = n & 3
        sg, so = unit_sgpr(n)
        ch = n >> 2
        ab = 18 + 2 * (ch & 1)
        b = AFS[n & 3]
        r = []
        if v == 0:
            for n2 in range(2):
                if sg is None:
                    r.append(f"v_add_u32 v{ab+n2}, {so}, v{16+n2}")
                else:
                    r.append(f"v_add_u32 v{ab+n2}, s{sg}, v{16+n2}")
        for n2 in range(2):
            for ee in range(2):
                r.append(f"ds_read_b64_tr_b16 v[{b+4*n2+2*ee}:{b+4*n2+2*ee+1}], v{ab+n2} offset:{v*2048+ee*1024}")
        return r
    def p2_mfmas(n):
        b = AFS[n & 3]; hb = hreg(n)
        m = []
        for n2 in range(2):
            c = ACC2 + 16 * n2
            src = "0" if n == 0 else f"v[{c}:{c+15}]"
            m.append(f"{MF} v[{c}:{c+15}], v[{b+4*n2}:{b+4*n2+3}], v[{hb}:{hb+3}], {src}")
        return m
    for n in range(3):
        for ins in p2_reads(n): a(ins)
    last_rd = 2
    def ensure(j):
        K = o.poll_k
        chk = f"""
    s_lshr_b32 s20, s29, {2*j}
    s_and_b32 s20, s20, 3
    s_cmp_eq_u32 s20, 3
"""
        a(chk + f"    s_cbranch_scc1 L_c_ok{j}")
        if K == 1:
            a(f"""
L_c_poll{j}:
    buffer_load_dwordx2 v[40:41], v2, s[40:43], s32 offen sc1
    s_waitcnt vmcnt(0)
    v_cmp_eq_u64 vcc, s[30:31], v[40:41]
    s_add_u32 s28, s28, 1
    s_nop 4
    s_and_b32 s29, vcc_lo, 0x3fff
    s_cmp_gt_u32 s28, {SPIN}
    s_cbranch_scc1 L_c_ok{j}
{chk}
    s_cbranch_scc0 L_c_poll{j}
            """)
        else:
            regs = [40, 42, 44][:K]
            for r in regs[:-1]:
                a(f"buffer_load_dwordx2 v[{r}:{r+1}], v2, s[40:43], s32 offen sc1\ns_nop 15\ns_nop 15")
            a(f"L_c_poll{j}:")
            for i in range(K):
                rin = regs[(i + K - 1) % K]; rout = regs[i]
                a(f"""
    buffer_load_dwordx2 v[{rin}:{rin+1}], v2, s[40:43], s32 offen sc1
    s_waitcnt vmcnt({K-1})
    v_cmp_eq_u64 vcc, s[30:31], v[{rout}:{rout+1}]
    s_add_u32 s28, s28, 1
    s_nop 4
    s_and_b32 s29, vcc_lo, 0x3fff
{chk}
    s_cbranch_scc1 L_c_ok{j}
                """)
            a(f"""
    s_cmp_gt_u32 s28, {SPIN}
    s_cbranch_scc0 L_c_poll{j}
            """)
        a(f"L_c_ok{j}:")
    def loadB(j):
        for v in range(4):
            for li in hload(28 + 4 * j + v):
                a(li)
    fb_step = o.fb_step if o.fb_step else nextL
    def issue_hA(k):
        nonlocal nextL
        for _ in range(k):
            if nextL <= 27:
                for li in hload(nextL): a(li)
                vops.append(("L", nextL)); nextL += 1
    def younger(tag):
        return len(vops) - 1 - vops.index(tag)
    issue_hA(o.g_loads)
    tB = o.b_sched
    for n in range(56):
        lg = 4 * (last_rd - n)
        assert 0 <= lg <= 12
        if n == fb_step:
            a(f"s_waitcnt vmcnt({younger(('S', 3))})")
            tr("D")
            a(f"""
    v_mov_b32 v42, s30
    v_mov_b32 v43, s31
    s_mov_b64 exec, 1
    buffer_store_dwordx2 v[42:43], v3, s[40:43], s21 offen sc1
    s_mov_b64 exec, -1
            """)
            vops.append(("F", 0))
            st(4); tr("D"); tre()
        if n == tB[0]:
            tre()
            a(f"""
    s_waitcnt vmcnt({younger(('P', 0))})
    v_cmp_eq_u64 vcc, s[30:31], v[40:41]
    s_mov_b32 s28, 0
    s_nop 4
    s_and_b32 s29, vcc_lo, 0x3fff
            """)
            tre()
        for j in range(7):
            if tB[j] == n:
                assert n > 4 * j + 3 and nextL == 28
                ensure(j); loadB(j)
                for v in range(4): vops.append(("L", 28 + 4 * j + v))
                if j == 0: st(5); trk()
        a(f"s_waitcnt vmcnt({min(63, younger(('L', n)))}) lgkmcnt({lg})")
        if n in (0, 28, 29, 37, 44): tr("D")
        if n in (27, 28, 32, 36, 40, 48, 55): tre()
        if n == 15: a("s_barrier")
        if n == 37: a("s_barrier")
        if n == 37: tr("D")
        nr = n + 3
        rd = []
        if nr < 56:
            rd = p2_reads(nr); last_rd = nr
        mf = p2_mfmas(n)
        a(mf[0])
        for ins in rd[:-2]: a(ins)
        a(mf[1])
        for ins in rd[-2:]: a(ins)
        if n < 28: issue_hA(o.hl_rate)
        if n == o.b_poll_step:
            a("buffer_load_dwordx2 v[40:41], v2, s[40:43], s32 offen sc1")
            vops.append(("P", 0))
    st(6); tr("D"); trk()
    a(f"""
    s_lshl_b32 s56, s18, 12
    s_add_u32 s56, s56, s{UB[4]}
    v_add_u32 v8, s56, v22
    s_xor_b32 s57, s18, 2
    s_lshl_b32 s57, s57, 12
    s_add_u32 s57, s57, s{UB[4]}
    v_add_u32 v9, s57, v22
    v_and_b32 v10, 31, v1
    s_lshl_b32 s56, s54, 6
    s_and_b32 s57, s18, 1
    s_lshl_b32 s57, s57, 5
    s_add_u32 s56, s56, s57
    v_add_u32 v10, s56, v10
    v_mul_u32_u24 v10, 896, v10
    v_lshrrev_b32 v11, 5, v1
    v_lshl_add_u32 v10, v11, 4, v10
    s_lshl_b32 s56, s55, 7
    s_lshr_b32 s57, s18, 1
    s_lshl_b32 s57, s57, 6
    s_add_u32 s56, s56, s57
    v_add_u32 v10, s56, v10
    s_nop 7
    """)
    for i in range(4):
        c = ACC2 + 16 + 4 * i
        a(f"ds_write_b128 v8, v[{c}:{c+3}] offset:{i*1024}")
    a("s_waitcnt lgkmcnt(0)\ns_barrier")
    for i in range(4):
        a(f"ds_read_b128 v[{48+4*i}:{51+4*i}], v9 offset:{i*1024}")
    for i in range(4):
        a(f"s_waitcnt lgkmcnt({3-i})")
        for k in range(4):
            a(f"v_add_f32 v{ACC2+4*i+k}, v{ACC2+4*i+k}, v{48+4*i+k}")
        a(f"v_cvt_pk_bf16_f32 v{64+2*i}, v{ACC2+4*i}, v{ACC2+4*i+1}")
        a(f"v_cvt_pk_bf16_f32 v{65+2*i}, v{ACC2+4*i+2}, v{ACC2+4*i+3}")
        if i & 1:
            b = 64 + 4 * (i >> 1)
            a("s_nop 1")
            a(f"v_permlane32_swap_b32 v{b}, v{b+2}")
            a(f"v_permlane32_swap_b32 v{b+1}, v{b+3}")
            a(f"buffer_store_dwordx4 v[{b}:{b+3}], v10, s[44:47], 0 offen offset:{(i>>1)*32} {o.outsc}")
    if o.delay_end:
        a(f"s_mov_b32 s56, {o.delay_end // 20}\nL_dly:\ns_nop 15\ns_sub_u32 s56, s56, 1\ns_cmp_lg_u32 s56, 0\ns_cbranch_scc1 L_dly")
    if o.trace in ("C", "S", "D", "K", "U", "E"):
        trk()
        tr("D")
        a("s_cmp_lg_u32 s18, 0\ns_cbranch_scc1 L_end")
        tr_store(o.trace)
    if o.stamps:
        a("s_waitcnt vmcnt(0)")
        st(7)
        a("s_cmp_lg_u32 s18, 0\ns_cbranch_scc1 L_end")
        if o.dbgst:
            a("s_cmp_lg_u32 s2, 100\ns_cbranch_scc1 L_end\ns_waitcnt lgkmcnt(0)")
            a("s_mov_b32 s48, s14\ns_mov_b32 s49, s15\ns_mov_b32 s50, 256\ns_mov_b32 s51, 0x20000\nv_mov_b32 v0, 0\ns_mov_b64 exec, 1")
            a("v_mov_b32 v2, s80\nbuffer_store_dword v2, v0, s[48:51], 0 offen offset:16")
            for k in range(1, 8):
                a(f"s_sub_u32 s56, s{80+2*k}, s80\nv_mov_b32 v2, s56\nbuffer_store_dword v2, v0, s[48:51], 0 offen offset:{16+4*k}\ns_nop 1")
        else:
            a(store_stamps(8, 16, 17, 2, vt=0, tmp=72))
    a("s_endpgm")

    a("L_loader:")
    a(f"""
    s_setprio 3
    v_lshrrev_b32 v24, 3, v1
    v_mul_u32_u24 v25, 3584, v24
    v_and_b32 v26, 7, v1
    v_bfe_u32 v27, v1, 4, 1
    v_lshlrev_b32 v28, 1, v27
    v_xor_b32 v28, v26, v28               ; c gate
    v_lshl_add_u32 v2, v28, 4, v25
    v_xor_b32 v28, 4, v28
    v_lshl_add_u32 v6, v28, 4, v25
    s_lshl_b32 s56, s53, 8
    v_add_u32 v2, s56, v2
    v_add_u32 v6, s56, v6
    """)
    for k in range(1, 4):
        a(f"v_add_u32 v{2+k}, {k*(8*3584-1024)}, v2\nv_add_u32 v{6+k}, {k*(8*3584-1024)}, v6")
    a(f"""
    v_mul_u32_u24 v25, 896, v24
    v_lshlrev_b32 v28, 2, v27
    v_xor_b32 v28, v26, v28
    v_lshl_add_u32 v10, v28, 4, v25
    s_lshl_b32 s56, s55, 7
    v_add_u32 v10, s56, v10
    """)
    for k in range(1, 4):
        a(f"v_add_u32 v{10+k}, {k*(8*896-1024)}, v10")
    a(f"""
    v_lshrrev_b32 v27, 4, v1
    v_xor_b32 v28, v26, v27
    v_lshl_add_u32 v14, v28, 4, v25
    v_xor_b32 v28, 4, v28
    v_lshl_add_u32 v15, v28, 4, v25
    s_mul_i32 s56, s52, {128*896}
    v_add_u32 v14, s56, v14
    s_add_u32 s56, s56, {8*896-1024}
    v_add_u32 v15, s56, v15
    v_add_u32 v16, {2*(8*896-1024)}, v14
    v_add_u32 v17, {2*(8*896-1024)}, v15
    """)
    LT = 70 if o.trace == "L" else 80
    XT, WT, DT = 20, 44, 36+16
    for j in range(4):
        a(f"""
    s_cmp_eq_u32 s{RT+j}, 5
    s_cselect_b32 s56, 9, s{RT+j}
    s_cmp_eq_u32 s{RT+j}, 6
    s_cselect_b32 s56, 5, s56
    s_lshl_b32 s{72+j}, s56, 14
        """)
    for j in range(7):
        a(f"s_lshl_b32 s{33+j}, s{RT+j}, 7")
        a(f"s_mul_i32 s{44+j}, s{RT+j}, {64*3584}")
        a(f"s_mul_i32 s{RT+j}, s{RT+j}, {256*896}")
    a("s_waitcnt lgkmcnt(0)")
    srd(a, 24, 4, 2048 * 896)
    srd(a, 28, 6, 448 * 3584)
    a(f"""
    s_mov_b32 s56, s8
    s_mov_b32 s57, s9
    s_mov_b32 s58, {448*3584}
    s_mov_b32 s59, 0x20000
    s_mov_b32 s68, s10
    s_mov_b32 s69, s11
    """)
    a(f"""
    s_mov_b32 s20, s10
    s_mov_b32 s21, s11
    s_mov_b32 s22, {1792*896}
    s_mov_b32 s23, 0x20000
    """)
    def loader_body(role):
        order = []
        def xdmaL(s):
            for g in range(4):
                a(f"s_mov_b32 m0, {s*16384 + g*4096}")
                a(f"s_add_u32 s67, s{33+s}, {g*32*896}")
                for k in range(4):
                    a(f"buffer_load_dwordx4 v{14+k}, s[24:27], s67 offen offset:{k*1024} lds")
                    order.append(("W", s))
        def wdma(s):
            slot = s % 3; pas = s // 7; ss = s % 7
            for mat in range(2):
                sr = "s[28:31]" if mat == 0 else "s[56:59]"
                for g in range(2):
                    a(f"s_mov_b32 m0, {114688 + slot*16384 + mat*8192 + g*4096}")
                    a(f"s_add_u32 s67, s{44+ss}, {32*g*3584 + pas*128}")
                    for k in range(4):
                        a(f"buffer_load_dwordx4 v{2+4*mat+k}, {sr}, s67 offen offset:{k*1024} lds")
                        order.append(("W", s))
        def ddma(p, j, unit, phys=False, dyn_unit=None):
            for g in range(4):
                if dyn_unit is None:
                    a(f"s_mov_b32 m0, {unit*16384 + g*4096}")
                else:
                    a(f"s_add_u32 m0, s{dyn_unit}, {g*4096}")
                if phys:
                    a(f"s_mov_b32 s67, {(256*j + 128*(g>>1) + 64*p + 32*(g&1))*896}")
                else:
                    a(f"s_add_u32 s67, s{RT+j}, {(128*(g>>1) + 64*p + 32*(g&1))*896}")
                for k in range(4):
                    a(f"buffer_load_dwordx4 v{10+k}, s[20:23], s67 offen offset:{k*1024} lds")
                    order.append(("D", p, j))
        def wait_tag(tag):
            idx = [i for i, t in enumerate(order) if t == tag]
            if not idx: return
            n = len(order) - 1 - max(idx)
            a(f"s_waitcnt vmcnt({min(n, 63)})")
        def room(k):
            a(f"s_waitcnt vmcnt({63-k})")
        doW = role in ("all", "W"); doX = role in ("all", "X")
        tr("L")
        if o.p_order == 1:
            a("s_barrier\ns_barrier")
        a("s_barrier")
        for i in range(15):
            if 2 <= i <= 13: wait_tag(("W", i))
            tr("L")
            a("s_barrier")
            if doX and i + 2 <= 6:
                room(16); xdmaL(i + 2)
            if doW and i + 2 <= 13:
                room(16); wdma(i + 2)
            if doX:
                if 8 <= i <= 12:
                    room(16); ddma(0, i - 8, i - 8, phys=True)
                if i == 12:
                    room(16); ddma(0, 5, 9, phys=True)
                if i == 13:
                    room(16); ddma(0, 6, 5, phys=True)
                    room(16); ddma(1, 0, 7)
                if i == 14 and not o.b12_late:
                    room(16); ddma(1, 1, 6)
                    room(16); ddma(1, 2, 8)
        if role == "W":
            a("s_endpgm")
            return
        a("s_waitcnt vmcnt(0)")
        a("LST0")
        a("s_barrier")
        if o.b12_late:
            room(16); ddma(1, 1, 6)
            room(16); ddma(1, 2, 8)
            a("s_waitcnt vmcnt(0)")
        a("s_barrier")
        a("LST1")
        for j in (3, 4, 5, 6):
            room(16); ddma(1, j, None, dyn_unit=72 + j - 3)
        a("LST2")
        a("s_waitcnt vmcnt(0)")
        a("LST4")
        a("s_barrier")
        a("LSTORE")
        tr_store("L", tmp=24)
        a("s_endpgm")
    if o.two_l:
        a("s_cmp_eq_u32 s18, 6\ns_cbranch_scc1 L_loaderX")
        loader_body("W")
        a("L_loaderX:")
        loader_body("X")
    else:
        loader_body("all")

    a("L_poller:")
    a(f"""
    s_setprio 3
    s_mul_i32 s56, s21, 112
    v_lshrrev_b32 v4, 3, v1
    v_add_u32 v4, s56, v4
    v_mul_u32_u24 v4, 3584, v4
    v_and_b32 v5, 7, v1
    v_lshl_add_u32 v4, v5, 4, v4
    s_lshl_b32 s56, s53, 8
    s_add_u32 s56, s56, 128
    v_add_u32 v4, s56, v4
    v_lshrrev_b32 v16, 3, v1
    s_and_b32 s56, s21, 1
    s_lshl_b32 s56, s56, 5
    v_add_u32 v16, s56, v16
    v_mul_u32_u24 v16, 3584, v16
    v_lshl_add_u32 v16, v5, 4, v16
    s_lshl_b32 s56, s53, 8
    v_add_u32 v16, s56, v16
    s_add_u32 s60, s22, 4
    s_cmp_ge_u32 s60, 7
    s_cselect_b32 s56, 7, 0
    s_sub_u32 s60, s60, s56
    s_add_u32 s61, s60, 1
    s_cmp_ge_u32 s61, 7
    s_cselect_b32 s56, 7, 0
    s_sub_u32 s61, s61, s56
    s_add_u32 s62, s61, 1
    s_cmp_ge_u32 s62, 7
    s_cselect_b32 s56, 7, 0
    s_sub_u32 s62, s62, s56
    s_mul_i32 s60, s60, {64*3584}
    s_mul_i32 s61, s61, {64*3584}
    s_mul_i32 s62, s62, {64*3584}
    v_mov_b32 v2, 0
    v_lshlrev_b32 v13, 20, v1
    s_waitcnt lgkmcnt(0)
    """)
    srd(a, 28, 6, 448 * 3584)
    srd(a, 32, 8, 448 * 3584)
    srd(a, 40, 16, WS_SIZE)
    srd(a, 44, 12, 2048 * 896)
    srd(a, 48, 14, 256)
    a(f"""
    s_lshr_b32 s56, s21, 1
    s_cmp_eq_u32 s56, 0
    s_cselect_b32 s64, s6, s8
    s_cselect_b32 s65, s7, s9
    s_mov_b32 s66, {448*3584}
    s_mov_b32 s67, 0x20000
    """)
    def wa_rest(sreg, base):
        for i in range(4):
            a(f"s_add_u32 s56, s{sreg}, {i*8*3584}")
            a(f"buffer_load_dwordx4 v[{base+4*i}:{base+4*i+3}], v16, s[64:67], s56 offen")
    if o.prefetch and o.rmul == 1:
        wa_rest(60, 100)
    a(f"""
    s_cmp_lg_u32 s2, 0
    s_cbranch_scc1 L_p_nonce
    s_memrealtime s[70:71]
    s_waitcnt lgkmcnt(0)
    v_mov_b32 v6, s70
    v_mov_b32 v7, s71
    s_mov_b64 exec, 1
    buffer_store_dwordx2 v[6:7], v2, s[48:51], 0 offen sc1
    s_mov_b64 exec, -1
L_p_nonce:
    """)
    def pbatch():
        if o.prefetch:
            for k in range(14):
                a(f"s_mov_b32 s56, {k*8*3584}")
                a(f"buffer_load_dwordx4 v[{20+8*(k%8)}:{23+8*(k%8)}], v4, s[28:31], s56 offen")
                a(f"buffer_load_dwordx4 v[{24+8*(k%8)}:{27+8*(k%8)}], v4, s[32:35], s56 offen")
    if o.p_order == 1:
        a("s_barrier"); pbatch(); a("s_barrier")
    a("s_barrier")
    if o.p_order == 0: pbatch()
    a(f"""
    s_mov_b64 exec, 0x1ff
    buffer_load_dword v14, v13, s[40:43], 0 offen
    s_mov_b64 exec, 3
    buffer_load_dword v15, v13, s[44:47], 0 offen
    s_mov_b64 exec, -1
    s_lshl_b32 s72, s52, 4
    s_add_u32 s72, s72, s53
    s_lshl_b32 s72, s72, 7
    s_add_u32 s72, s72, {FLAG_OFF}
    s_add_u32 s73, s72, {16*16*128}
    s_lshr_b32 s74, s54, 1
    s_lshl_b32 s74, s74, 11
    s_add_u32 s74, s74, {FLAG_OFF}
    s_add_u32 s75, s74, {16*16*128}
    v_min_u32 v8, 13, v1
    v_lshlrev_b32 v8, 7, v8
    """)
    for i in range(9):
        a("s_barrier")
        if o.p_order == 2 and i == 0:
            for _ in range(5): a("s_nop 15")
            pbatch()
        if o.p_order == 3 and i == 1:
            pbatch()
        if i == 7:
            a("buffer_load_dwordx2 v[6:7], v2, s[48:51], 0 offen sc1")
    a(f"""
    s_mov_b32 s76, 0
L_p_chknonce:
    s_waitcnt vmcnt(0)
    v_readfirstlane_b32 s70, v6
    v_readfirstlane_b32 s71, v7
    s_add_u32 s76, s76, 1
    s_nop 3
    s_or_b32 s56, s70, s71
    s_cmp_lg_u32 s56, 0
    s_cbranch_scc1 L_p_havenonce
    s_cmp_gt_u32 s76, {SPIN}
    s_cbranch_scc1 L_p_havenonce
    buffer_load_dwordx2 v[6:7], v2, s[48:51], 0 offen sc1
    s_branch L_p_chknonce
L_p_havenonce:
    s_barrier                              ; R_9
    PST0
    s_mov_b64 exec, 1
    buffer_store_dwordx2 v[6:7], v2, s[40:43], s72 offen sc1     ; flag A
    s_mov_b64 exec, -1
    s_barrier                              ; R_10
    s_barrier                              ; R_11
    buffer_load_dwordx2 v[10:11], v8, s[40:43], s74 offen sc1
    s_barrier                              ; R_12
    s_mov_b32 s76, 0
L_p_pollA:
    s_waitcnt vmcnt(0)
    v_cmp_ne_u64 vcc, s[70:71], v[10:11]
    s_add_u32 s76, s76, 1
    s_nop 4
    s_cbranch_vccz L_p_gotA
    s_cmp_gt_u32 s76, {SPIN}
    s_cbranch_scc1 L_p_gotA
    buffer_load_dwordx2 v[10:11], v8, s[40:43], s74 offen sc1
    s_branch L_p_pollA
L_p_gotA:
    PST1
    s_barrier                              ; R_13
    s_barrier                              ; R_14
    s_barrier                              ; G
    PST4
    PSTORE
    s_endpgm
L_helper:
    s_sub_u32 s56, s2, 224
    s_lshr_b32 s56, s56, 3
    s_mul_i32 s56, s56, {NW}
    s_add_u32 s56, s56, s18
    v_lshlrev_b32 v2, 4, v1
CODEPF
    s_waitcnt lgkmcnt(0)
    s_mov_b32 s36, s10
    s_mov_b32 s37, s11
    s_mov_b32 s38, {1792*896}
    s_mov_b32 s39, 0x20000
    s_mul_i32 s62, s19, 7
    s_lshr_b32 s62, s62, 2
HROT
HDELAY
L_h_loop:
    ; KB index k=s56 in [0,1568): part = k>=784 ; kk = k - 784*part ; block b = kk/56, off = kk%56 : addr = (128b + 64*part)*896 + off*1024
    s_cmp_ge_u32 s56, 784
    s_cselect_b32 s60, 784, 0
    s_cselect_b32 s61, {64*896}, 0
    s_sub_u32 s60, s56, s60
    s_mul_i32 s58, s60, 1171
    s_lshr_b32 s58, s58, 16               ; kk/56
    s_mul_i32 s59, s58, 56
    s_sub_u32 s59, s60, s59
    s_lshl_b32 s59, s59, 10
    s_add_u32 s58, s58, s62
    s_cmp_ge_u32 s58, 14
    s_cselect_b32 s63, 14, 0
    s_sub_u32 s58, s58, s63
    s_mul_i32 s58, s58, {128*896}
    s_add_u32 s58, s58, s59
    s_add_u32 s58, s58, s61
    buffer_load_dwordx4 v[4:7], v2, s[36:39], s58 offen
    s_waitcnt vmcnt(40)
    s_add_u32 s56, s56, {4*NW}
    s_cmp_lt_u32 s56, 1568
    s_cbranch_scc1 L_h_loop
L_end:
    s_endpgm
    """)
    a(rodata_begin())
    a(descriptor(KN, vgpr=256, sgpr=102))
    txt = a.text()
    codepf = """    ; prefetch this kernel's code into the XCD's L2: wave index hx*6+w loads KB number k, k+24
    s_getpc_b64 s[40:41]
L_pc_here:
    s_add_u32 s40, s40, KSTART-L_pc_here
    s_addc_u32 s41, s41, -1
    s_lshl_b32 s57, s56, 10
    v_add_u32 v3, s57, v2
    v_min_u32 v3, KEND-KSTART-16, v3
    global_load_dwordx4 v[8:11], v3, s[40:41]
    v_add_u32 v3, 24576, v3
    v_min_u32 v3, KEND-KSTART-16, v3
    global_load_dwordx4 v[12:15], v3, s[40:41]
"""
    txt = txt.replace("CODEPF\n", codepf if o.codepf else "")
    txt = txt.replace(KN + ":\n", KN + ":\nKSTART:\n", 1)
    txt = txt.replace("L_end:\n    s_endpgm\n", "L_end:\n    s_endpgm\nKEND:\n")
    txt = txt.replace("    TRU\n", "    s_memrealtime s[72:73]\n" if o.trace == "U" else "")
    txt = txt.replace("HROT\n", "" if o.hrot else "    s_mov_b32 s62, 0\n")
    txt = txt.replace("HDELAY\n", "".join("    s_sleep 16\n" for _ in range(o.hdelay)))
    for k in range(5):
        txt = txt.replace(f"    PST{k}\n", f"    s_memrealtime s[{80+2*k}:{81+2*k}]\n" if o.stamps else "")
    txt = txt.replace("    PSTORE\n", ("s_add_u32 s2, s2, 256\n" + store_stamps(5, 16, 17, 2, vt=20, tmp=56)) if (o.stamps and not o.dbgst) else "")
    for k in range(6):
        txt = txt.replace(f"LST{k}\n", f"s_memrealtime s[{80+2*k}:{81+2*k}]\n" if o.stamps else "")
    txt = txt.replace("LSTORE\n", ("s_add_u32 s2, s2, 512\n" + store_stamps(6, 16, 17, 2, vt=20, tmp=56)) if (o.stamps and not o.dbgst) else "")
    open(name, "w").write(txt)

if __name__ == "__main__":
    def base():
        o = Opt(); o.b_poll_step = 17; o.b_sched = (24, 26, 27, 30, 33, 37, 41); return o
    o = base(); gen("v20.s", o)
    o = base(); o.stamps = True; gen("v20s.s", o)
    o = base(); o.pre_h = 4; o.b12_late = True; gen("v20_a.s", o)
    o = base(); o.pre_h = 10; gen("v20_b.s", o)
    o = base(); o.pre_h = 4; o.b12_late = False; gen("v20_c.s", o)
    for t in "CDE":
        o = base(); o.trace = t; gen(f"v20t{t}.s", o)
```

```python
import sys, struct
from asmlib import *

def f2u(x):
    return struct.unpack("<I", struct.pack("<f", x))[0]

C0 = -2.0 * 1.4426950408889634 * 0.7978845608028654
C1 = C0 * 0.044715
FLAG_OFF = 8 << 20
SPIN = 0x4000
WS_SIZE = 9 << 20
MF = "v_mfma_f32_32x32x16_bf16"

def srd(a, d, lo, size):
    a(f"""
    s_mov_b32 s{d}, s{lo}
    s_mov_b32 s{d+1}, s{lo+1}
    s_mov_b32 s{d+2}, {size}
    s_mov_b32 s{d+3}, 0x20000
    """)

class Opt:
    stamps = False
    prefetch = True
    geglu_steps = 26
    abl = ""
    trace = ""
    rot = True
    wd_start = 11
    pk = True
    helpers = True
    wbx4 = True
    extraH = True
    flagA_bar = 9
    hrot = True
    hst = 'sc1'
    hld = 'sc1'
    hl_per_tile = (0, 0, 0, 0)
    pre_sb_last = 19
    hl_rate = 3
    g_loads = 4
    fast_tail = True
    share_g = True
    pre_h = 8
    b12_late = True
    late_st = False
    poll_k = 1
    two_l = True
    p_order = 0
    codepf = True
    fb_step = 0
    rmul = 2
    hdelay = 0
    delay_end = 0
    b_look = 2
    b_poll_step = 14
    b_sched = (22, 24, 26, 29, 32, 36, 40)
    outsc = 'sc1'
    dbgst = False
    sb_step = 15

def gen(name, o):
    a = Asm()
    NW = 7 if o.two_l else 6
    a(header([(KN, 256 if o.helpers else 224, NW * 64, 163840)]))
    a(kernel_begin(KN))
    st = (lambda k: a(f"s_memrealtime s[{80+2*k}:{81+2*k}]")) if o.stamps else (lambda k: None)
    cnt = {"C": 0, "L": 0, "S": 0, "P": 0, "D": 0, "K": 0, "U": 0, "E": 0}
    def tre():
        if o.trace == "E" and cnt["E"] < 14:
            k = cnt["E"]; cnt["E"] += 1
            a(f"s_memrealtime s[{70+2*k}:{71+2*k}]")
    def tru():
        if o.trace == "U" and cnt["U"] < 16:
            k = cnt["U"]; cnt["U"] += 1
            if k == 1: k = cnt["U"]; cnt["U"] += 1
            a(f"s_memrealtime s[{70+2*k}:{71+2*k}]")
    def trk():
        if o.trace == "K" and cnt["K"] < 16:
            k = cnt["K"]; cnt["K"] += 2
            a(f"s_memtime s[{70+2*k}:{71+2*k}]\ns_memrealtime s[{72+2*k}:{73+2*k}]")
    def tr(who):
        if o.trace == who and cnt[who] < 16:
            k = cnt[who]; cnt[who] += 1
            a(f"s_memtime s[{70+2*k}:{71+2*k}]")
    def tr_store(who, vt=0, tmp=24):
        if o.trace == who:
            a("s_waitcnt vmcnt(0) lgkmcnt(0)")
            for k in range(cnt[who], 14 if who == "E" else 16):
                a(f"s_mov_b32 s{70+2*k}, 0\ns_mov_b32 s{71+2*k}, 0")
            a(store_stamps(16, 16, 17, 2, base=70, nslot=16, vt=vt, tmp=tmp))
    a(f"""
    s_cmp_ge_u32 s2, {256 if o.helpers else 224}
    s_cbranch_scc1 L_end
    s_load_dwordx4 s[4:7], s[0:1], 0      ; x, wg
    s_load_dwordx4 s[8:11], s[0:1], 16
    s_load_dwordx4 s[12:15], s[0:1], 32
    s_load_dwordx2 s[16:17], s[0:1], 48   ; ws
    """)
    st(0); trk(); tru()
    a(f"""
    v_and_b32 v1, 63, v0                  ; lane
    v_lshrrev_b32 v2, 6, v0               ; wave
    s_and_b32 s19, s2, 7                  ; xcd
    v_readfirstlane_b32 s18, v2
    s_lshr_b32 s20, s2, 3                 ; within 0..27
    s_mul_i32 s21, s20, 37
    s_lshr_b32 s21, s21, 8                ; l4 = within/7  (0..3)
    s_mul_i32 s22, s21, 7
    s_sub_u32 s22, s20, s22               ; l7 = within%7  (0..6)
    s_and_b32 s52, s19, 3
    s_lshl_b32 s52, s52, 2
    s_add_u32 s52, s52, s21
    s_lshr_b32 s53, s19, 2
    s_mul_i32 s53, s53, 7
    s_add_u32 s53, s53, s22
    s_lshl_b32 s54, s19, 2
    s_add_u32 s54, s54, s21
    s_mov_b32 s55, s22
    s_mul_i32 s23, s21, {o.rmul}
    s_add_u32 s23, s23, s22
    s_cmp_ge_u32 s23, 7
    s_cselect_b32 s56, 7, 0
    s_sub_u32 s23, s23, s56
    """)
    if not o.rot: a("s_mov_b32 s23, 0")
    RT = 60
    for j in range(7):
        a(f"""
    s_add_u32 s{RT+j}, s23, {j}
    s_cmp_ge_u32 s{RT+j}, 7
    s_cselect_b32 s56, 7, 0
    s_sub_u32 s{RT+j}, s{RT+j}, s56
        """)
    a(f"""
    s_cmp_ge_u32 s2, 224
    s_cbranch_scc1 L_helper
    s_cmp_eq_u32 s18, 4
    s_cbranch_scc1 L_loader
    s_cmp_eq_u32 s18, 6
    s_cbranch_scc1 L_loader
    s_cmp_eq_u32 s18, 5
    s_cbranch_scc1 L_poller
    """)
    XF = 8; WB = 6; DB = 16; T = 24; PK = 40; FR = 48; ACCA = 112; ACCB = 176
    a(f"""
    v_lshrrev_b32 v24, 3, v1
    v_mul_u32_u24 v25, 896, v24
    v_and_b32 v26, 7, v1
    v_lshrrev_b32 v27, 4, v1
    v_xor_b32 v28, v26, v27
    v_lshl_add_u32 v2, v28, 4, v25
    v_xor_b32 v28, 4, v28
    v_lshl_add_u32 v3, v28, 4, v25
    s_mul_i32 s56, s52, {128*896}
    s_mul_i32 s57, s18, {32*896}
    s_add_u32 s56, s56, s57
    v_add_u32 v2, s56, v2
    s_add_u32 s56, s56, {8*896-1024}
    v_add_u32 v3, s56, v3
    v_add_u32 v4, {2*(8*896-1024)}, v2
    v_add_u32 v5, {2*(8*896-1024)}, v3
    v_mul_u32_u24 v25, 3584, v24
    v_bfe_u32 v27, v1, 4, 1
    v_lshlrev_b32 v28, 1, v27
    v_xor_b32 v28, v26, v28
    s_lshr_b32 s56, s18, 1
    s_lshl_b32 s57, s56, 2
    v_xor_b32 v28, s57, v28               ; ^ (mat<<2)
    v_lshl_add_u32 v48, v28, 4, v25
    s_lshl_b32 s57, s53, 8
    s_and_b32 s59, s18, 1
    s_mul_i32 s59, s59, {32*3584}
    s_add_u32 s57, s57, s59
    v_add_u32 v48, s57, v48
    v_add_u32 v49, {8*3584-1024}, v48
    v_add_u32 v50, {2*(8*3584-1024)}, v48
    v_add_u32 v51, {3*(8*3584-1024)}, v48
    s_lshl_b32 s57, s56, 13
    s_and_b32 s59, s18, 1
    s_lshl_b32 s59, s59, 12
    s_add_u32 s32, s57, s59
    s_add_u32 s32, s32, 114688
    s_lshl_b32 s58, s18, 12               ; c*4096
    s_waitcnt lgkmcnt(0)
    TRU
    s_cmp_eq_u32 s56, 0
    s_cselect_b32 s28, s6, s8
    s_cselect_b32 s29, s7, s9
    s_mov_b32 s30, {448*3584}
    s_mov_b32 s31, 0x20000
    """)
    srd(a, 24, 4, 2048 * 896)
    def xdma(s):
        a(f"""
    s_add_u32 s57, s58, {s*16384}
    s_mov_b32 m0, s57
    s_lshl_b32 s59, s{RT+s}, 7
    buffer_load_dwordx4 v2, s[24:27], s59 offen lds
    buffer_load_dwordx4 v3, s[24:27], s59 offen offset:1024 lds
    buffer_load_dwordx4 v4, s[24:27], s59 offen offset:2048 lds
    buffer_load_dwordx4 v5, s[24:27], s59 offen offset:3072 lds
        """)
    def wq(s):
        a(f"""
    s_add_u32 s57, s32, {s*16384}
    s_mov_b32 m0, s57
    s_mul_i32 s59, s{RT+s}, {64*3584}
    buffer_load_dwordx4 v48, s[28:31], s59 offen lds
    buffer_load_dwordx4 v49, s[28:31], s59 offen offset:1024 lds
    buffer_load_dwordx4 v50, s[28:31], s59 offen offset:2048 lds
    buffer_load_dwordx4 v51, s[28:31], s59 offen offset:3072 lds
        """)
    tr("S")
    if o.p_order == 1:
        xdma(0); wq(0)
        a("s_barrier")
        a("s_barrier")
        xdma(1); wq(1)
    else:
        xdma(0); wq(0); xdma(1); wq(1)
    tr("S"); tru()
    a("s_barrier")
    tr("S"); tru()
    if o.trace == "U":
        for n in (12, 8, 4, 0):
            a(f"s_waitcnt vmcnt({n})"); tru()
    if o.trace == "S":
        for n in (12, 8, 4, 0):
            a(f"s_waitcnt vmcnt({n})"); tr("S")
    srd(a, 40, 16, WS_SIZE)
    srd(a, 44, 12, 2048 * 896)
    a(f"""
    ; W A-frag bases
    v_lshrrev_b32 v24, 5, v1              ; h
    v_bfe_u32 v25, v1, 4, 1               ; mat / grp
    v_bfe_u32 v26, v1, 2, 2               ; rr
    v_and_b32 v27, 3, v1                  ; cc
    v_lshl_add_u32 v28, v24, 3, v26       ; 8h+rr
    v_lshlrev_b32 v28, 7, v28
    v_lshl_add_u32 v28, v25, 13, v28
    v_lshl_add_u32 v28, v27, 3, v28
    v_add_u32 v28, 114688, v28
    v_bfe_u32 v29, v1, 3, 1
    v_lshl_add_u32 v29, v25, 1, v29       ; g
    s_lshr_b32 s56, s18, 1
    s_lshl_b32 s56, s56, 1                ; 2fh
    v_xor_b32 v30, s56, v29
    v_lshl_add_u32 v6, v30, 5, v28
    v_xor_b32 v7, 32, v6
    ; x frag bases
    v_and_b32 v26, 31, v1
    v_bfe_u32 v27, v1, 1, 3
    v_xor_b32 v27, v27, v24
    v_lshlrev_b32 v27, 4, v27
    v_lshl_add_u32 v27, v26, 7, v27
    s_and_b32 s56, s18, 1
    s_lshl_b32 s56, s56, 13
    v_add_u32 v8, s56, v27
    v_xor_b32 v9, 32, v8
    v_xor_b32 v10, 64, v8
    v_xor_b32 v11, 96, v8
    v_add_u32 v12, 0x10000, v8
    v_add_u32 v13, 0x10000, v9
    v_add_u32 v14, 0x10000, v10
    v_add_u32 v15, 0x10000, v11
    ; Wd A-frag bases: row = 64kh + 4h + rr ; granule = (grp ^ 2b) ^ (2*kh) for acc0 (n2=kh)
    v_bfe_u32 v26, v1, 2, 2
    v_lshl_add_u32 v26, v24, 2, v26       ; 4h+rr
    s_lshr_b32 s56, s18, 1                ; kh
    s_lshl_b32 s57, s56, 6
    v_add_u32 v26, s57, v26
    v_lshlrev_b32 v26, 7, v26
    v_bfe_u32 v27, v1, 3, 1
    v_lshlrev_b32 v27, 1, v27
    v_xor_b32 v27, v27, v25
    s_lshl_b32 s57, s56, 1
    v_xor_b32 v27, s57, v27
    v_lshl_add_u32 v26, v27, 5, v26
    v_and_b32 v27, 3, v1
    v_lshl_add_u32 v16, v27, 3, v26
    v_xor_b32 v17, 64, v16
    v_lshlrev_b32 v22, 4, v1
    s_mov_b32 s70, {f2u(C0)}
    s_mov_b32 s68, {f2u(C1)}
    s_mov_b32 s69, {f2u(C1)}
    v_mov_b32 v23, s70
    v_mov_b32 v52, s70
    v_mov_b32 v53, s70
    ; h store soffsets: ((mt*4 + 2mh)*112 + fc*8 + 2fh)*1024 ; +i*112K, +pass*4096, +j*1024
    s_and_b32 s56, s18, 1
    s_lshl_b32 s56, s56, 1
    s_lshl_b32 s57, s52, 2
    s_add_u32 s56, s56, s57
    s_mul_i32 s56, s56, 112
    s_lshl_b32 s57, s53, 3
    s_add_u32 s56, s56, s57
    s_lshr_b32 s57, s18, 1
    s_lshl_b32 s57, s57, 1
    s_add_u32 s56, s56, s57
    s_lshl_b32 s36, s56, 10               ; pass A, i=0
    s_add_u32 s37, s36, {112*1024}        ; i=1
    s_add_u32 s38, s36, 4096              ; pass B
    s_add_u32 s39, s37, 4096
    """.replace("s_mov_b32 s70,", "s_mov_b32 s67,").replace("v23, s70", "v23, s67").replace("v202, s70", "v204, s67").replace("v203, s70", "v205, s67"))
    if not o.share_g:
        for i in range(128):
            a(f"v_mov_b32 v{ACCA+i}, 0")

    def p1_reads(n):
        s, q = n >> 2, n & 3
        b = FR + 16 * (n & 3)
        unit = s % 7
        xb = XF + q + (4 if unit >= 4 else 0)
        xo = (unit & 3) * 16384
        slot = s % 3
        r = []
        for i in range(2):
            r.append(f"ds_read_b128 v[{b+4*i}:{b+4*i+3}], v{xb} offset:{xo+i*4096}")
        for j in range(2):
            for e in range(2):
                r.append(f"ds_read_b64_tr_b16 v[{b+8+4*j+2*e}:{b+8+4*j+2*e+1}], v{WB+j} offset:{slot*16384+q*2048+e*512}")
        return [r[0], r[2], r[3], r[1], r[4], r[5]]
    def p1_mfmas(n):
        b = FR + 16 * (n & 3)
        acc = ACCA if (n < 28 or o.share_g) else ACCB
        m = []
        for j in range(2):
            for i in range(2):
                c = acc + 16 * (2 * j + i)
                src = "0" if (o.share_g and n in (0, 28)) else f"v[{c}:{c+15}]"
                m.append(f"{MF} v[{c}:{c+15}], v[{b+8+4*j}:{b+8+4*j+3}], v[{b+4*i}:{b+4*i+3}], {src}")
        return m
    def geglu_tile(acc, t, pas, tmp, pk, packed=False, cpair=None):
        j, i = t >> 1, t & 1
        g = acc + 16 * t
        L = []
        if not packed:
            for r in range(8): L.append((f"v_mul_f32 v{tmp+r}, v{g+r}, v{g+r}", 4))
            for r in range(8): L.append((f"v_fma_f32 v{tmp+r}, v{tmp+r}, s68, v23", 4))
            for r in range(8): L.append((f"v_mul_f32 v{tmp+r}, v{tmp+r}, v{g+r}", 4))
            for r in range(8): L.append((f"v_exp_f32 v{tmp+r}, v{tmp+r}", 8))
            for r in range(8): L.append((f"v_mul_f32 v{g+r}, v{g+r}, v{g+8+r}", 4))
            for r in range(8): L.append((f"v_add_f32 v{tmp+r}, 1.0, v{tmp+r}", 4))
            for r in range(8): L.append((f"v_rcp_f32 v{tmp+r}, v{tmp+r}", 8))
            L.append(("s_nop 0", 1))
            for r in range(8): L.append((f"v_mul_f32 v{g+r}, v{g+r}, v{tmp+r}", 4))
        else:
            P2 = lambda x: f"v[{x}:{x+1}]"
            for r in range(0, 8, 2): L.append((f"v_pk_mul_f32 {P2(tmp+r)}, {P2(g+r)}, {P2(g+r)}", 4))
            for r in range(0, 8, 2): L.append((f"v_pk_fma_f32 {P2(tmp+r)}, {P2(tmp+r)}, s[68:69], {P2(cpair)}", 4))
            for r in range(0, 8, 2): L.append((f"v_pk_mul_f32 {P2(tmp+r)}, {P2(tmp+r)}, {P2(g+r)}", 4))
            for r in range(8): L.append((f"v_exp_f32 v{tmp+r}, v{tmp+r}", 8))
            for r in range(0, 8, 2): L.append((f"v_pk_mul_f32 {P2(g+r)}, {P2(g+r)}, {P2(g+8+r)}", 4))
            for r in range(0, 8, 2): L.append((f"v_pk_add_f32 {P2(tmp+r)}, {P2(tmp+r)}, 1.0 op_sel_hi:[1,0]", 4))
            for r in range(8): L.append((f"v_rcp_f32 v{tmp+r}, v{tmp+r}", 8))
            L.append(("s_nop 0", 1))
            for r in range(0, 8, 2): L.append((f"v_pk_mul_f32 {P2(g+r)}, {P2(g+r)}, {P2(tmp+r)}", 4))
        for d in range(4): L.append((f"v_cvt_pk_bf16_f32 v{pk+d}, v{g+2*d}, v{g+2*d+1}", 4))
        so = 36 + 2 * pas + i
        L.append((f"buffer_store_dwordx4 v[{pk}:{pk+3}], v22, s[40:43], s{so} offen offset:{j*1024} {o.hst}", 4))
        return L
    a(f"""
    s_lshl_b32 s56, s54, 1
    s_and_b32 s57, s18, 1
    s_add_u32 s56, s56, s57
    s_mul_i32 s56, s56, 112
    s_lshr_b32 s57, s18, 1
    s_lshl_b32 s57, s57, 3
    s_add_u32 s56, s56, s57
    s_lshl_b32 s56, s56, 10
    v_mov_b32 v4, s67
    v_mov_b32 v5, s67
    """)
    a(f"""
    s_mov_b32 s24, s14
    s_mov_b32 s25, s15
    s_mov_b32 s26, 256
    s_mov_b32 s27, 0x20000
    ; per-lane B-flag offsets: lane = 2j + w2 (j<7): line of producer fc' = 2*((r+j)%7)+kh ; word 8*(mh_p + 2*w2)
    v_min_u32 v2, 13, v1
    v_and_b32 v3, 1, v2                   ; w2
    v_lshrrev_b32 v2, 1, v2               ; j
    v_add_u32 v2, s23, v2
    v_subrev_u32 v24, 7, v2
    v_cmp_le_u32 vcc, 7, v2
    s_nop 1
    v_cndmask_b32 v2, v2, v24, vcc
    v_lshlrev_b32 v2, 1, v2
    s_lshr_b32 s57, s18, 1
    v_add_u32 v2, s57, v2
    v_lshlrev_b32 v2, 7, v2
    v_lshl_add_u32 v2, v3, 4, v2          ; + 16*w2
    s_and_b32 s57, s54, 1
    s_lshl_b32 s57, s57, 3
    v_add_u32 v2, s57, v2                 ; + 8*mh_p
    s_lshr_b32 s32, s54, 1
    s_lshl_b32 s32, s32, 11
    s_add_u32 s32, s32, {FLAG_OFF + 16*16*128}
    s_lshl_b32 s21, s52, 4
    s_add_u32 s21, s21, s53
    s_lshl_b32 s21, s21, 7
    s_lshl_b32 s57, s18, 3
    s_add_u32 s21, s21, s57
    s_add_u32 s21, s21, {FLAG_OFF + 16*16*128}
    v_mov_b32 v3, 0
    """)
    UB = [48, 49, 50, 51, 33, 34, 35]
    for j in range(7):
        a(f"""
    s_cmp_eq_u32 s{RT+j}, 5
    s_cselect_b32 s57, 9, s{RT+j}
    s_cmp_eq_u32 s{RT+j}, 6
    s_cselect_b32 s57, 5, s57
    s_lshl_b32 s{UB[j]}, s57, 14
    s_lshl_b32 s{RT+j}, s{RT+j}, 14
    s_add_u32 s{RT+j}, s{RT+j}, s56
        """)
    ACC2 = 112 if o.share_g else 176
    HB0 = 176 if o.share_g else 112
    AFS = [96, 104, 240, 248]
    def hreg(n):
        m = n % 28
        return HB0 + 4 * m if m < 16 else 48 + 4 * (m - 16)
    def hload(n):
        p, j, v = n // 28, (n % 28) >> 2, n & 3
        b = hreg(n)
        r = []
        if p and v == 0: r.append(f"s_add_u32 s{RT+j}, s{RT+j}, 4096")
        r.append(f"buffer_load_dwordx4 v[{b}:{b+3}], v22, s[40:43], s{RT+j} offen offset:{v*1024} {o.hld}")
        return r

    vops = []
    preL = 0
    a("s_waitcnt vmcnt(8)")
    tr("C")
    a("s_barrier")
    tr("C")
    st(1); trk()
    for ins in p1_reads(0): a(ins)
    for ins in p1_reads(1): a(ins)
    for n in range(56):
        s, q = n >> 2, n & 3
        if q == 2:
            w = "s_waitcnt lgkmcnt(0)"
            if s + 1 in (1, o.flagA_bar): w = "s_waitcnt vmcnt(0) lgkmcnt(0)"
            a(w)
            a("s_barrier")
            tr("C")
            if s + 1 in (2, 7): trk()
        else:
            a("s_waitcnt lgkmcnt(6)" if n + 1 < 56 else "s_waitcnt lgkmcnt(0)")
        rd = p1_reads(n + 2) if n + 2 < 56 else []
        mf = p1_mfmas(n)
        for k in range(4):
            a(mf[k])
            lo, hi = ([0, 3, 6, 6], [3, 6, 6, 6]) if q == 1 else ([0, 2, 4, 5], [2, 4, 5, 6])
            for ins in rd[lo[k]:hi[k]]: a(ins)
        if n == 44:
            a("buffer_load_dwordx2 v[40:41], v3, s[24:27], 0 offen sc1")
            vops.append(("N", 0))
        if 50 <= n <= 55:
            per = [(o.pre_h + 5 - i) // 6 for i in range(6)] if o.pre_h > 4 else [1, 1, 1, 1, 0, 0]
            for _ in range(per[n - 50]):
                for ins in hload(preL): a(ins)
                vops.append(("L", preL)); preL += 1
        if n == 27:
            a("s_nop 7\ns_nop 7")
            if o.share_g:
                a("s_call_b64 s[8:9], L_geglu")
                a("s_add_u32 s36, s36, 4096\ns_add_u32 s37, s37, 4096")
            else:
                for t in range(4):
                    for ins, _ in geglu_tile(ACCA, t, 0, T + 8 * (t & 1), PK + 4 * (t & 1), packed=o.pk, cpair=4): a(ins)
    st(2); tr("D"); trk()
    pN = vops.index(("N", 0))
    a(f"""
    s_waitcnt vmcnt({len(vops) - 1 - pN})
    s_mov_b32 s28, 0
L_c_nonce:
    v_readfirstlane_b32 s30, v40
    v_readfirstlane_b32 s31, v41
    s_add_u32 s28, s28, 1
    s_nop 3
    s_or_b32 s29, s30, s31
    s_cmp_lg_u32 s29, 0
    s_cbranch_scc1 L_c_havenonce
    s_cmp_gt_u32 s28, {SPIN}
    s_cbranch_scc1 L_c_havenonce
    buffer_load_dwordx2 v[40:41], v3, s[24:27], 0 offen sc1
    s_waitcnt vmcnt(0)
    s_branch L_c_nonce
L_c_havenonce:
    """)
    a("s_nop 7")
    nextL = preL
    if o.share_g:
        a("s_call_b64 s[8:9], L_geglu")
        for t in range(4): vops.append(("S", t))
    else:
        late_stores = []
        for t in range(4):
            pkreg = (240 + 4 * t) if o.late_st else (PK + 4 * (t & 1))
            tile = geglu_tile(ACCB, t, 1, T + 8 * (t & 1), pkreg, packed=o.pk, cpair=4)
            nins = len(tile)
            nl = o.hl_per_tile[t]
            pos = [int((k + 0.5) * nins / nl) for k in range(nl)] if nl else []
            for idx, (ins, _) in enumerate(tile):
                if idx in pos:
                    for li in hload(nextL): a(li)
                    vops.append(("L", nextL)); nextL += 1
                if ins.startswith("buffer_store"):
                    if o.late_st:
                        late_stores.append((ins, t)); continue
                    vops.append(("S", t))
                a(ins)
        for ins, t in late_stores:
            a(ins); vops.append(("S", t))
    tr("D")
    a("s_barrier")
    st(3); tr("D"); tre()
    def unit_sgpr(n):
        p, j = n // 28, (n % 28) >> 2
        if p == 0: return (UB[j], 0)
        if j < 3: return (None, [7, 6, 8][j] * 16384)
        return (UB[j - 3], 0)
    def p2_reads(n):
        v = n & 3
        sg, so = unit_sgpr(n)
        ch = n >> 2
        ab = 18 + 2 * (ch & 1)
        b = AFS[n & 3]
        r = []
        if v == 0:
            for n2 in range(2):
                if sg is None:
                    r.append(f"v_add_u32 v{ab+n2}, {so}, v{16+n2}")
                else:
                    r.append(f"v_add_u32 v{ab+n2}, s{sg}, v{16+n2}")
        for n2 in range(2):
            for ee in range(2):
                r.append(f"ds_read_b64_tr_b16 v[{b+4*n2+2*ee}:{b+4*n2+2*ee+1}], v{ab+n2} offset:{v*2048+ee*1024}")
        return r
    def p2_mfmas(n):
        b = AFS[n & 3]; hb = hreg(n)
        m = []
        for n2 in range(2):
            c = ACC2 + 16 * n2
            src = "0" if n == 0 else f"v[{c}:{c+15}]"
            m.append(f"{MF} v[{c}:{c+15}], v[{b+4*n2}:{b+4*n2+3}], v[{hb}:{hb+3}], {src}")
        return m
    if o.fast_tail:
        a(f"""
        s_lshl_b32 s56, s18, 12
        s_add_u32 s56, s56, s{UB[4]}
        v_add_u32 v8, s56, v22
        s_xor_b32 s57, s18, 2
        s_lshl_b32 s57, s57, 12
        s_add_u32 s57, s57, s{UB[4]}
        v_add_u32 v9, s57, v22
        v_and_b32 v10, 31, v1
        s_lshl_b32 s56, s54, 6
        s_and_b32 s57, s18, 1
        s_lshl_b32 s57, s57, 5
        s_add_u32 s56, s56, s57
        v_add_u32 v10, s56, v10
        v_mul_u32_u24 v10, 896, v10
        v_lshrrev_b32 v11, 5, v1
        v_lshl_add_u32 v10, v11, 4, v10
        s_lshl_b32 s56, s55, 7
        s_lshr_b32 s57, s18, 1
        s_lshl_b32 s57, s57, 6
        s_add_u32 s56, s56, s57
        v_add_u32 v10, s56, v10
        """)
    for n in range(3):
        for ins in p2_reads(n): a(ins)
    last_rd = 2
    def ensure(j):
        K = o.poll_k
        chk = f"""
    s_lshr_b32 s20, s29, {2*j}
    s_and_b32 s20, s20, 3
    s_cmp_eq_u32 s20, 3
"""
        a(chk + f"    s_cbranch_scc1 L_c_ok{j}")
        if K == 1:
            a(f"""
L_c_poll{j}:
    buffer_load_dwordx2 v[40:41], v2, s[40:43], s32 offen sc1
    s_waitcnt vmcnt(0)
    v_cmp_eq_u64 vcc, s[30:31], v[40:41]
    s_add_u32 s28, s28, 1
    s_nop 4
    s_and_b32 s29, vcc_lo, 0x3fff
    s_cmp_gt_u32 s28, {SPIN}
    s_cbranch_scc1 L_c_ok{j}
{chk}
    s_cbranch_scc0 L_c_poll{j}
            """)
        else:
            regs = [40, 42, 44][:K]
            for r in regs[:-1]:
                a(f"buffer_load_dwordx2 v[{r}:{r+1}], v2, s[40:43], s32 offen sc1\ns_nop 15\ns_nop 15")
            a(f"L_c_poll{j}:")
            for i in range(K):
                rin = regs[(i + K - 1) % K]; rout = regs[i]
                a(f"""
    buffer_load_dwordx2 v[{rin}:{rin+1}], v2, s[40:43], s32 offen sc1
    s_waitcnt vmcnt({K-1})
    v_cmp_eq_u64 vcc, s[30:31], v[{rout}:{rout+1}]
    s_add_u32 s28, s28, 1
    s_nop 4
    s_and_b32 s29, vcc_lo, 0x3fff
{chk}
    s_cbranch_scc1 L_c_ok{j}
                """)
            a(f"""
    s_cmp_gt_u32 s28, {SPIN}
    s_cbranch_scc0 L_c_poll{j}
            """)
        a(f"L_c_ok{j}:")
    def loadB(j):
        for v in range(4):
            for li in hload(28 + 4 * j + v):
                a(li)
    fb_step = o.fb_step if o.fb_step else nextL
    def issue_hA(k):
        nonlocal nextL
        for _ in range(k):
            if nextL <= 27:
                for li in hload(nextL): a(li)
                vops.append(("L", nextL)); nextL += 1
    def younger(tag):
        return len(vops) - 1 - vops.index(tag)
    issue_hA(o.g_loads)
    tB = o.b_sched
    for n in range(52 if o.fast_tail else 56):
        lg = 4 * (last_rd - n)
        assert 0 <= lg <= 12
        if n == fb_step:
            a(f"s_waitcnt vmcnt({younger(('S', 3))})")
            tr("D")
            a(f"""
    v_mov_b32 v42, s30
    v_mov_b32 v43, s31
    s_mov_b64 exec, 1
    buffer_store_dwordx2 v[42:43], v3, s[40:43], s21 offen sc1
    s_mov_b64 exec, -1
            """)
            vops.append(("F", 0))
            st(4); tr("D"); tre()
        if n == tB[0]:
            tre()
            a(f"""
    s_waitcnt vmcnt({younger(('P', 0))})
    v_cmp_eq_u64 vcc, s[30:31], v[40:41]
    s_mov_b32 s28, 0
    s_nop 4
    s_and_b32 s29, vcc_lo, 0x3fff
            """)
            tre()
        for j in range(7):
            if tB[j] == n:
                assert n > 4 * j + 3 and nextL == 28
                ensure(j); loadB(j)
                for v in range(4): vops.append(("L", 28 + 4 * j + v))
                if j == 0: st(5); trk()
        a(f"s_waitcnt vmcnt({min(63, younger(('L', n)))}) lgkmcnt({lg})")
        if n in (0, 28, 29, 37, 44): tr("D")
        if n in (27, 28, 32, 36, 40, 48, 55): tre()
        if n == 15: a("s_barrier")
        if n == 37: a("s_barrier")
        if n == 37: tr("D")
        nr = n + 3
        rd = []
        if nr < 56:
            rd = p2_reads(nr); last_rd = nr
        mf = p2_mfmas(n)
        a(mf[0])
        for ins in rd[:-2]: a(ins)
        a(mf[1])
        for ins in rd[-2:]: a(ins)
        if n < 28: issue_hA(o.hl_rate)
        if n == o.b_poll_step:
            a("buffer_load_dwordx2 v[40:41], v2, s[40:43], s32 offen sc1")
            vops.append(("P", 0))
    if o.fast_tail:
        assert last_rd == 54
        for ins in p2_reads(55): a(ins)
        last_rd = 55
        for n in range(52, 56):
            a(f"s_waitcnt vmcnt({min(63, younger(('L', n)))}) lgkmcnt({4 * (55 - n)})")
            a(p2_mfmas(n)[1])
        a(p2_mfmas(52)[0]); a(p2_mfmas(53)[0])
        a("s_nop 9")
        for i in range(4):
            c = ACC2 + 16 + 4 * i
            a(f"ds_write_b128 v8, v[{c}:{c+3}] offset:{i*1024}")
        a(p2_mfmas(54)[0]); a(p2_mfmas(55)[0])
    st(6); tr("D"); trk()
    if not o.fast_tail:
        a(f"""
        s_lshl_b32 s56, s18, 12
        s_add_u32 s56, s56, s{UB[4]}
        v_add_u32 v8, s56, v22
        s_xor_b32 s57, s18, 2
        s_lshl_b32 s57, s57, 12
        s_add_u32 s57, s57, s{UB[4]}
        v_add_u32 v9, s57, v22
        v_and_b32 v10, 31, v1
        s_lshl_b32 s56, s54, 6
        s_and_b32 s57, s18, 1
        s_lshl_b32 s57, s57, 5
        s_add_u32 s56, s56, s57
        v_add_u32 v10, s56, v10
        v_mul_u32_u24 v10, 896, v10
        v_lshrrev_b32 v11, 5, v1
        v_lshl_add_u32 v10, v11, 4, v10
        s_lshl_b32 s56, s55, 7
        s_lshr_b32 s57, s18, 1
        s_lshl_b32 s57, s57, 6
        s_add_u32 s56, s56, s57
        v_add_u32 v10, s56, v10
        s_nop 7
        """)
    if not o.fast_tail:
        for i in range(4):
            c = ACC2 + 16 + 4 * i
            a(f"ds_write_b128 v8, v[{c}:{c+3}] offset:{i*1024}")
    a("s_waitcnt lgkmcnt(0)\ns_barrier")
    if o.fast_tail: a("s_nop 7")
    for i in range(4):
        a(f"ds_read_b128 v[{48+4*i}:{51+4*i}], v9 offset:{i*1024}")
    for i in range(4):
        a(f"s_waitcnt lgkmcnt({3-i})")
        for k in range(4):
            a(f"v_add_f32 v{ACC2+4*i+k}, v{ACC2+4*i+k}, v{48+4*i+k}")
        a(f"v_cvt_pk_bf16_f32 v{64+2*i}, v{ACC2+4*i}, v{ACC2+4*i+1}")
        a(f"v_cvt_pk_bf16_f32 v{65+2*i}, v{ACC2+4*i+2}, v{ACC2+4*i+3}")
        if i & 1:
            b = 64 + 4 * (i >> 1)
            a("s_nop 1")
            a(f"v_permlane32_swap_b32 v{b}, v{b+2}")
            a(f"v_permlane32_swap_b32 v{b+1}, v{b+3}")
            a(f"buffer_store_dwordx4 v[{b}:{b+3}], v10, s[44:47], 0 offen offset:{(i>>1)*32} {o.outsc}")
    if o.delay_end:
        a(f"s_mov_b32 s56, {o.delay_end // 20}\nL_dly:\ns_nop 15\ns_sub_u32 s56, s56, 1\ns_cmp_lg_u32 s56, 0\ns_cbranch_scc1 L_dly")
    if o.trace in ("C", "S", "D", "K", "U", "E"):
        trk()
        tr("D")
        a("s_cmp_lg_u32 s18, 0\ns_cbranch_scc1 L_end")
        tr_store(o.trace)
    if o.stamps:
        a("s_waitcnt vmcnt(0)")
        st(7)
        a("s_cmp_lg_u32 s18, 0\ns_cbranch_scc1 L_end")
        if o.dbgst:
            a("s_cmp_lg_u32 s2, 100\ns_cbranch_scc1 L_end\ns_waitcnt lgkmcnt(0)")
            a("s_mov_b32 s48, s14\ns_mov_b32 s49, s15\ns_mov_b32 s50, 256\ns_mov_b32 s51, 0x20000\nv_mov_b32 v0, 0\ns_mov_b64 exec, 1")
            a("v_mov_b32 v2, s80\nbuffer_store_dword v2, v0, s[48:51], 0 offen offset:16")
            for k in range(1, 8):
                a(f"s_sub_u32 s56, s{80+2*k}, s80\nv_mov_b32 v2, s56\nbuffer_store_dword v2, v0, s[48:51], 0 offen offset:{16+4*k}\ns_nop 1")
        else:
            a(store_stamps(8, 16, 17, 2, vt=0, tmp=72))
    a("s_endpgm")

    if o.share_g:
        a("L_geglu:")
        for t in range(4):
            for ins, _ in geglu_tile(ACCA, t, 0, T + 8 * (t & 1), PK + 4 * (t & 1), packed=o.pk, cpair=4): a(ins)
        a("s_setpc_b64 s[8:9]")
    a("L_loader:")
    a(f"""
    s_setprio 3
    v_lshrrev_b32 v24, 3, v1
    v_mul_u32_u24 v25, 3584, v24
    v_and_b32 v26, 7, v1
    v_bfe_u32 v27, v1, 4, 1
    v_lshlrev_b32 v28, 1, v27
    v_xor_b32 v28, v26, v28               ; c gate
    v_lshl_add_u32 v2, v28, 4, v25
    v_xor_b32 v28, 4, v28
    v_lshl_add_u32 v6, v28, 4, v25
    s_lshl_b32 s56, s53, 8
    v_add_u32 v2, s56, v2
    v_add_u32 v6, s56, v6
    """)
    for k in range(1, 4):
        a(f"v_add_u32 v{2+k}, {k*(8*3584-1024)}, v2\nv_add_u32 v{6+k}, {k*(8*3584-1024)}, v6")
    a(f"""
    v_mul_u32_u24 v25, 896, v24
    v_lshlrev_b32 v28, 2, v27
    v_xor_b32 v28, v26, v28
    v_lshl_add_u32 v10, v28, 4, v25
    s_lshl_b32 s56, s55, 7
    v_add_u32 v10, s56, v10
    """)
    for k in range(1, 4):
        a(f"v_add_u32 v{10+k}, {k*(8*896-1024)}, v10")
    a(f"""
    v_lshrrev_b32 v27, 4, v1
    v_xor_b32 v28, v26, v27
    v_lshl_add_u32 v14, v28, 4, v25
    v_xor_b32 v28, 4, v28
    v_lshl_add_u32 v15, v28, 4, v25
    s_mul_i32 s56, s52, {128*896}
    v_add_u32 v14, s56, v14
    s_add_u32 s56, s56, {8*896-1024}
    v_add_u32 v15, s56, v15
    v_add_u32 v16, {2*(8*896-1024)}, v14
    v_add_u32 v17, {2*(8*896-1024)}, v15
    """)
    LT = 70 if o.trace == "L" else 80
    XT, WT, DT = 20, 44, 36+16
    for j in range(4):
        a(f"""
    s_cmp_eq_u32 s{RT+j}, 5
    s_cselect_b32 s56, 9, s{RT+j}
    s_cmp_eq_u32 s{RT+j}, 6
    s_cselect_b32 s56, 5, s56
    s_lshl_b32 s{72+j}, s56, 14
        """)
    for j in range(7):
        a(f"s_lshl_b32 s{33+j}, s{RT+j}, 7")
        a(f"s_mul_i32 s{44+j}, s{RT+j}, {64*3584}")
        a(f"s_mul_i32 s{RT+j}, s{RT+j}, {256*896}")
    a("s_waitcnt lgkmcnt(0)")
    srd(a, 24, 4, 2048 * 896)
    srd(a, 28, 6, 448 * 3584)
    a(f"""
    s_mov_b32 s56, s8
    s_mov_b32 s57, s9
    s_mov_b32 s58, {448*3584}
    s_mov_b32 s59, 0x20000
    s_mov_b32 s68, s10
    s_mov_b32 s69, s11
    """)
    a(f"""
    s_mov_b32 s20, s10
    s_mov_b32 s21, s11
    s_mov_b32 s22, {1792*896}
    s_mov_b32 s23, 0x20000
    """)
    def loader_body(role):
        order = []
        def xdmaL(s):
            for g in range(4):
                a(f"s_mov_b32 m0, {s*16384 + g*4096}")
                a(f"s_add_u32 s67, s{33+s}, {g*32*896}")
                for k in range(4):
                    a(f"buffer_load_dwordx4 v{14+k}, s[24:27], s67 offen offset:{k*1024} lds")
                    order.append(("W", s))
        def wdma(s):
            slot = s % 3; pas = s // 7; ss = s % 7
            for mat in range(2):
                sr = "s[28:31]" if mat == 0 else "s[56:59]"
                for g in range(2):
                    a(f"s_mov_b32 m0, {114688 + slot*16384 + mat*8192 + g*4096}")
                    a(f"s_add_u32 s67, s{44+ss}, {32*g*3584 + pas*128}")
                    for k in range(4):
                        a(f"buffer_load_dwordx4 v{2+4*mat+k}, {sr}, s67 offen offset:{k*1024} lds")
                        order.append(("W", s))
        def ddma(p, j, unit, phys=False, dyn_unit=None):
            for g in range(4):
                if dyn_unit is None:
                    a(f"s_mov_b32 m0, {unit*16384 + g*4096}")
                else:
                    a(f"s_add_u32 m0, s{dyn_unit}, {g*4096}")
                if phys:
                    a(f"s_mov_b32 s67, {(256*j + 128*(g>>1) + 64*p + 32*(g&1))*896}")
                else:
                    a(f"s_add_u32 s67, s{RT+j}, {(128*(g>>1) + 64*p + 32*(g&1))*896}")
                for k in range(4):
                    a(f"buffer_load_dwordx4 v{10+k}, s[20:23], s67 offen offset:{k*1024} lds")
                    order.append(("D", p, j))
        def wait_tag(tag):
            idx = [i for i, t in enumerate(order) if t == tag]
            if not idx: return
            n = len(order) - 1 - max(idx)
            a(f"s_waitcnt vmcnt({min(n, 63)})")
        def room(k):
            a(f"s_waitcnt vmcnt({63-k})")
        doW = role in ("all", "W"); doX = role in ("all", "X")
        tr("L")
        if o.p_order == 1:
            a("s_barrier\ns_barrier")
        a("s_barrier")
        for i in range(15):
            if 2 <= i <= 13: wait_tag(("W", i))
            tr("L")
            a("s_barrier")
            if doX and i + 2 <= 6:
                room(16); xdmaL(i + 2)
            if doW and i + 2 <= 13:
                room(16); wdma(i + 2)
            if doX:
                if 8 <= i <= 12:
                    room(16); ddma(0, i - 8, i - 8, phys=True)
                if i == 12:
                    room(16); ddma(0, 5, 9, phys=True)
                if i == 13:
                    room(16); ddma(0, 6, 5, phys=True)
                    room(16); ddma(1, 0, 7)
                if i == 14 and not o.b12_late:
                    room(16); ddma(1, 1, 6)
                    room(16); ddma(1, 2, 8)
        if role == "W":
            a("s_endpgm")
            return
        a("s_waitcnt vmcnt(0)")
        a("LST0")
        a("s_barrier")
        if o.b12_late:
            room(16); ddma(1, 1, 6)
            room(16); ddma(1, 2, 8)
            a("s_waitcnt vmcnt(0)")
        a("s_barrier")
        a("LST1")
        for j in (3, 4, 5, 6):
            room(16); ddma(1, j, None, dyn_unit=72 + j - 3)
        a("LST2")
        a("s_waitcnt vmcnt(0)")
        a("LST4")
        a("s_barrier")
        a("LSTORE")
        tr_store("L", tmp=24)
        a("s_endpgm")
    if o.two_l:
        a("s_cmp_eq_u32 s18, 6\ns_cbranch_scc1 L_loaderX")
        loader_body("W")
        a("L_loaderX:")
        loader_body("X")
    else:
        loader_body("all")

    a("L_poller:")
    a(f"""
    s_setprio 3
    s_mul_i32 s56, s21, 112
    v_lshrrev_b32 v4, 3, v1
    v_add_u32 v4, s56, v4
    v_mul_u32_u24 v4, 3584, v4
    v_and_b32 v5, 7, v1
    v_lshl_add_u32 v4, v5, 4, v4
    s_lshl_b32 s56, s53, 8
    s_add_u32 s56, s56, 128
    v_add_u32 v4, s56, v4
    v_lshrrev_b32 v16, 3, v1
    s_and_b32 s56, s21, 1
    s_lshl_b32 s56, s56, 5
    v_add_u32 v16, s56, v16
    v_mul_u32_u24 v16, 3584, v16
    v_lshl_add_u32 v16, v5, 4, v16
    s_lshl_b32 s56, s53, 8
    v_add_u32 v16, s56, v16
    s_add_u32 s60, s22, 4
    s_cmp_ge_u32 s60, 7
    s_cselect_b32 s56, 7, 0
    s_sub_u32 s60, s60, s56
    s_add_u32 s61, s60, 1
    s_cmp_ge_u32 s61, 7
    s_cselect_b32 s56, 7, 0
    s_sub_u32 s61, s61, s56
    s_add_u32 s62, s61, 1
    s_cmp_ge_u32 s62, 7
    s_cselect_b32 s56, 7, 0
    s_sub_u32 s62, s62, s56
    s_mul_i32 s60, s60, {64*3584}
    s_mul_i32 s61, s61, {64*3584}
    s_mul_i32 s62, s62, {64*3584}
    v_mov_b32 v2, 0
    v_lshlrev_b32 v13, 20, v1
    s_waitcnt lgkmcnt(0)
    """)
    srd(a, 28, 6, 448 * 3584)
    srd(a, 32, 8, 448 * 3584)
    srd(a, 40, 16, WS_SIZE)
    srd(a, 44, 12, 2048 * 896)
    srd(a, 48, 14, 256)
    a(f"""
    s_lshr_b32 s56, s21, 1
    s_cmp_eq_u32 s56, 0
    s_cselect_b32 s64, s6, s8
    s_cselect_b32 s65, s7, s9
    s_mov_b32 s66, {448*3584}
    s_mov_b32 s67, 0x20000
    """)
    def wa_rest(sreg, base):
        for i in range(4):
            a(f"s_add_u32 s56, s{sreg}, {i*8*3584}")
            a(f"buffer_load_dwordx4 v[{base+4*i}:{base+4*i+3}], v16, s[64:67], s56 offen")
    if o.prefetch and o.rmul == 1:
        wa_rest(60, 100)
    a(f"""
    s_cmp_lg_u32 s2, 0
    s_cbranch_scc1 L_p_nonce
    s_memrealtime s[70:71]
    s_waitcnt lgkmcnt(0)
    v_mov_b32 v6, s70
    v_mov_b32 v7, s71
    s_mov_b64 exec, 1
    buffer_store_dwordx2 v[6:7], v2, s[48:51], 0 offen sc1
    s_mov_b64 exec, -1
L_p_nonce:
    """)
    def pbatch():
        if o.prefetch:
            for k in range(14):
                a(f"s_mov_b32 s56, {k*8*3584}")
                a(f"buffer_load_dwordx4 v[{20+8*(k%8)}:{23+8*(k%8)}], v4, s[28:31], s56 offen")
                a(f"buffer_load_dwordx4 v[{24+8*(k%8)}:{27+8*(k%8)}], v4, s[32:35], s56 offen")
    if o.p_order == 1:
        a("s_barrier"); pbatch(); a("s_barrier")
    a("s_barrier")
    if o.p_order == 0: pbatch()
    a(f"""
    s_mov_b64 exec, 0x1ff
    buffer_load_dword v14, v13, s[40:43], 0 offen
    s_mov_b64 exec, 3
    buffer_load_dword v15, v13, s[44:47], 0 offen
    s_mov_b64 exec, -1
    s_lshl_b32 s72, s52, 4
    s_add_u32 s72, s72, s53
    s_lshl_b32 s72, s72, 7
    s_add_u32 s72, s72, {FLAG_OFF}
    s_add_u32 s73, s72, {16*16*128}
    s_lshr_b32 s74, s54, 1
    s_lshl_b32 s74, s74, 11
    s_add_u32 s74, s74, {FLAG_OFF}
    s_add_u32 s75, s74, {16*16*128}
    v_min_u32 v8, 13, v1
    v_lshlrev_b32 v8, 7, v8
    """)
    for i in range(9):
        a("s_barrier")
        if o.p_order == 2 and i == 0:
            for _ in range(5): a("s_nop 15")
            pbatch()
        if o.p_order == 3 and i == 1:
            pbatch()
        if o.p_order == 4 and i == 0:
            pbatch()
        if o.p_order in (5, 6) and i == o.p_order - 3:
            pbatch()
        if i == 7:
            a("buffer_load_dwordx2 v[6:7], v2, s[48:51], 0 offen sc1")
    a(f"""
    s_mov_b32 s76, 0
L_p_chknonce:
    s_waitcnt vmcnt(0)
    v_readfirstlane_b32 s70, v6
    v_readfirstlane_b32 s71, v7
    s_add_u32 s76, s76, 1
    s_nop 3
    s_or_b32 s56, s70, s71
    s_cmp_lg_u32 s56, 0
    s_cbranch_scc1 L_p_havenonce
    s_cmp_gt_u32 s76, {SPIN}
    s_cbranch_scc1 L_p_havenonce
    buffer_load_dwordx2 v[6:7], v2, s[48:51], 0 offen sc1
    s_branch L_p_chknonce
L_p_havenonce:
    s_barrier                              ; R_9
    PST0
    s_mov_b64 exec, 1
    buffer_store_dwordx2 v[6:7], v2, s[40:43], s72 offen sc1     ; flag A
    s_mov_b64 exec, -1
    s_barrier                              ; R_10
    s_barrier                              ; R_11
    buffer_load_dwordx2 v[10:11], v8, s[40:43], s74 offen sc1
    s_barrier                              ; R_12
    s_mov_b32 s76, 0
L_p_pollA:
    s_waitcnt vmcnt(0)
    v_cmp_ne_u64 vcc, s[70:71], v[10:11]
    s_add_u32 s76, s76, 1
    s_nop 4
    s_cbranch_vccz L_p_gotA
    s_cmp_gt_u32 s76, {SPIN}
    s_cbranch_scc1 L_p_gotA
    buffer_load_dwordx2 v[10:11], v8, s[40:43], s74 offen sc1
    s_branch L_p_pollA
L_p_gotA:
    PST1
    s_barrier                              ; R_13
    s_barrier                              ; R_14
    s_barrier                              ; G
    PST4
    PSTORE
    s_endpgm
L_helper:
    s_sub_u32 s56, s2, 224
    s_lshr_b32 s56, s56, 3
    s_mul_i32 s56, s56, {NW}
    s_add_u32 s56, s56, s18
    v_lshlrev_b32 v2, 4, v1
CODEPF
    s_waitcnt lgkmcnt(0)
    s_mov_b32 s36, s10
    s_mov_b32 s37, s11
    s_mov_b32 s38, {1792*896}
    s_mov_b32 s39, 0x20000
    s_mul_i32 s62, s19, 7
    s_lshr_b32 s62, s62, 2
HROT
HDELAY
L_h_loop:
    ; KB index k=s56 in [0,1568): part = k>=784 ; kk = k - 784*part ; block b = kk/56, off = kk%56 : addr = (128b + 64*part)*896 + off*1024
    s_cmp_ge_u32 s56, 784
    s_cselect_b32 s60, 784, 0
    s_cselect_b32 s61, {64*896}, 0
    s_sub_u32 s60, s56, s60
    s_mul_i32 s58, s60, 1171
    s_lshr_b32 s58, s58, 16               ; kk/56
    s_mul_i32 s59, s58, 56
    s_sub_u32 s59, s60, s59
    s_lshl_b32 s59, s59, 10
    s_add_u32 s58, s58, s62
    s_cmp_ge_u32 s58, 14
    s_cselect_b32 s63, 14, 0
    s_sub_u32 s58, s58, s63
    s_mul_i32 s58, s58, {128*896}
    s_add_u32 s58, s58, s59
    s_add_u32 s58, s58, s61
    buffer_load_dwordx4 v[4:7], v2, s[36:39], s58 offen
    s_waitcnt vmcnt(40)
    s_add_u32 s56, s56, {4*NW}
    s_cmp_lt_u32 s56, 1568
    s_cbranch_scc1 L_h_loop
L_end:
    s_endpgm
    """)
    a(rodata_begin())
    a(descriptor(KN, vgpr=256, sgpr=102))
    txt = a.text()
    codepf = """    ; prefetch this kernel's code into the XCD's L2: wave index hx*6+w loads KB number k, k+24
    s_getpc_b64 s[40:41]
L_pc_here:
    s_add_u32 s40, s40, KSTART-L_pc_here
    s_addc_u32 s41, s41, -1
    s_lshl_b32 s57, s56, 10
    v_add_u32 v3, s57, v2
    v_min_u32 v3, KEND-KSTART-16, v3
    global_load_dwordx4 v[8:11], v3, s[40:41]
    v_add_u32 v3, 24576, v3
    v_min_u32 v3, KEND-KSTART-16, v3
    global_load_dwordx4 v[12:15], v3, s[40:41]
"""
    txt = txt.replace("CODEPF\n", codepf if o.codepf else "")
    txt = txt.replace(KN + ":\n", KN + ":\nKSTART:\n", 1)
    txt = txt.replace("L_end:\n    s_endpgm\n", "L_end:\n    s_endpgm\nKEND:\n")
    txt = txt.replace("    TRU\n", "    s_memrealtime s[72:73]\n" if o.trace == "U" else "")
    txt = txt.replace("HROT\n", "" if o.hrot else "    s_mov_b32 s62, 0\n")
    txt = txt.replace("HDELAY\n", "".join("    s_sleep 16\n" for _ in range(o.hdelay)))
    for k in range(5):
        txt = txt.replace(f"    PST{k}\n", f"    s_memrealtime s[{80+2*k}:{81+2*k}]\n" if o.stamps else "")
    txt = txt.replace("    PSTORE\n", ("s_add_u32 s2, s2, 256\n" + store_stamps(5, 16, 17, 2, vt=20, tmp=56)) if (o.stamps and not o.dbgst) else "")
    for k in range(6):
        txt = txt.replace(f"LST{k}\n", f"s_memrealtime s[{80+2*k}:{81+2*k}]\n" if o.stamps else "")
    txt = txt.replace("LSTORE\n", ("s_add_u32 s2, s2, 512\n" + store_stamps(6, 16, 17, 2, vt=20, tmp=56)) if (o.stamps and not o.dbgst) else "")
    open(name, "w").write(txt)

if __name__ == "__main__":
    def base():
        o = Opt(); o.b_poll_step = 17; o.b_sched = (24, 26, 27, 30, 33, 37, 41); o.pre_h = 4; o.b12_late = False
        o.share_g = False; o.fast_tail = False; o.p_order = 3; return o
    o = base(); gen("r0.s", o)
    o = base(); o.share_g = True; o.fast_tail = True; gen("r1.s", o)
    o = base(); o.prefetch = False; gen("r2.s", o)
    o = base(); o.b_poll_step = 20; o.b_sched = (26, 27, 28, 31, 34, 38, 42); gen("r3.s", o)
    o = base(); o.b_poll_step = 13; o.b_sched = (20, 22, 24, 27, 30, 34, 38); gen("r4.s", o)
    o = base(); o.hl_rate = 4; o.g_loads = 8; gen("r5.s", o)
    o = base(); o.flagA_bar = 10; gen("r6.s", o)
```

```python
import sys, struct
from asmlib import *

def f2u(x):
    return struct.unpack("<I", struct.pack("<f", x))[0]

C0 = -2.0 * 1.4426950408889634 * 0.7978845608028654
C1 = C0 * 0.044715
FLAG_OFF = 8 << 20
SPIN = 0x4000
WS_SIZE = 9 << 20
MF = "v_mfma_f32_32x32x16_bf16"

def srd(a, d, lo, size):
    a(f"""
    s_mov_b32 s{d}, s{lo}
    s_mov_b32 s{d+1}, s{lo+1}
    s_mov_b32 s{d+2}, {size}
    s_mov_b32 s{d+3}, 0x20000
    """)

class Opt:
    stamps = False
    prefetch = True
    geglu_steps = 26
    abl = ""
    trace = ""
    rot = True
    wd_start = 11
    pk = True
    helpers = True
    wbx4 = True
    extraH = True
    flagA_bar = 9
    hrot = True
    hst = 'sc1'
    hld = 'sc1'
    hl_per_tile = (0, 0, 0, 0)
    pre_sb_last = 19
    hl_rate = 3
    g_loads = 4
    pb_n = 14
    gray = False
    fast_tail = True
    share_g = True
    pre_h = 8
    b12_late = True
    late_st = False
    poll_k = 1
    two_l = True
    p_order = 0
    codepf = True
    fb_step = 0
    rmul = 2
    hdelay = 0
    delay_end = 0
    b_look = 2
    b_poll_step = 14
    b_sched = (22, 24, 26, 29, 32, 36, 40)
    outsc = 'sc1'
    dbgst = False
    sb_step = 15

def gen(name, o):
    a = Asm()
    NW = 7 if o.two_l else 6
    a(header([(KN, 256 if o.helpers else 224, NW * 64, 163840)]))
    a(kernel_begin(KN))
    st = (lambda k: a(f"s_memrealtime s[{80+2*k}:{81+2*k}]")) if o.stamps else (lambda k: None)
    cnt = {"C": 0, "L": 0, "S": 0, "P": 0, "D": 0, "K": 0, "U": 0, "E": 0}
    def tre():
        if o.trace == "E" and cnt["E"] < 14:
            k = cnt["E"]; cnt["E"] += 1
            a(f"s_memrealtime s[{70+2*k}:{71+2*k}]")
    def tru():
        if o.trace == "U" and cnt["U"] < 16:
            k = cnt["U"]; cnt["U"] += 1
            if k == 1: k = cnt["U"]; cnt["U"] += 1
            a(f"s_memrealtime s[{70+2*k}:{71+2*k}]")
    def trk():
        if o.trace == "K" and cnt["K"] < 16:
            k = cnt["K"]; cnt["K"] += 2
            a(f"s_memtime s[{70+2*k}:{71+2*k}]\ns_memrealtime s[{72+2*k}:{73+2*k}]")
    def tr(who):
        if o.trace == who and cnt[who] < 16:
            k = cnt[who]; cnt[who] += 1
            a(f"s_memtime s[{70+2*k}:{71+2*k}]")
    def tr_store(who, vt=0, tmp=24):
        if o.trace == who:
            a("s_waitcnt vmcnt(0) lgkmcnt(0)")
            for k in range(cnt[who], 14 if who == "E" else 16):
                a(f"s_mov_b32 s{70+2*k}, 0\ns_mov_b32 s{71+2*k}, 0")
            a(store_stamps(16, 16, 17, 2, base=70, nslot=16, vt=vt, tmp=tmp))
    a(f"""
    s_cmp_ge_u32 s2, {256 if o.helpers else 224}
    s_cbranch_scc1 L_end
    s_load_dwordx4 s[4:7], s[0:1], 0      ; x, wg
    s_load_dwordx4 s[8:11], s[0:1], 16
    s_load_dwordx4 s[12:15], s[0:1], 32
    s_load_dwordx2 s[16:17], s[0:1], 48   ; ws
    """)
    st(0); trk(); tru()
    a(f"""
    v_and_b32 v1, 63, v0                  ; lane
    v_lshrrev_b32 v2, 6, v0               ; wave
    s_and_b32 s19, s2, 7                  ; xcd
    v_readfirstlane_b32 s18, v2
    s_lshr_b32 s20, s2, 3                 ; within 0..27
    s_mul_i32 s21, s20, 37
    s_lshr_b32 s21, s21, 8                ; l4 = within/7  (0..3)
    s_mul_i32 s22, s21, 7
    s_sub_u32 s22, s20, s22               ; l7 = within%7  (0..6)
    s_and_b32 s52, s19, 3
    s_lshl_b32 s52, s52, 2
    s_add_u32 s52, s52, s21
    s_lshr_b32 s53, s19, 2
    s_mul_i32 s53, s53, 7
    s_add_u32 s53, s53, s22
    s_lshl_b32 s54, s19, 2
    s_add_u32 s54, s54, s21
    s_mov_b32 s55, s22
    s_mul_i32 s23, s21, {o.rmul}
    s_add_u32 s23, s23, s22
    s_cmp_ge_u32 s23, 7
    s_cselect_b32 s56, 7, 0
    s_sub_u32 s23, s23, s56
    """)
    if not o.rot: a("s_mov_b32 s23, 0")
    RT = 60
    for j in range(7):
        a(f"""
    s_add_u32 s{RT+j}, s23, {j}
    s_cmp_ge_u32 s{RT+j}, 7
    s_cselect_b32 s56, 7, 0
    s_sub_u32 s{RT+j}, s{RT+j}, s56
        """)
    a(f"""
    s_cmp_ge_u32 s2, 224
    s_cbranch_scc1 L_helper
    s_cmp_eq_u32 s18, 4
    s_cbranch_scc1 L_loader
    s_cmp_eq_u32 s18, 6
    s_cbranch_scc1 L_loader
    s_cmp_eq_u32 s18, 5
    s_cbranch_scc1 L_poller
    """)
    XF = 8; WB = 6; DB = 16; T = 24; PK = 40; FR = 48; ACCA = 112; ACCB = 176
    a(f"""
    v_lshrrev_b32 v24, 3, v1
    v_mul_u32_u24 v25, 896, v24
    v_and_b32 v26, 7, v1
    v_lshrrev_b32 v27, 4, v1
    v_xor_b32 v28, v26, v27
    v_lshl_add_u32 v2, v28, 4, v25
    v_xor_b32 v28, 4, v28
    v_lshl_add_u32 v3, v28, 4, v25
    s_mul_i32 s56, s52, {128*896}
    s_mul_i32 s57, s18, {32*896}
    s_add_u32 s56, s56, s57
    v_add_u32 v2, s56, v2
    s_add_u32 s56, s56, {8*896-1024}
    v_add_u32 v3, s56, v3
    v_add_u32 v4, {2*(8*896-1024)}, v2
    v_add_u32 v5, {2*(8*896-1024)}, v3
    v_mul_u32_u24 v25, 3584, v24
    v_bfe_u32 v27, v1, 4, 1
    v_lshlrev_b32 v28, 1, v27
    v_xor_b32 v28, v26, v28
    s_lshr_b32 s56, s18, 1
    s_lshl_b32 s57, s56, 2
    v_xor_b32 v28, s57, v28               ; ^ (mat<<2)
    v_lshl_add_u32 v48, v28, 4, v25
    s_lshl_b32 s57, s53, 8
    s_and_b32 s59, s18, 1
    s_mul_i32 s59, s59, {32*3584}
    s_add_u32 s57, s57, s59
    v_add_u32 v48, s57, v48
    v_add_u32 v49, {8*3584-1024}, v48
    v_add_u32 v50, {2*(8*3584-1024)}, v48
    v_add_u32 v51, {3*(8*3584-1024)}, v48
    s_lshl_b32 s57, s56, 13
    s_and_b32 s59, s18, 1
    s_lshl_b32 s59, s59, 12
    s_add_u32 s32, s57, s59
    s_add_u32 s32, s32, 114688
    s_lshl_b32 s58, s18, 12               ; c*4096
    s_waitcnt lgkmcnt(0)
    TRU
    s_cmp_eq_u32 s56, 0
    s_cselect_b32 s28, s6, s8
    s_cselect_b32 s29, s7, s9
    s_mov_b32 s30, {448*3584}
    s_mov_b32 s31, 0x20000
    """)
    srd(a, 24, 4, 2048 * 896)
    def xdma(s):
        a(f"""
    s_add_u32 s57, s58, {s*16384}
    s_mov_b32 m0, s57
    s_lshl_b32 s59, s{RT+s}, 7
    buffer_load_dwordx4 v2, s[24:27], s59 offen lds
    buffer_load_dwordx4 v3, s[24:27], s59 offen offset:1024 lds
    buffer_load_dwordx4 v4, s[24:27], s59 offen offset:2048 lds
    buffer_load_dwordx4 v5, s[24:27], s59 offen offset:3072 lds
        """)
    def wq(s):
        a(f"""
    s_add_u32 s57, s32, {s*16384}
    s_mov_b32 m0, s57
    s_mul_i32 s59, s{RT+s}, {64*3584}
    buffer_load_dwordx4 v48, s[28:31], s59 offen lds
    buffer_load_dwordx4 v49, s[28:31], s59 offen offset:1024 lds
    buffer_load_dwordx4 v50, s[28:31], s59 offen offset:2048 lds
    buffer_load_dwordx4 v51, s[28:31], s59 offen offset:3072 lds
        """)
    tr("S")
    if o.p_order == 1:
        xdma(0); wq(0)
        a("s_barrier")
        a("s_barrier")
        xdma(1); wq(1)
    else:
        xdma(0); wq(0); xdma(1); wq(1)
    tr("S"); tru()
    a("s_barrier")
    tr("S"); tru()
    if o.trace == "U":
        for n in (12, 8, 4, 0):
            a(f"s_waitcnt vmcnt({n})"); tru()
    if o.trace == "S":
        for n in (12, 8, 4, 0):
            a(f"s_waitcnt vmcnt({n})"); tr("S")
    srd(a, 40, 16, WS_SIZE)
    srd(a, 44, 12, 2048 * 896)
    a(f"""
    ; W A-frag bases
    v_lshrrev_b32 v24, 5, v1              ; h
    v_bfe_u32 v25, v1, 4, 1               ; mat / grp
    v_bfe_u32 v26, v1, 2, 2               ; rr
    v_and_b32 v27, 3, v1                  ; cc
    v_lshl_add_u32 v28, v24, 3, v26       ; 8h+rr
    v_lshlrev_b32 v28, 7, v28
    v_lshl_add_u32 v28, v25, 13, v28
    v_lshl_add_u32 v28, v27, 3, v28
    v_add_u32 v28, 114688, v28
    v_bfe_u32 v29, v1, 3, 1
    v_lshl_add_u32 v29, v25, 1, v29       ; g
    s_lshr_b32 s56, s18, 1
    s_lshl_b32 s56, s56, 1                ; 2fh
    v_xor_b32 v30, s56, v29
    v_lshl_add_u32 v6, v30, 5, v28
    v_xor_b32 v7, 32, v6
    ; x frag bases
    v_and_b32 v26, 31, v1
    v_bfe_u32 v27, v1, 1, 3
    v_xor_b32 v27, v27, v24
    v_lshlrev_b32 v27, 4, v27
    v_lshl_add_u32 v27, v26, 7, v27
    s_and_b32 s56, s18, 1
    s_lshl_b32 s56, s56, 13
    v_add_u32 v8, s56, v27
    v_xor_b32 v9, 32, v8
    v_xor_b32 v10, 64, v8
    v_xor_b32 v11, 96, v8
    v_add_u32 v12, 0x10000, v8
    v_add_u32 v13, 0x10000, v9
    v_add_u32 v14, 0x10000, v10
    v_add_u32 v15, 0x10000, v11
    ; Wd A-frag bases: row = 64kh + 4h + rr ; granule = (grp ^ 2b) ^ (2*kh) for acc0 (n2=kh)
    v_bfe_u32 v26, v1, 2, 2
    v_lshl_add_u32 v26, v24, 2, v26       ; 4h+rr
    s_lshr_b32 s56, s18, 1                ; kh
    s_lshl_b32 s57, s56, 6
    v_add_u32 v26, s57, v26
    v_lshlrev_b32 v26, 7, v26
    v_bfe_u32 v27, v1, 3, 1
    v_lshlrev_b32 v27, 1, v27
    v_xor_b32 v27, v27, v25
    s_lshl_b32 s57, s56, 1
    v_xor_b32 v27, s57, v27
    v_lshl_add_u32 v26, v27, 5, v26
    v_and_b32 v27, 3, v1
    v_lshl_add_u32 v16, v27, 3, v26
    v_xor_b32 v17, 64, v16
    v_lshlrev_b32 v22, 4, v1
    s_mov_b32 s70, {f2u(C0)}
    s_mov_b32 s68, {f2u(C1)}
    s_mov_b32 s69, {f2u(C1)}
    v_mov_b32 v23, s70
    v_mov_b32 v52, s70
    v_mov_b32 v53, s70
    ; h store soffsets: ((mt*4 + 2mh)*112 + fc*8 + 2fh)*1024 ; +i*112K, +pass*4096, +j*1024
    s_and_b32 s56, s18, 1
    s_lshl_b32 s56, s56, 1
    s_lshl_b32 s57, s52, 2
    s_add_u32 s56, s56, s57
    s_mul_i32 s56, s56, 112
    s_lshl_b32 s57, s53, 3
    s_add_u32 s56, s56, s57
    s_lshr_b32 s57, s18, 1
    s_lshl_b32 s57, s57, 1
    s_add_u32 s56, s56, s57
    s_lshl_b32 s36, s56, 10               ; pass A, i=0
    s_add_u32 s37, s36, {112*1024}        ; i=1
    s_add_u32 s38, s36, 4096              ; pass B
    s_add_u32 s39, s37, 4096
    """.replace("s_mov_b32 s70,", "s_mov_b32 s67,").replace("v23, s70", "v23, s67").replace("v202, s70", "v204, s67").replace("v203, s70", "v205, s67"))
    if not o.share_g:
        for i in range(128):
            a(f"v_mov_b32 v{ACCA+i}, 0")

    def p1_reads(n):
        s, q = n >> 2, n & 3
        b = FR + 16 * (n & 3)
        unit = s % 7
        xb = XF + q + (4 if unit >= 4 else 0)
        xo = (unit & 3) * 16384
        slot = s % 3
        r = []
        for i in range(2):
            r.append(f"ds_read_b128 v[{b+4*i}:{b+4*i+3}], v{xb} offset:{xo+i*4096}")
        for j in range(2):
            for e in range(2):
                r.append(f"ds_read_b64_tr_b16 v[{b+8+4*j+2*e}:{b+8+4*j+2*e+1}], v{WB+j} offset:{slot*16384+q*2048+e*512}")
        return [r[0], r[2], r[3], r[1], r[4], r[5]]
    def p1_mfmas(n):
        b = FR + 16 * (n & 3)
        acc = ACCA if (n < 28 or o.share_g) else ACCB
        m = []
        for j in range(2):
            for i in range(2):
                c = acc + 16 * (2 * j + i)
                src = "0" if (o.share_g and n in (0, 28)) else f"v[{c}:{c+15}]"
                m.append(f"{MF} v[{c}:{c+15}], v[{b+8+4*j}:{b+8+4*j+3}], v[{b+4*i}:{b+4*i+3}], {src}")
        if o.gray:
            m = [m[0], m[1], m[3], m[2]] if (n & 1) == 0 else [m[2], m[3], m[1], m[0]]
        return m
    def geglu_tile(acc, t, pas, tmp, pk, packed=False, cpair=None):
        j, i = t >> 1, t & 1
        g = acc + 16 * t
        L = []
        if not packed:
            for r in range(8): L.append((f"v_mul_f32 v{tmp+r}, v{g+r}, v{g+r}", 4))
            for r in range(8): L.append((f"v_fma_f32 v{tmp+r}, v{tmp+r}, s68, v23", 4))
            for r in range(8): L.append((f"v_mul_f32 v{tmp+r}, v{tmp+r}, v{g+r}", 4))
            for r in range(8): L.append((f"v_exp_f32 v{tmp+r}, v{tmp+r}", 8))
            for r in range(8): L.append((f"v_mul_f32 v{g+r}, v{g+r}, v{g+8+r}", 4))
            for r in range(8): L.append((f"v_add_f32 v{tmp+r}, 1.0, v{tmp+r}", 4))
            for r in range(8): L.append((f"v_rcp_f32 v{tmp+r}, v{tmp+r}", 8))
            L.append(("s_nop 0", 1))
            for r in range(8): L.append((f"v_mul_f32 v{g+r}, v{g+r}, v{tmp+r}", 4))
        else:
            P2 = lambda x: f"v[{x}:{x+1}]"
            for r in range(0, 8, 2): L.append((f"v_pk_mul_f32 {P2(tmp+r)}, {P2(g+r)}, {P2(g+r)}", 4))
            for r in range(0, 8, 2): L.append((f"v_pk_fma_f32 {P2(tmp+r)}, {P2(tmp+r)}, s[68:69], {P2(cpair)}", 4))
            for r in range(0, 8, 2): L.append((f"v_pk_mul_f32 {P2(tmp+r)}, {P2(tmp+r)}, {P2(g+r)}", 4))
            for r in range(8): L.append((f"v_exp_f32 v{tmp+r}, v{tmp+r}", 8))
            for r in range(0, 8, 2): L.append((f"v_pk_mul_f32 {P2(g+r)}, {P2(g+r)}, {P2(g+8+r)}", 4))
            for r in range(0, 8, 2): L.append((f"v_pk_add_f32 {P2(tmp+r)}, {P2(tmp+r)}, 1.0 op_sel_hi:[1,0]", 4))
            for r in range(8): L.append((f"v_rcp_f32 v{tmp+r}, v{tmp+r}", 8))
            L.append(("s_nop 0", 1))
            for r in range(0, 8, 2): L.append((f"v_pk_mul_f32 {P2(g+r)}, {P2(g+r)}, {P2(tmp+r)}", 4))
        for d in range(4): L.append((f"v_cvt_pk_bf16_f32 v{pk+d}, v{g+2*d}, v{g+2*d+1}", 4))
        so = 36 + 2 * pas + i
        L.append((f"buffer_store_dwordx4 v[{pk}:{pk+3}], v22, s[40:43], s{so} offen offset:{j*1024} {o.hst}", 4))
        return L
    a(f"""
    s_lshl_b32 s56, s54, 1
    s_and_b32 s57, s18, 1
    s_add_u32 s56, s56, s57
    s_mul_i32 s56, s56, 112
    s_lshr_b32 s57, s18, 1
    s_lshl_b32 s57, s57, 3
    s_add_u32 s56, s56, s57
    s_lshl_b32 s56, s56, 10
    v_mov_b32 v4, s67
    v_mov_b32 v5, s67
    """)
    a(f"""
    s_mov_b32 s24, s14
    s_mov_b32 s25, s15
    s_mov_b32 s26, 256
    s_mov_b32 s27, 0x20000
    ; per-lane B-flag offsets: lane = 2j + w2 (j<7): line of producer fc' = 2*((r+j)%7)+kh ; word 8*(mh_p + 2*w2)
    v_min_u32 v2, 13, v1
    v_and_b32 v3, 1, v2                   ; w2
    v_lshrrev_b32 v2, 1, v2               ; j
    v_add_u32 v2, s23, v2
    v_subrev_u32 v24, 7, v2
    v_cmp_le_u32 vcc, 7, v2
    s_nop 1
    v_cndmask_b32 v2, v2, v24, vcc
    v_lshlrev_b32 v2, 1, v2
    s_lshr_b32 s57, s18, 1
    v_add_u32 v2, s57, v2
    v_lshlrev_b32 v2, 7, v2
    v_lshl_add_u32 v2, v3, 4, v2          ; + 16*w2
    s_and_b32 s57, s54, 1
    s_lshl_b32 s57, s57, 3
    v_add_u32 v2, s57, v2                 ; + 8*mh_p
    s_lshr_b32 s32, s54, 1
    s_lshl_b32 s32, s32, 11
    s_add_u32 s32, s32, {FLAG_OFF + 16*16*128}
    s_lshl_b32 s21, s52, 4
    s_add_u32 s21, s21, s53
    s_lshl_b32 s21, s21, 7
    s_lshl_b32 s57, s18, 3
    s_add_u32 s21, s21, s57
    s_add_u32 s21, s21, {FLAG_OFF + 16*16*128}
    v_mov_b32 v3, 0
    """)
    UB = [48, 49, 50, 51, 33, 34, 35]
    for j in range(7):
        a(f"""
    s_cmp_eq_u32 s{RT+j}, 5
    s_cselect_b32 s57, 9, s{RT+j}
    s_cmp_eq_u32 s{RT+j}, 6
    s_cselect_b32 s57, 5, s57
    s_lshl_b32 s{UB[j]}, s57, 14
    s_lshl_b32 s{RT+j}, s{RT+j}, 14
    s_add_u32 s{RT+j}, s{RT+j}, s56
        """)
    ACC2 = 112 if o.share_g else 176
    HB0 = 176 if o.share_g else 112
    AFS = [96, 104, 240, 248]
    def hreg(n):
        m = n % 28
        return HB0 + 4 * m if m < 16 else 48 + 4 * (m - 16)
    def hload(n):
        p, j, v = n // 28, (n % 28) >> 2, n & 3
        b = hreg(n)
        r = []
        if p and v == 0: r.append(f"s_add_u32 s{RT+j}, s{RT+j}, 4096")
        r.append(f"buffer_load_dwordx4 v[{b}:{b+3}], v22, s[40:43], s{RT+j} offen offset:{v*1024} {o.hld}")
        return r

    vops = []
    preL = 0
    a("s_waitcnt vmcnt(8)")
    tr("C")
    a("s_barrier")
    tr("C")
    st(1); trk()
    for ins in p1_reads(0): a(ins)
    for ins in p1_reads(1): a(ins)
    for n in range(56):
        s, q = n >> 2, n & 3
        if q == 2:
            w = "s_waitcnt lgkmcnt(0)"
            if s + 1 in (1, o.flagA_bar): w = "s_waitcnt vmcnt(0) lgkmcnt(0)"
            a(w)
            a("s_barrier")
            tr("C")
            if s + 1 in (2, 7): trk()
        else:
            a("s_waitcnt lgkmcnt(6)" if n + 1 < 56 else "s_waitcnt lgkmcnt(0)")
        rd = p1_reads(n + 2) if n + 2 < 56 else []
        mf = p1_mfmas(n)
        for k in range(4):
            a(mf[k])
            lo, hi = ([0, 3, 6, 6], [3, 6, 6, 6]) if q == 1 else ([0, 2, 4, 5], [2, 4, 5, 6])
            for ins in rd[lo[k]:hi[k]]: a(ins)
        if n == 44:
            a("buffer_load_dwordx2 v[40:41], v3, s[24:27], 0 offen sc1")
            vops.append(("N", 0))
        if 50 <= n <= 55:
            per = [(o.pre_h + 5 - i) // 6 for i in range(6)] if o.pre_h > 4 else [1, 1, 1, 1, 0, 0]
            for _ in range(per[n - 50]):
                for ins in hload(preL): a(ins)
                vops.append(("L", preL)); preL += 1
        if n == 27:
            a("s_nop 7\ns_nop 7")
            if o.share_g:
                a("s_call_b64 s[8:9], L_geglu")
                a("s_add_u32 s36, s36, 4096\ns_add_u32 s37, s37, 4096")
            else:
                for t in range(4):
                    for ins, _ in geglu_tile(ACCA, t, 0, T + 8 * (t & 1), PK + 4 * (t & 1), packed=o.pk, cpair=4): a(ins)
    st(2); tr("D"); trk()
    pN = vops.index(("N", 0))
    a(f"""
    s_waitcnt vmcnt({len(vops) - 1 - pN})
    s_mov_b32 s28, 0
L_c_nonce:
    v_readfirstlane_b32 s30, v40
    v_readfirstlane_b32 s31, v41
    s_add_u32 s28, s28, 1
    s_nop 3
    s_or_b32 s29, s30, s31
    s_cmp_lg_u32 s29, 0
    s_cbranch_scc1 L_c_havenonce
    s_cmp_gt_u32 s28, {SPIN}
    s_cbranch_scc1 L_c_havenonce
    buffer_load_dwordx2 v[40:41], v3, s[24:27], 0 offen sc1
    s_waitcnt vmcnt(0)
    s_branch L_c_nonce
L_c_havenonce:
    """)
    a("s_nop 7")
    nextL = preL
    if o.share_g:
        a("s_call_b64 s[8:9], L_geglu")
        for t in range(4): vops.append(("S", t))
    else:
        late_stores = []
        for t in range(4):
            pkreg = (240 + 4 * t) if o.late_st else (PK + 4 * (t & 1))
            tile = geglu_tile(ACCB, t, 1, T + 8 * (t & 1), pkreg, packed=o.pk, cpair=4)
            nins = len(tile)
            nl = o.hl_per_tile[t]
            pos = [int((k + 0.5) * nins / nl) for k in range(nl)] if nl else []
            for idx, (ins, _) in enumerate(tile):
                if idx in pos:
                    for li in hload(nextL): a(li)
                    vops.append(("L", nextL)); nextL += 1
                if ins.startswith("buffer_store"):
                    if o.late_st:
                        late_stores.append((ins, t)); continue
                    vops.append(("S", t))
                a(ins)
        for ins, t in late_stores:
            a(ins); vops.append(("S", t))
    tr("D")
    a("s_barrier")
    st(3); tr("D"); tre()
    def unit_sgpr(n):
        p, j = n // 28, (n % 28) >> 2
        if p == 0: return (UB[j], 0)
        if j < 3: return (None, [7, 6, 8][j] * 16384)
        return (UB[j - 3], 0)
    def p2_reads(n):
        v = n & 3
        sg, so = unit_sgpr(n)
        ch = n >> 2
        ab = 18 + 2 * (ch & 1)
        b = AFS[n & 3]
        r = []
        if v == 0:
            for n2 in range(2):
                if sg is None:
                    r.append(f"v_add_u32 v{ab+n2}, {so}, v{16+n2}")
                else:
                    r.append(f"v_add_u32 v{ab+n2}, s{sg}, v{16+n2}")
        for n2 in range(2):
            for ee in range(2):
                r.append(f"ds_read_b64_tr_b16 v[{b+4*n2+2*ee}:{b+4*n2+2*ee+1}], v{ab+n2} offset:{v*2048+ee*1024}")
        return r
    def p2_mfmas(n):
        b = AFS[n & 3]; hb = hreg(n)
        m = []
        for n2 in range(2):
            c = ACC2 + 16 * n2
            src = "0" if n == 0 else f"v[{c}:{c+15}]"
            m.append(f"{MF} v[{c}:{c+15}], v[{b+4*n2}:{b+4*n2+3}], v[{hb}:{hb+3}], {src}")
        return m
    if o.fast_tail:
        a(f"""
        s_lshl_b32 s56, s18, 12
        s_add_u32 s56, s56, s{UB[4]}
        v_add_u32 v8, s56, v22
        s_xor_b32 s57, s18, 2
        s_lshl_b32 s57, s57, 12
        s_add_u32 s57, s57, s{UB[4]}
        v_add_u32 v9, s57, v22
        v_and_b32 v10, 31, v1
        s_lshl_b32 s56, s54, 6
        s_and_b32 s57, s18, 1
        s_lshl_b32 s57, s57, 5
        s_add_u32 s56, s56, s57
        v_add_u32 v10, s56, v10
        v_mul_u32_u24 v10, 896, v10
        v_lshrrev_b32 v11, 5, v1
        v_lshl_add_u32 v10, v11, 4, v10
        s_lshl_b32 s56, s55, 7
        s_lshr_b32 s57, s18, 1
        s_lshl_b32 s57, s57, 6
        s_add_u32 s56, s56, s57
        v_add_u32 v10, s56, v10
        """)
    for n in range(3):
        for ins in p2_reads(n): a(ins)
    last_rd = 2
    def ensure(j):
        K = o.poll_k
        chk = f"""
    s_lshr_b32 s20, s29, {2*j}
    s_and_b32 s20, s20, 3
    s_cmp_eq_u32 s20, 3
"""
        a(chk + f"    s_cbranch_scc1 L_c_ok{j}")
        if K == 1:
            a(f"""
L_c_poll{j}:
    buffer_load_dwordx2 v[40:41], v2, s[40:43], s32 offen sc1
    s_waitcnt vmcnt(0)
    v_cmp_eq_u64 vcc, s[30:31], v[40:41]
    s_add_u32 s28, s28, 1
    s_nop 4
    s_and_b32 s29, vcc_lo, 0x3fff
    s_cmp_gt_u32 s28, {SPIN}
    s_cbranch_scc1 L_c_ok{j}
{chk}
    s_cbranch_scc0 L_c_poll{j}
            """)
        else:
            regs = [40, 42, 44][:K]
            for r in regs[:-1]:
                a(f"buffer_load_dwordx2 v[{r}:{r+1}], v2, s[40:43], s32 offen sc1\ns_nop 15\ns_nop 15")
            a(f"L_c_poll{j}:")
            for i in range(K):
                rin = regs[(i + K - 1) % K]; rout = regs[i]
                a(f"""
    buffer_load_dwordx2 v[{rin}:{rin+1}], v2, s[40:43], s32 offen sc1
    s_waitcnt vmcnt({K-1})
    v_cmp_eq_u64 vcc, s[30:31], v[{rout}:{rout+1}]
    s_add_u32 s28, s28, 1
    s_nop 4
    s_and_b32 s29, vcc_lo, 0x3fff
{chk}
    s_cbranch_scc1 L_c_ok{j}
                """)
            a(f"""
    s_cmp_gt_u32 s28, {SPIN}
    s_cbranch_scc0 L_c_poll{j}
            """)
        a(f"L_c_ok{j}:")
    def loadB(j):
        for v in range(4):
            for li in hload(28 + 4 * j + v):
                a(li)
    fb_step = o.fb_step if o.fb_step else nextL
    def issue_hA(k):
        nonlocal nextL
        for _ in range(k):
            if nextL <= 27:
                for li in hload(nextL): a(li)
                vops.append(("L", nextL)); nextL += 1
    def younger(tag):
        return len(vops) - 1 - vops.index(tag)
    issue_hA(o.g_loads)
    tB = o.b_sched
    for n in range(52 if o.fast_tail else 56):
        lg = 4 * (last_rd - n)
        assert 0 <= lg <= 12
        if n == fb_step:
            a(f"s_waitcnt vmcnt({younger(('S', 3))})")
            tr("D")
            a(f"""
    v_mov_b32 v42, s30
    v_mov_b32 v43, s31
    s_mov_b64 exec, 1
    buffer_store_dwordx2 v[42:43], v3, s[40:43], s21 offen sc1
    s_mov_b64 exec, -1
            """)
            vops.append(("F", 0))
            st(4); tr("D"); tre()
        if n == tB[0]:
            tre()
            a(f"""
    s_waitcnt vmcnt({younger(('P', 0))})
    v_cmp_eq_u64 vcc, s[30:31], v[40:41]
    s_mov_b32 s28, 0
    s_nop 4
    s_and_b32 s29, vcc_lo, 0x3fff
            """)
            tre()
        for j in range(7):
            if tB[j] == n:
                assert n > 4 * j + 3 and nextL == 28
                ensure(j); loadB(j)
                for v in range(4): vops.append(("L", 28 + 4 * j + v))
                if j == 0: st(5); trk()
        a(f"s_waitcnt vmcnt({min(63, younger(('L', n)))}) lgkmcnt({lg})")
        if n in (0, 28, 29, 37, 44): tr("D")
        if n in (27, 28, 32, 36, 40, 48, 55): tre()
        if n == 15: a("s_barrier")
        if n == 37: a("s_barrier")
        if n == 37: tr("D")
        nr = n + 3
        rd = []
        if nr < 56:
            rd = p2_reads(nr); last_rd = nr
        mf = p2_mfmas(n)
        a(mf[0])
        for ins in rd[:-2]: a(ins)
        a(mf[1])
        for ins in rd[-2:]: a(ins)
        if n < 28: issue_hA(o.hl_rate)
        if n == o.b_poll_step:
            a("buffer_load_dwordx2 v[40:41], v2, s[40:43], s32 offen sc1")
            vops.append(("P", 0))
    if o.fast_tail:
        assert last_rd == 54
        for ins in p2_reads(55): a(ins)
        last_rd = 55
        for n in range(52, 56):
            a(f"s_waitcnt vmcnt({min(63, younger(('L', n)))}) lgkmcnt({4 * (55 - n)})")
            a(p2_mfmas(n)[1])
        a(p2_mfmas(52)[0]); a(p2_mfmas(53)[0])
        a("s_nop 9")
        for i in range(4):
            c = ACC2 + 16 + 4 * i
            a(f"ds_write_b128 v8, v[{c}:{c+3}] offset:{i*1024}")
        a(p2_mfmas(54)[0]); a(p2_mfmas(55)[0])
    st(6); tr("D"); trk()
    if not o.fast_tail:
        a(f"""
        s_lshl_b32 s56, s18, 12
        s_add_u32 s56, s56, s{UB[4]}
        v_add_u32 v8, s56, v22
        s_xor_b32 s57, s18, 2
        s_lshl_b32 s57, s57, 12
        s_add_u32 s57, s57, s{UB[4]}
        v_add_u32 v9, s57, v22
        v_and_b32 v10, 31, v1
        s_lshl_b32 s56, s54, 6
        s_and_b32 s57, s18, 1
        s_lshl_b32 s57, s57, 5
        s_add_u32 s56, s56, s57
        v_add_u32 v10, s56, v10
        v_mul_u32_u24 v10, 896, v10
        v_lshrrev_b32 v11, 5, v1
        v_lshl_add_u32 v10, v11, 4, v10
        s_lshl_b32 s56, s55, 7
        s_lshr_b32 s57, s18, 1
        s_lshl_b32 s57, s57, 6
        s_add_u32 s56, s56, s57
        v_add_u32 v10, s56, v10
        s_nop 7
        """)
    if not o.fast_tail:
        for i in range(4):
            c = ACC2 + 16 + 4 * i
            a(f"ds_write_b128 v8, v[{c}:{c+3}] offset:{i*1024}")
    a("s_waitcnt lgkmcnt(0)\ns_barrier")
    if o.fast_tail: a("s_nop 7")
    for i in range(4):
        a(f"ds_read_b128 v[{48+4*i}:{51+4*i}], v9 offset:{i*1024}")
    for i in range(4):
        a(f"s_waitcnt lgkmcnt({3-i})")
        for k in range(4):
            a(f"v_add_f32 v{ACC2+4*i+k}, v{ACC2+4*i+k}, v{48+4*i+k}")
        a(f"v_cvt_pk_bf16_f32 v{64+2*i}, v{ACC2+4*i}, v{ACC2+4*i+1}")
        a(f"v_cvt_pk_bf16_f32 v{65+2*i}, v{ACC2+4*i+2}, v{ACC2+4*i+3}")
        if i & 1:
            b = 64 + 4 * (i >> 1)
            a("s_nop 1")
            a(f"v_permlane32_swap_b32 v{b}, v{b+2}")
            a(f"v_permlane32_swap_b32 v{b+1}, v{b+3}")
            a(f"buffer_store_dwordx4 v[{b}:{b+3}], v10, s[44:47], 0 offen offset:{(i>>1)*32} {o.outsc}")
    if o.delay_end:
        a(f"s_mov_b32 s56, {o.delay_end // 20}\nL_dly:\ns_nop 15\ns_sub_u32 s56, s56, 1\ns_cmp_lg_u32 s56, 0\ns_cbranch_scc1 L_dly")
    if o.trace in ("C", "S", "D", "K", "U", "E"):
        trk()
        tr("D")
        a("s_cmp_lg_u32 s18, 0\ns_cbranch_scc1 L_end")
        tr_store(o.trace)
    if o.stamps:
        a("s_waitcnt vmcnt(0)")
        st(7)
        a("s_cmp_lg_u32 s18, 0\ns_cbranch_scc1 L_end")
        if o.dbgst:
            a("s_cmp_lg_u32 s2, 100\ns_cbranch_scc1 L_end\ns_waitcnt lgkmcnt(0)")
            a("s_mov_b32 s48, s14\ns_mov_b32 s49, s15\ns_mov_b32 s50, 256\ns_mov_b32 s51, 0x20000\nv_mov_b32 v0, 0\ns_mov_b64 exec, 1")
            a("v_mov_b32 v2, s80\nbuffer_store_dword v2, v0, s[48:51], 0 offen offset:16")
            for k in range(1, 8):
                a(f"s_sub_u32 s56, s{80+2*k}, s80\nv_mov_b32 v2, s56\nbuffer_store_dword v2, v0, s[48:51], 0 offen offset:{16+4*k}\ns_nop 1")
        else:
            a(store_stamps(8, 16, 17, 2, vt=0, tmp=72))
    a("s_endpgm")

    if o.share_g:
        a("L_geglu:")
        for t in range(4):
            for ins, _ in geglu_tile(ACCA, t, 0, T + 8 * (t & 1), PK + 4 * (t & 1), packed=o.pk, cpair=4): a(ins)
        a("s_setpc_b64 s[8:9]")
    a("L_loader:")
    a(f"""
    s_setprio 3
    v_lshrrev_b32 v24, 3, v1
    v_mul_u32_u24 v25, 3584, v24
    v_and_b32 v26, 7, v1
    v_bfe_u32 v27, v1, 4, 1
    v_lshlrev_b32 v28, 1, v27
    v_xor_b32 v28, v26, v28               ; c gate
    v_lshl_add_u32 v2, v28, 4, v25
    v_xor_b32 v28, 4, v28
    v_lshl_add_u32 v6, v28, 4, v25
    s_lshl_b32 s56, s53, 8
    v_add_u32 v2, s56, v2
    v_add_u32 v6, s56, v6
    """)
    for k in range(1, 4):
        a(f"v_add_u32 v{2+k}, {k*(8*3584-1024)}, v2\nv_add_u32 v{6+k}, {k*(8*3584-1024)}, v6")
    a(f"""
    v_mul_u32_u24 v25, 896, v24
    v_lshlrev_b32 v28, 2, v27
    v_xor_b32 v28, v26, v28
    v_lshl_add_u32 v10, v28, 4, v25
    s_lshl_b32 s56, s55, 7
    v_add_u32 v10, s56, v10
    """)
    for k in range(1, 4):
        a(f"v_add_u32 v{10+k}, {k*(8*896-1024)}, v10")
    a(f"""
    v_lshrrev_b32 v27, 4, v1
    v_xor_b32 v28, v26, v27
    v_lshl_add_u32 v14, v28, 4, v25
    v_xor_b32 v28, 4, v28
    v_lshl_add_u32 v15, v28, 4, v25
    s_mul_i32 s56, s52, {128*896}
    v_add_u32 v14, s56, v14
    s_add_u32 s56, s56, {8*896-1024}
    v_add_u32 v15, s56, v15
    v_add_u32 v16, {2*(8*896-1024)}, v14
    v_add_u32 v17, {2*(8*896-1024)}, v15
    """)
    LT = 70 if o.trace == "L" else 80
    XT, WT, DT = 20, 44, 36+16
    for j in range(4):
        a(f"""
    s_cmp_eq_u32 s{RT+j}, 5
    s_cselect_b32 s56, 9, s{RT+j}
    s_cmp_eq_u32 s{RT+j}, 6
    s_cselect_b32 s56, 5, s56
    s_lshl_b32 s{72+j}, s56, 14
        """)
    for j in range(7):
        a(f"s_lshl_b32 s{33+j}, s{RT+j}, 7")
        a(f"s_mul_i32 s{44+j}, s{RT+j}, {64*3584}")
        a(f"s_mul_i32 s{RT+j}, s{RT+j}, {256*896}")
    a("s_waitcnt lgkmcnt(0)")
    srd(a, 24, 4, 2048 * 896)
    srd(a, 28, 6, 448 * 3584)
    a(f"""
    s_mov_b32 s56, s8
    s_mov_b32 s57, s9
    s_mov_b32 s58, {448*3584}
    s_mov_b32 s59, 0x20000
    s_mov_b32 s68, s10
    s_mov_b32 s69, s11
    """)
    a(f"""
    s_mov_b32 s20, s10
    s_mov_b32 s21, s11
    s_mov_b32 s22, {1792*896}
    s_mov_b32 s23, 0x20000
    """)
    def loader_body(role):
        order = []
        def xdmaL(s):
            for g in range(4):
                a(f"s_mov_b32 m0, {s*16384 + g*4096}")
                a(f"s_add_u32 s67, s{33+s}, {g*32*896}")
                for k in range(4):
                    a(f"buffer_load_dwordx4 v{14+k}, s[24:27], s67 offen offset:{k*1024} lds")
                    order.append(("W", s))
        def wdma(s):
            slot = s % 3; pas = s // 7; ss = s % 7
            for mat in range(2):
                sr = "s[28:31]" if mat == 0 else "s[56:59]"
                for g in range(2):
                    a(f"s_mov_b32 m0, {114688 + slot*16384 + mat*8192 + g*4096}")
                    a(f"s_add_u32 s67, s{44+ss}, {32*g*3584 + pas*128}")
                    for k in range(4):
                        a(f"buffer_load_dwordx4 v{2+4*mat+k}, {sr}, s67 offen offset:{k*1024} lds")
                        order.append(("W", s))
        def ddma(p, j, unit, phys=False, dyn_unit=None):
            for g in range(4):
                if dyn_unit is None:
                    a(f"s_mov_b32 m0, {unit*16384 + g*4096}")
                else:
                    a(f"s_add_u32 m0, s{dyn_unit}, {g*4096}")
                if phys:
                    a(f"s_mov_b32 s67, {(256*j + 128*(g>>1) + 64*p + 32*(g&1))*896}")
                else:
                    a(f"s_add_u32 s67, s{RT+j}, {(128*(g>>1) + 64*p + 32*(g&1))*896}")
                for k in range(4):
                    a(f"buffer_load_dwordx4 v{10+k}, s[20:23], s67 offen offset:{k*1024} lds")
                    order.append(("D", p, j))
        def wait_tag(tag):
            idx = [i for i, t in enumerate(order) if t == tag]
            if not idx: return
            n = len(order) - 1 - max(idx)
            a(f"s_waitcnt vmcnt({min(n, 63)})")
        def room(k):
            a(f"s_waitcnt vmcnt({63-k})")
        doW = role in ("all", "W"); doX = role in ("all", "X")
        tr("L")
        if o.p_order == 1:
            a("s_barrier\ns_barrier")
        a("s_barrier")
        for i in range(15):
            if 2 <= i <= 13: wait_tag(("W", i))
            tr("L")
            a("s_barrier")
            if doX and i + 2 <= 6:
                room(16); xdmaL(i + 2)
            if doW and i + 2 <= 13:
                room(16); wdma(i + 2)
            if doX:
                if 8 <= i <= 12:
                    room(16); ddma(0, i - 8, i - 8, phys=True)
                if i == 12:
                    room(16); ddma(0, 5, 9, phys=True)
                if i == 13:
                    room(16); ddma(0, 6, 5, phys=True)
                    room(16); ddma(1, 0, 7)
                if i == 14 and not o.b12_late:
                    room(16); ddma(1, 1, 6)
                    room(16); ddma(1, 2, 8)
        if role == "W":
            a("s_endpgm")
            return
        a("s_waitcnt vmcnt(0)")
        a("LST0")
        a("s_barrier")
        if o.b12_late:
            room(16); ddma(1, 1, 6)
            room(16); ddma(1, 2, 8)
            a("s_waitcnt vmcnt(0)")
        a("s_barrier")
        a("LST1")
        for j in (3, 4, 5, 6):
            room(16); ddma(1, j, None, dyn_unit=72 + j - 3)
        a("LST2")
        a("s_waitcnt vmcnt(0)")
        a("LST4")
        a("s_barrier")
        a("LSTORE")
        tr_store("L", tmp=24)
        a("s_endpgm")
    if o.two_l:
        a("s_cmp_eq_u32 s18, 6\ns_cbranch_scc1 L_loaderX")
        loader_body("W")
        a("L_loaderX:")
        loader_body("X")
    else:
        loader_body("all")

    a("L_poller:")
    a(f"""
    s_setprio 3
    s_mul_i32 s56, s21, 112
    v_lshrrev_b32 v4, 3, v1
    v_add_u32 v4, s56, v4
    v_mul_u32_u24 v4, 3584, v4
    v_and_b32 v5, 7, v1
    v_lshl_add_u32 v4, v5, 4, v4
    s_lshl_b32 s56, s53, 8
    s_add_u32 s56, s56, 128
    v_add_u32 v4, s56, v4
    v_lshrrev_b32 v16, 3, v1
    s_and_b32 s56, s21, 1
    s_lshl_b32 s56, s56, 5
    v_add_u32 v16, s56, v16
    v_mul_u32_u24 v16, 3584, v16
    v_lshl_add_u32 v16, v5, 4, v16
    s_lshl_b32 s56, s53, 8
    v_add_u32 v16, s56, v16
    s_add_u32 s60, s22, 4
    s_cmp_ge_u32 s60, 7
    s_cselect_b32 s56, 7, 0
    s_sub_u32 s60, s60, s56
    s_add_u32 s61, s60, 1
    s_cmp_ge_u32 s61, 7
    s_cselect_b32 s56, 7, 0
    s_sub_u32 s61, s61, s56
    s_add_u32 s62, s61, 1
    s_cmp_ge_u32 s62, 7
    s_cselect_b32 s56, 7, 0
    s_sub_u32 s62, s62, s56
    s_mul_i32 s60, s60, {64*3584}
    s_mul_i32 s61, s61, {64*3584}
    s_mul_i32 s62, s62, {64*3584}
    v_mov_b32 v2, 0
    v_lshlrev_b32 v13, 20, v1
    s_waitcnt lgkmcnt(0)
    """)
    srd(a, 28, 6, 448 * 3584)
    srd(a, 32, 8, 448 * 3584)
    srd(a, 40, 16, WS_SIZE)
    srd(a, 44, 12, 2048 * 896)
    srd(a, 48, 14, 256)
    a(f"""
    s_lshr_b32 s56, s21, 1
    s_cmp_eq_u32 s56, 0
    s_cselect_b32 s64, s6, s8
    s_cselect_b32 s65, s7, s9
    s_mov_b32 s66, {448*3584}
    s_mov_b32 s67, 0x20000
    """)
    def wa_rest(sreg, base):
        for i in range(4):
            a(f"s_add_u32 s56, s{sreg}, {i*8*3584}")
            a(f"buffer_load_dwordx4 v[{base+4*i}:{base+4*i+3}], v16, s[64:67], s56 offen")
    if o.prefetch and o.rmul == 1:
        wa_rest(60, 100)
    a(f"""
    s_cmp_lg_u32 s2, 0
    s_cbranch_scc1 L_p_nonce
    s_memrealtime s[70:71]
    s_waitcnt lgkmcnt(0)
    v_mov_b32 v6, s70
    v_mov_b32 v7, s71
    s_mov_b64 exec, 1
    buffer_store_dwordx2 v[6:7], v2, s[48:51], 0 offen sc1
    s_mov_b64 exec, -1
L_p_nonce:
    """)
    def pbatch():
        if o.prefetch:
            for k in range(o.pb_n):
                a(f"s_mov_b32 s56, {k*8*3584}")
                a(f"buffer_load_dwordx4 v[{20+8*(k%8)}:{23+8*(k%8)}], v4, s[28:31], s56 offen")
                a(f"buffer_load_dwordx4 v[{24+8*(k%8)}:{27+8*(k%8)}], v4, s[32:35], s56 offen")
    if o.p_order == 1:
        a("s_barrier"); pbatch(); a("s_barrier")
    a("s_barrier")
    if o.p_order == 0: pbatch()
    a(f"""
    s_mov_b64 exec, 0x1ff
    buffer_load_dword v14, v13, s[40:43], 0 offen
    s_mov_b64 exec, 3
    buffer_load_dword v15, v13, s[44:47], 0 offen
    s_mov_b64 exec, -1
    s_lshl_b32 s72, s52, 4
    s_add_u32 s72, s72, s53
    s_lshl_b32 s72, s72, 7
    s_add_u32 s72, s72, {FLAG_OFF}
    s_add_u32 s73, s72, {16*16*128}
    s_lshr_b32 s74, s54, 1
    s_lshl_b32 s74, s74, 11
    s_add_u32 s74, s74, {FLAG_OFF}
    s_add_u32 s75, s74, {16*16*128}
    v_min_u32 v8, 13, v1
    v_lshlrev_b32 v8, 7, v8
    """)
    for i in range(9):
        a("s_barrier")
        if o.p_order == 2 and i == 0:
            for _ in range(5): a("s_nop 15")
            pbatch()
        if o.p_order == 3 and i == 1:
            pbatch()
        if o.p_order == 4 and i == 0:
            pbatch()
        if o.p_order in (5, 6) and i == o.p_order - 3:
            pbatch()
        if i == 7:
            a("buffer_load_dwordx2 v[6:7], v2, s[48:51], 0 offen sc1")
    a(f"""
    s_mov_b32 s76, 0
L_p_chknonce:
    s_waitcnt vmcnt(0)
    v_readfirstlane_b32 s70, v6
    v_readfirstlane_b32 s71, v7
    s_add_u32 s76, s76, 1
    s_nop 3
    s_or_b32 s56, s70, s71
    s_cmp_lg_u32 s56, 0
    s_cbranch_scc1 L_p_havenonce
    s_cmp_gt_u32 s76, {SPIN}
    s_cbranch_scc1 L_p_havenonce
    buffer_load_dwordx2 v[6:7], v2, s[48:51], 0 offen sc1
    s_branch L_p_chknonce
L_p_havenonce:
    s_barrier                              ; R_9
    PST0
    s_mov_b64 exec, 1
    buffer_store_dwordx2 v[6:7], v2, s[40:43], s72 offen sc1     ; flag A
    s_mov_b64 exec, -1
    s_barrier                              ; R_10
    s_barrier                              ; R_11
    buffer_load_dwordx2 v[10:11], v8, s[40:43], s74 offen sc1
    s_barrier                              ; R_12
    s_mov_b32 s76, 0
L_p_pollA:
    s_waitcnt vmcnt(0)
    v_cmp_ne_u64 vcc, s[70:71], v[10:11]
    s_add_u32 s76, s76, 1
    s_nop 4
    s_cbranch_vccz L_p_gotA
    s_cmp_gt_u32 s76, {SPIN}
    s_cbranch_scc1 L_p_gotA
    buffer_load_dwordx2 v[10:11], v8, s[40:43], s74 offen sc1
    s_branch L_p_pollA
L_p_gotA:
    PST1
    s_barrier                              ; R_13
    s_barrier                              ; R_14
    s_barrier                              ; G
    PST4
    PSTORE
    s_endpgm
L_helper:
    s_sub_u32 s56, s2, 224
    s_lshr_b32 s56, s56, 3
    s_mul_i32 s56, s56, {NW}
    s_add_u32 s56, s56, s18
    v_lshlrev_b32 v2, 4, v1
CODEPF
    s_waitcnt lgkmcnt(0)
    s_mov_b32 s36, s10
    s_mov_b32 s37, s11
    s_mov_b32 s38, {1792*896}
    s_mov_b32 s39, 0x20000
    s_mul_i32 s62, s19, 7
    s_lshr_b32 s62, s62, 2
HROT
HDELAY
L_h_loop:
    ; KB index k=s56 in [0,1568): part = k>=784 ; kk = k - 784*part ; block b = kk/56, off = kk%56 : addr = (128b + 64*part)*896 + off*1024
    s_cmp_ge_u32 s56, 784
    s_cselect_b32 s60, 784, 0
    s_cselect_b32 s61, {64*896}, 0
    s_sub_u32 s60, s56, s60
    s_mul_i32 s58, s60, 1171
    s_lshr_b32 s58, s58, 16               ; kk/56
    s_mul_i32 s59, s58, 56
    s_sub_u32 s59, s60, s59
    s_lshl_b32 s59, s59, 10
    s_add_u32 s58, s58, s62
    s_cmp_ge_u32 s58, 14
    s_cselect_b32 s63, 14, 0
    s_sub_u32 s58, s58, s63
    s_mul_i32 s58, s58, {128*896}
    s_add_u32 s58, s58, s59
    s_add_u32 s58, s58, s61
    buffer_load_dwordx4 v[4:7], v2, s[36:39], s58 offen
    s_waitcnt vmcnt(40)
    s_add_u32 s56, s56, {4*NW}
    s_cmp_lt_u32 s56, 1568
    s_cbranch_scc1 L_h_loop
L_end:
    s_endpgm
    """)
    a(rodata_begin())
    a(descriptor(KN, vgpr=256, sgpr=102))
    txt = a.text()
    codepf = """    ; prefetch this kernel's code into the XCD's L2: wave index hx*6+w loads KB number k, k+24
    s_getpc_b64 s[40:41]
L_pc_here:
    s_add_u32 s40, s40, KSTART-L_pc_here
    s_addc_u32 s41, s41, -1
    s_lshl_b32 s57, s56, 10
    v_add_u32 v3, s57, v2
    v_min_u32 v3, KEND-KSTART-16, v3
    global_load_dwordx4 v[8:11], v3, s[40:41]
    v_add_u32 v3, 24576, v3
    v_min_u32 v3, KEND-KSTART-16, v3
    global_load_dwordx4 v[12:15], v3, s[40:41]
"""
    txt = txt.replace("CODEPF\n", codepf if o.codepf else "")
    txt = txt.replace(KN + ":\n", KN + ":\nKSTART:\n", 1)
    txt = txt.replace("L_end:\n    s_endpgm\n", "L_end:\n    s_endpgm\nKEND:\n")
    txt = txt.replace("    TRU\n", "    s_memrealtime s[72:73]\n" if o.trace == "U" else "")
    txt = txt.replace("HROT\n", "" if o.hrot else "    s_mov_b32 s62, 0\n")
    txt = txt.replace("HDELAY\n", "".join("    s_sleep 16\n" for _ in range(o.hdelay)))
    for k in range(5):
        txt = txt.replace(f"    PST{k}\n", f"    s_memrealtime s[{80+2*k}:{81+2*k}]\n" if o.stamps else "")
    txt = txt.replace("    PSTORE\n", ("s_add_u32 s2, s2, 256\n" + store_stamps(5, 16, 17, 2, vt=20, tmp=56)) if (o.stamps and not o.dbgst) else "")
    for k in range(6):
        txt = txt.replace(f"LST{k}\n", f"s_memrealtime s[{80+2*k}:{81+2*k}]\n" if o.stamps else "")
    txt = txt.replace("LSTORE\n", ("s_add_u32 s2, s2, 512\n" + store_stamps(6, 16, 17, 2, vt=20, tmp=56)) if (o.stamps and not o.dbgst) else "")
    open(name, "w").write(txt)

if __name__ == "__main__":
    def base():
        o = Opt(); o.b_poll_step = 17; o.b_sched = (24, 26, 27, 30, 33, 37, 41); o.pre_h = 4; o.b12_late = False
        o.share_g = False; o.fast_tail = False; o.p_order = 3; o.prefetch = False; return o
    o = base(); gen("n0.s", o)
    o = base(); o.two_l = False; gen("n1.s", o)
    o = base(); o.share_g = True; o.fast_tail = True; gen("n2.s", o)
    o = base(); o.rmul = 1; gen("n3.s", o)
    o = base(); o.rmul = 3; gen("n4.s", o)
    o = base(); o.hrot = False; gen("n5.s", o)
    o = base(); o.fast_tail = True; gen("n6.s", o)
```

```python
import sys, struct
from asmlib import *

def f2u(x):
    return struct.unpack("<I", struct.pack("<f", x))[0]

C0 = -2.0 * 1.4426950408889634 * 0.7978845608028654
C1 = C0 * 0.044715
FLAG_OFF = 8 << 20
SPIN = 0x4000
WS_SIZE = 9 << 20
MF = "v_mfma_f32_32x32x16_bf16"

def srd(a, d, lo, size):
    a(f"""
    s_mov_b32 s{d}, s{lo}
    s_mov_b32 s{d+1}, s{lo+1}
    s_mov_b32 s{d+2}, {size}
    s_mov_b32 s{d+3}, 0x20000
    """)

class Opt:
    stamps = False
    prefetch = True
    geglu_steps = 26
    abl = ""
    trace = ""
    rot = True
    wd_start = 11
    pk = True
    helpers = True
    wbx4 = True
    extraH = True
    flagA_bar = 9
    hrot = True
    hst = 'sc1'
    hld = 'sc1'
    hl_per_tile = (0, 0, 0, 0)
    pre_sb_last = 19
    hl_rate = 3
    g_loads = 4
    apoll2 = True
    poll_gap = 6
    w7pf = ()
    pb_n = 14
    st_via_p = True
    e_step = 19
    half_bar = True
    fast_tail = True
    share_g = True
    pre_h = 8
    b12_late = True
    late_st = False
    poll_k = 1
    two_l = True
    p_order = 0
    codepf = True
    fb_step = 0
    rmul = 2
    hdelay = 0
    delay_end = 0
    b_look = 2
    b_poll_step = 14
    b_sched = (22, 24, 26, 29, 32, 36, 40)
    outsc = 'sc1'
    dbgst = False
    sb_step = 15

def gen(name, o):
    a = Asm()
    NW = 7 if o.two_l else 6
    a(header([(KN, 256 if o.helpers else 224, NW * 64, 163840)]))
    a(kernel_begin(KN))
    st = (lambda k: a(f"s_memrealtime s[{80+2*k}:{81+2*k}]")) if o.stamps else (lambda k: None)
    cnt = {"C": 0, "L": 0, "S": 0, "P": 0, "D": 0, "K": 0, "U": 0, "E": 0}
    def tre():
        if o.trace == "E" and cnt["E"] < 14:
            k = cnt["E"]; cnt["E"] += 1
            a(f"s_memrealtime s[{70+2*k}:{71+2*k}]")
    def tru():
        if o.trace == "U" and cnt["U"] < 16:
            k = cnt["U"]; cnt["U"] += 1
            if k == 1: k = cnt["U"]; cnt["U"] += 1
            a(f"s_memrealtime s[{70+2*k}:{71+2*k}]")
    def trk():
        if o.trace == "K" and cnt["K"] < 16:
            k = cnt["K"]; cnt["K"] += 2
            a(f"s_memtime s[{70+2*k}:{71+2*k}]\ns_memrealtime s[{72+2*k}:{73+2*k}]")
    def tr(who):
        if o.trace == who and cnt[who] < 16:
            k = cnt[who]; cnt[who] += 1
            a(f"s_memtime s[{70+2*k}:{71+2*k}]")
    def tr_store(who, vt=0, tmp=24):
        if o.trace == who:
            a("s_waitcnt vmcnt(0) lgkmcnt(0)")
            for k in range(cnt[who], 14 if who == "E" else 16):
                a(f"s_mov_b32 s{70+2*k}, 0\ns_mov_b32 s{71+2*k}, 0")
            a(store_stamps(16, 16, 17, 2, base=70, nslot=16, vt=vt, tmp=tmp))
    a(f"""
    s_cmp_ge_u32 s2, {256 if o.helpers else 224}
    s_cbranch_scc1 L_end
    s_load_dwordx4 s[4:7], s[0:1], 0      ; x, wg
    s_load_dwordx4 s[8:11], s[0:1], 16
    s_load_dwordx4 s[12:15], s[0:1], 32
    s_load_dwordx2 s[16:17], s[0:1], 48   ; ws
    """)
    st(0); trk(); tru()
    a(f"""
    v_and_b32 v1, 63, v0                  ; lane
    v_lshrrev_b32 v2, 6, v0               ; wave
    s_and_b32 s19, s2, 7                  ; xcd
    v_readfirstlane_b32 s18, v2
    s_lshr_b32 s20, s2, 3                 ; within 0..27
    s_mul_i32 s21, s20, 37
    s_lshr_b32 s21, s21, 8                ; l4 = within/7  (0..3)
    s_mul_i32 s22, s21, 7
    s_sub_u32 s22, s20, s22               ; l7 = within%7  (0..6)
    s_and_b32 s52, s19, 3
    s_lshl_b32 s52, s52, 2
    s_add_u32 s52, s52, s21
    s_lshr_b32 s53, s19, 2
    s_mul_i32 s53, s53, 7
    s_add_u32 s53, s53, s22
    s_lshl_b32 s54, s19, 2
    s_add_u32 s54, s54, s21
    s_mov_b32 s55, s22
    s_mul_i32 s23, s21, {o.rmul}
    s_add_u32 s23, s23, s22
    s_cmp_ge_u32 s23, 7
    s_cselect_b32 s56, 7, 0
    s_sub_u32 s23, s23, s56
    """)
    if not o.rot: a("s_mov_b32 s23, 0")
    RT = 60
    for j in range(7):
        a(f"""
    s_add_u32 s{RT+j}, s23, {j}
    s_cmp_ge_u32 s{RT+j}, 7
    s_cselect_b32 s56, 7, 0
    s_sub_u32 s{RT+j}, s{RT+j}, s56
        """)
    a(f"""
    s_cmp_ge_u32 s2, 224
    s_cbranch_scc1 L_helper
    s_cmp_eq_u32 s18, 4
    s_cbranch_scc1 L_loader
    s_cmp_eq_u32 s18, 6
    s_cbranch_scc1 L_loader
    s_cmp_eq_u32 s18, 5
    s_cbranch_scc1 L_poller
    """)
    XF = 8; WB = 6; DB = 16; T = 24; PK = 40; FR = 48; ACCA = 112; ACCB = 176
    a(f"""
    v_lshrrev_b32 v24, 3, v1
    v_mul_u32_u24 v25, 896, v24
    v_and_b32 v26, 7, v1
    v_lshrrev_b32 v27, 4, v1
    v_xor_b32 v28, v26, v27
    v_lshl_add_u32 v2, v28, 4, v25
    v_xor_b32 v28, 4, v28
    v_lshl_add_u32 v3, v28, 4, v25
    s_mul_i32 s56, s52, {128*896}
    s_mul_i32 s57, s18, {32*896}
    s_add_u32 s56, s56, s57
    v_add_u32 v2, s56, v2
    s_add_u32 s56, s56, {8*896-1024}
    v_add_u32 v3, s56, v3
    v_add_u32 v4, {2*(8*896-1024)}, v2
    v_add_u32 v5, {2*(8*896-1024)}, v3
    v_mul_u32_u24 v25, 3584, v24
    v_bfe_u32 v27, v1, 4, 1
    v_lshlrev_b32 v28, 1, v27
    v_xor_b32 v28, v26, v28
    s_lshr_b32 s56, s18, 1
    s_lshl_b32 s57, s56, 2
    v_xor_b32 v28, s57, v28               ; ^ (mat<<2)
    v_lshl_add_u32 v48, v28, 4, v25
    s_lshl_b32 s57, s53, 8
    s_and_b32 s59, s18, 1
    s_mul_i32 s59, s59, {32*3584}
    s_add_u32 s57, s57, s59
    v_add_u32 v48, s57, v48
    v_add_u32 v49, {8*3584-1024}, v48
    v_add_u32 v50, {2*(8*3584-1024)}, v48
    v_add_u32 v51, {3*(8*3584-1024)}, v48
    s_lshl_b32 s57, s56, 13
    s_and_b32 s59, s18, 1
    s_lshl_b32 s59, s59, 12
    s_add_u32 s32, s57, s59
    s_add_u32 s32, s32, 114688
    s_lshl_b32 s58, s18, 12               ; c*4096
    s_waitcnt lgkmcnt(0)
    TRU
    s_cmp_eq_u32 s56, 0
    s_cselect_b32 s28, s6, s8
    s_cselect_b32 s29, s7, s9
    s_mov_b32 s30, {448*3584}
    s_mov_b32 s31, 0x20000
    """)
    srd(a, 24, 4, 2048 * 896)
    def xdma(s):
        a(f"""
    s_add_u32 s57, s58, {s*16384}
    s_mov_b32 m0, s57
    s_lshl_b32 s59, s{RT+s}, 7
    buffer_load_dwordx4 v2, s[24:27], s59 offen lds
    buffer_load_dwordx4 v3, s[24:27], s59 offen offset:1024 lds
    buffer_load_dwordx4 v4, s[24:27], s59 offen offset:2048 lds
    buffer_load_dwordx4 v5, s[24:27], s59 offen offset:3072 lds
        """)
    def wq(s):
        a(f"""
    s_add_u32 s57, s32, {s*16384}
    s_mov_b32 m0, s57
    s_mul_i32 s59, s{RT+s}, {64*3584}
    buffer_load_dwordx4 v48, s[28:31], s59 offen lds
    buffer_load_dwordx4 v49, s[28:31], s59 offen offset:1024 lds
    buffer_load_dwordx4 v50, s[28:31], s59 offen offset:2048 lds
    buffer_load_dwordx4 v51, s[28:31], s59 offen offset:3072 lds
        """)
    tr("S")
    if o.p_order == 1:
        xdma(0); wq(0)
        a("s_barrier")
        a("s_barrier")
        xdma(1); wq(1)
    else:
        xdma(0); wq(0); xdma(1); wq(1)
    tr("S"); tru()
    a("s_barrier")
    tr("S"); tru()
    if o.trace == "U":
        for n in (12, 8, 4, 0):
            a(f"s_waitcnt vmcnt({n})"); tru()
    if o.trace == "S":
        for n in (12, 8, 4, 0):
            a(f"s_waitcnt vmcnt({n})"); tr("S")
    srd(a, 40, 16, WS_SIZE)
    srd(a, 44, 12, 2048 * 896)
    a(f"""
    ; W A-frag bases
    v_lshrrev_b32 v24, 5, v1              ; h
    v_bfe_u32 v25, v1, 4, 1               ; mat / grp
    v_bfe_u32 v26, v1, 2, 2               ; rr
    v_and_b32 v27, 3, v1                  ; cc
    v_lshl_add_u32 v28, v24, 3, v26       ; 8h+rr
    v_lshlrev_b32 v28, 7, v28
    v_lshl_add_u32 v28, v25, 13, v28
    v_lshl_add_u32 v28, v27, 3, v28
    v_add_u32 v28, 114688, v28
    v_bfe_u32 v29, v1, 3, 1
    v_lshl_add_u32 v29, v25, 1, v29       ; g
    s_lshr_b32 s56, s18, 1
    s_lshl_b32 s56, s56, 1                ; 2fh
    v_xor_b32 v30, s56, v29
    v_lshl_add_u32 v6, v30, 5, v28
    v_xor_b32 v7, 32, v6
    ; x frag bases
    v_and_b32 v26, 31, v1
    v_bfe_u32 v27, v1, 1, 3
    v_xor_b32 v27, v27, v24
    v_lshlrev_b32 v27, 4, v27
    v_lshl_add_u32 v27, v26, 7, v27
    s_and_b32 s56, s18, 1
    s_lshl_b32 s56, s56, 13
    v_add_u32 v8, s56, v27
    v_xor_b32 v9, 32, v8
    v_xor_b32 v10, 64, v8
    v_xor_b32 v11, 96, v8
    v_add_u32 v12, 0x10000, v8
    v_add_u32 v13, 0x10000, v9
    v_add_u32 v14, 0x10000, v10
    v_add_u32 v15, 0x10000, v11
    ; Wd A-frag bases: row = 64kh + 4h + rr ; granule = (grp ^ 2b) ^ (2*kh) for acc0 (n2=kh)
    v_bfe_u32 v26, v1, 2, 2
    v_lshl_add_u32 v26, v24, 2, v26       ; 4h+rr
    s_lshr_b32 s56, s18, 1                ; kh
    s_lshl_b32 s57, s56, 6
    v_add_u32 v26, s57, v26
    v_lshlrev_b32 v26, 7, v26
    v_bfe_u32 v27, v1, 3, 1
    v_lshlrev_b32 v27, 1, v27
    v_xor_b32 v27, v27, v25
    s_lshl_b32 s57, s56, 1
    v_xor_b32 v27, s57, v27
    v_lshl_add_u32 v26, v27, 5, v26
    v_and_b32 v27, 3, v1
    v_lshl_add_u32 v16, v27, 3, v26
    v_xor_b32 v17, 64, v16
    v_lshlrev_b32 v22, 4, v1
    s_mov_b32 s70, {f2u(C0)}
    s_mov_b32 s68, {f2u(C1)}
    s_mov_b32 s69, {f2u(C1)}
    v_mov_b32 v23, s70
    v_mov_b32 v52, s70
    v_mov_b32 v53, s70
    ; h store soffsets: ((mt*4 + 2mh)*112 + fc*8 + 2fh)*1024 ; +i*112K, +pass*4096, +j*1024
    s_and_b32 s56, s18, 1
    s_lshl_b32 s56, s56, 1
    s_lshl_b32 s57, s52, 2
    s_add_u32 s56, s56, s57
    s_mul_i32 s56, s56, 112
    s_lshl_b32 s57, s53, 3
    s_add_u32 s56, s56, s57
    s_lshr_b32 s57, s18, 1
    s_lshl_b32 s57, s57, 1
    s_add_u32 s56, s56, s57
    s_lshl_b32 s36, s56, 10               ; pass A, i=0
    s_add_u32 s37, s36, {112*1024}        ; i=1
    s_add_u32 s38, s36, 4096              ; pass B
    s_add_u32 s39, s37, 4096
    """.replace("s_mov_b32 s70,", "s_mov_b32 s67,").replace("v23, s70", "v23, s67").replace("v202, s70", "v204, s67").replace("v203, s70", "v205, s67"))
    if not o.share_g:
        for i in range(128):
            a(f"v_mov_b32 v{ACCA+i}, 0")

    def p1_reads(n):
        s, q = n >> 2, n & 3
        b = FR + 16 * (n & 3)
        unit = s % 7
        xb = XF + q + (4 if unit >= 4 else 0)
        xo = (unit & 3) * 16384
        slot = s % 3
        r = []
        for i in range(2):
            r.append(f"ds_read_b128 v[{b+4*i}:{b+4*i+3}], v{xb} offset:{xo+i*4096}")
        for j in range(2):
            for e in range(2):
                r.append(f"ds_read_b64_tr_b16 v[{b+8+4*j+2*e}:{b+8+4*j+2*e+1}], v{WB+j} offset:{slot*16384+q*2048+e*512}")
        return [r[0], r[2], r[3], r[1], r[4], r[5]]
    def p1_mfmas(n):
        b = FR + 16 * (n & 3)
        acc = ACCA if (n < 28 or o.share_g) else ACCB
        m = []
        for j in range(2):
            for i in range(2):
                c = acc + 16 * (2 * j + i)
                src = "0" if (o.share_g and n in (0, 28)) else f"v[{c}:{c+15}]"
                m.append(f"{MF} v[{c}:{c+15}], v[{b+8+4*j}:{b+8+4*j+3}], v[{b+4*i}:{b+4*i+3}], {src}")
        return m
    def geglu_tile(acc, t, pas, tmp, pk, packed=False, cpair=None):
        j, i = t >> 1, t & 1
        g = acc + 16 * t
        L = []
        if not packed:
            for r in range(8): L.append((f"v_mul_f32 v{tmp+r}, v{g+r}, v{g+r}", 4))
            for r in range(8): L.append((f"v_fma_f32 v{tmp+r}, v{tmp+r}, s68, v23", 4))
            for r in range(8): L.append((f"v_mul_f32 v{tmp+r}, v{tmp+r}, v{g+r}", 4))
            for r in range(8): L.append((f"v_exp_f32 v{tmp+r}, v{tmp+r}", 8))
            for r in range(8): L.append((f"v_mul_f32 v{g+r}, v{g+r}, v{g+8+r}", 4))
            for r in range(8): L.append((f"v_add_f32 v{tmp+r}, 1.0, v{tmp+r}", 4))
            for r in range(8): L.append((f"v_rcp_f32 v{tmp+r}, v{tmp+r}", 8))
            L.append(("s_nop 0", 1))
            for r in range(8): L.append((f"v_mul_f32 v{g+r}, v{g+r}, v{tmp+r}", 4))
        else:
            P2 = lambda x: f"v[{x}:{x+1}]"
            for r in range(0, 8, 2): L.append((f"v_pk_mul_f32 {P2(tmp+r)}, {P2(g+r)}, {P2(g+r)}", 4))
            for r in range(0, 8, 2): L.append((f"v_pk_fma_f32 {P2(tmp+r)}, {P2(tmp+r)}, s[68:69], {P2(cpair)}", 4))
            for r in range(0, 8, 2): L.append((f"v_pk_mul_f32 {P2(tmp+r)}, {P2(tmp+r)}, {P2(g+r)}", 4))
            for r in range(8): L.append((f"v_exp_f32 v{tmp+r}, v{tmp+r}", 8))
            for r in range(0, 8, 2): L.append((f"v_pk_mul_f32 {P2(g+r)}, {P2(g+r)}, {P2(g+8+r)}", 4))
            for r in range(0, 8, 2): L.append((f"v_pk_add_f32 {P2(tmp+r)}, {P2(tmp+r)}, 1.0 op_sel_hi:[1,0]", 4))
            for r in range(8): L.append((f"v_rcp_f32 v{tmp+r}, v{tmp+r}", 8))
            L.append(("s_nop 0", 1))
            for r in range(0, 8, 2): L.append((f"v_pk_mul_f32 {P2(g+r)}, {P2(g+r)}, {P2(tmp+r)}", 4))
        for d in range(4): L.append((f"v_cvt_pk_bf16_f32 v{pk+d}, v{g+2*d}, v{g+2*d+1}", 4))
        so = 36 + 2 * pas + i
        if pas == 1 and o.st_via_p:
            L.append((f"ds_write_b128 v9, v[{pk}:{pk+3}] offset:{t*1024}", 4))
        else:
            L.append((f"buffer_store_dwordx4 v[{pk}:{pk+3}], v22, s[40:43], s{so} offen offset:{j*1024} {o.hst}", 4))
        return L
    a(f"""
    s_lshl_b32 s56, s54, 1
    s_and_b32 s57, s18, 1
    s_add_u32 s56, s56, s57
    s_mul_i32 s56, s56, 112
    s_lshr_b32 s57, s18, 1
    s_lshl_b32 s57, s57, 3
    s_add_u32 s56, s56, s57
    s_lshl_b32 s56, s56, 10
    v_mov_b32 v4, s67
    v_mov_b32 v5, s67
    """)
    a(f"""
    s_mov_b32 s24, s14
    s_mov_b32 s25, s15
    s_mov_b32 s26, 256
    s_mov_b32 s27, 0x20000
    ; per-lane B-flag offsets: lane = 2j + w2 (j<7): line of producer fc' = 2*((r+j)%7)+kh ; word 8*(mh_p + 2*w2)
    v_min_u32 v2, 13, v1
    v_and_b32 v3, 1, v2                   ; w2
    v_lshrrev_b32 v2, 1, v2               ; j
    v_add_u32 v2, s23, v2
    v_subrev_u32 v24, 7, v2
    v_cmp_le_u32 vcc, 7, v2
    s_nop 1
    v_cndmask_b32 v2, v2, v24, vcc
    v_lshlrev_b32 v2, 1, v2
    s_lshr_b32 s57, s18, 1
    v_add_u32 v2, s57, v2
    v_lshlrev_b32 v2, 7, v2
    v_lshl_add_u32 v2, v3, 4, v2          ; + 16*w2
    s_and_b32 s57, s54, 1
    s_lshl_b32 s57, s57, 3
    v_add_u32 v2, s57, v2                 ; + 8*mh_p
    s_lshr_b32 s32, s54, 1
    s_lshl_b32 s32, s32, 11
    s_add_u32 s32, s32, {FLAG_OFF + 16*16*128}
    s_lshl_b32 s21, s52, 4
    s_add_u32 s21, s21, s53
    s_lshl_b32 s21, s21, 7
    s_lshl_b32 s57, s18, 3
    s_add_u32 s21, s21, s57
    s_add_u32 s21, s21, {FLAG_OFF + 16*16*128}
    v_mov_b32 v3, 0
    """)
    UB = [48, 49, 50, 51, 33, 34, 35]
    for j in range(7):
        a(f"""
    s_cmp_eq_u32 s{RT+j}, 5
    s_cselect_b32 s57, 9, s{RT+j}
    s_cmp_eq_u32 s{RT+j}, 6
    s_cselect_b32 s57, 5, s57
    s_lshl_b32 s{UB[j]}, s57, 14
    s_lshl_b32 s{RT+j}, s{RT+j}, 14
    s_add_u32 s{RT+j}, s{RT+j}, s56
        """)
    ACC2 = 112 if o.share_g else 176
    HB0 = 176 if o.share_g else 112
    AFS = [96, 104, 240, 248]
    def hreg(n):
        m = n % 28
        return HB0 + 4 * m if m < 16 else 48 + 4 * (m - 16)
    def hload(n):
        p, j, v = n // 28, (n % 28) >> 2, n & 3
        b = hreg(n)
        r = []
        if p and v == 0: r.append(f"s_add_u32 s{RT+j}, s{RT+j}, 4096")
        r.append(f"buffer_load_dwordx4 v[{b}:{b+3}], v22, s[40:43], s{RT+j} offen offset:{v*1024} {o.hld}")
        return r

    vops = []
    preL = 0
    a("s_waitcnt vmcnt(8)")
    tr("C")
    a("s_barrier")
    tr("C")
    st(1); trk()
    for ins in p1_reads(0): a(ins)
    for ins in p1_reads(1): a(ins)
    for n in range(56):
        s, q = n >> 2, n & 3
        if q == 2:
            w = "s_waitcnt lgkmcnt(0)"
            if s + 1 in (1, o.flagA_bar): w = "s_waitcnt vmcnt(0) lgkmcnt(0)"
            a(w)
            a("s_barrier")
            tr("C")
            if s + 1 in (2, 7): trk()
        else:
            a("s_waitcnt lgkmcnt(6)" if n + 1 < 56 else "s_waitcnt lgkmcnt(0)")
        rd = p1_reads(n + 2) if n + 2 < 56 else []
        mf = p1_mfmas(n)
        for k in range(4):
            a(mf[k])
            lo, hi = ([0, 3, 6, 6], [3, 6, 6, 6]) if q == 1 else ([0, 2, 4, 5], [2, 4, 5, 6])
            for ins in rd[lo[k]:hi[k]]: a(ins)
        if n == 44:
            a("buffer_load_dwordx2 v[40:41], v3, s[24:27], 0 offen sc1")
            vops.append(("N", 0))
        if 50 <= n <= 55:
            per = [(o.pre_h + 5 - i) // 6 for i in range(6)] if o.pre_h > 4 else [1, 1, 1, 1, 0, 0]
            for _ in range(per[n - 50]):
                for ins in hload(preL): a(ins)
                vops.append(("L", preL)); preL += 1
        if n == 27:
            a("s_nop 7\ns_nop 7")
            if o.share_g:
                a("s_call_b64 s[8:9], L_geglu")
                a("s_add_u32 s36, s36, 4096\ns_add_u32 s37, s37, 4096")
            else:
                for t in range(4):
                    for ins, _ in geglu_tile(ACCA, t, 0, T + 8 * (t & 1), PK + 4 * (t & 1), packed=o.pk, cpair=4): a(ins)
    st(2); tr("D"); trk()
    pN = vops.index(("N", 0))
    a(f"""
    s_waitcnt vmcnt({len(vops) - 1 - pN})
    s_mov_b32 s28, 0
L_c_nonce:
    v_readfirstlane_b32 s30, v40
    v_readfirstlane_b32 s31, v41
    s_add_u32 s28, s28, 1
    s_nop 3
    s_or_b32 s29, s30, s31
    s_cmp_lg_u32 s29, 0
    s_cbranch_scc1 L_c_havenonce
    s_cmp_gt_u32 s28, {SPIN}
    s_cbranch_scc1 L_c_havenonce
    buffer_load_dwordx2 v[40:41], v3, s[24:27], 0 offen sc1
    s_waitcnt vmcnt(0)
    s_branch L_c_nonce
L_c_havenonce:
    """)
    a("s_nop 7")
    nextL = preL
    assert not (o.share_g and o.st_via_p)
    if o.st_via_p:
        a("s_lshl_b32 s56, s18, 12\ns_add_u32 s56, s56, 131072\nv_add_u32 v9, s56, v22")
        for t in range(4):
            for ins, _ in geglu_tile(ACCB, t, 1, T + 8 * (t & 1), PK + 4 * (t & 1), packed=o.pk, cpair=4): a(ins)
            if t == 1 and o.half_bar:
                a("s_waitcnt lgkmcnt(0)\ns_barrier")
        a("s_waitcnt lgkmcnt(0)")
    elif o.share_g:
        a("s_call_b64 s[8:9], L_geglu")
        for t in range(4): vops.append(("S", t))
    else:
        late_stores = []
        for t in range(4):
            pkreg = (240 + 4 * t) if o.late_st else (PK + 4 * (t & 1))
            tile = geglu_tile(ACCB, t, 1, T + 8 * (t & 1), pkreg, packed=o.pk, cpair=4)
            nins = len(tile)
            nl = o.hl_per_tile[t]
            pos = [int((k + 0.5) * nins / nl) for k in range(nl)] if nl else []
            for idx, (ins, _) in enumerate(tile):
                if idx in pos:
                    for li in hload(nextL): a(li)
                    vops.append(("L", nextL)); nextL += 1
                if ins.startswith("buffer_store"):
                    if o.late_st:
                        late_stores.append((ins, t)); continue
                    vops.append(("S", t))
                a(ins)
        for ins, t in late_stores:
            a(ins); vops.append(("S", t))
    tr("D")
    a("s_barrier")
    st(3); tr("D"); tre()
    def unit_sgpr(n):
        p, j = n // 28, (n % 28) >> 2
        if p == 0: return (UB[j], 0)
        if j < 3: return (None, [7, 6, 8][j] * 16384)
        return (UB[j - 3], 0)
    def p2_reads(n):
        v = n & 3
        sg, so = unit_sgpr(n)
        ch = n >> 2
        ab = 18 + 2 * (ch & 1)
        b = AFS[n & 3]
        r = []
        if v == 0:
            for n2 in range(2):
                if sg is None:
                    r.append(f"v_add_u32 v{ab+n2}, {so}, v{16+n2}")
                else:
                    r.append(f"v_add_u32 v{ab+n2}, s{sg}, v{16+n2}")
        for n2 in range(2):
            for ee in range(2):
                r.append(f"ds_read_b64_tr_b16 v[{b+4*n2+2*ee}:{b+4*n2+2*ee+1}], v{ab+n2} offset:{v*2048+ee*1024}")
        return r
    def p2_mfmas(n):
        b = AFS[n & 3]; hb = hreg(n)
        m = []
        for n2 in range(2):
            c = ACC2 + 16 * n2
            src = "0" if n == 0 else f"v[{c}:{c+15}]"
            m.append(f"{MF} v[{c}:{c+15}], v[{b+4*n2}:{b+4*n2+3}], v[{hb}:{hb+3}], {src}")
        return m
    if o.fast_tail:
        a(f"""
        s_lshl_b32 s56, s18, 12
        s_add_u32 s56, s56, s{UB[4]}
        v_add_u32 v8, s56, v22
        s_xor_b32 s57, s18, 2
        s_lshl_b32 s57, s57, 12
        s_add_u32 s57, s57, s{UB[4]}
        v_add_u32 v9, s57, v22
        v_and_b32 v10, 31, v1
        s_lshl_b32 s56, s54, 6
        s_and_b32 s57, s18, 1
        s_lshl_b32 s57, s57, 5
        s_add_u32 s56, s56, s57
        v_add_u32 v10, s56, v10
        v_mul_u32_u24 v10, 896, v10
        v_lshrrev_b32 v11, 5, v1
        v_lshl_add_u32 v10, v11, 4, v10
        s_lshl_b32 s56, s55, 7
        s_lshr_b32 s57, s18, 1
        s_lshl_b32 s57, s57, 6
        s_add_u32 s56, s56, s57
        v_add_u32 v10, s56, v10
        """)
    for n in range(3):
        for ins in p2_reads(n): a(ins)
    last_rd = 2
    def ensure(j):
        K = o.poll_k
        chk = f"""
    s_lshr_b32 s20, s29, {2*j}
    s_and_b32 s20, s20, 3
    s_cmp_eq_u32 s20, 3
"""
        a(chk + f"    s_cbranch_scc1 L_c_ok{j}")
        if K == 1:
            a(f"""
L_c_poll{j}:
    buffer_load_dwordx2 v[40:41], v2, s[40:43], s32 offen sc1
    s_waitcnt vmcnt(0)
    v_cmp_eq_u64 vcc, s[30:31], v[40:41]
    s_add_u32 s28, s28, 1
    s_nop 4
    s_and_b32 s29, vcc_lo, 0x3fff
    s_cmp_gt_u32 s28, {SPIN}
    s_cbranch_scc1 L_c_ok{j}
{chk}
    s_cbranch_scc0 L_c_poll{j}
            """)
        else:
            regs = [40, 42, 44][:K]
            for r in regs[:-1]:
                a(f"buffer_load_dwordx2 v[{r}:{r+1}], v2, s[40:43], s32 offen sc1\ns_sleep {o.poll_gap}")
            a(f"L_c_poll{j}:")
            for i in range(K):
                rin = regs[(i + K - 1) % K]; rout = regs[i]
                a(f"""
    buffer_load_dwordx2 v[{rin}:{rin+1}], v2, s[40:43], s32 offen sc1
    s_waitcnt vmcnt({K-1})
    v_cmp_eq_u64 vcc, s[30:31], v[{rout}:{rout+1}]
    s_add_u32 s28, s28, 1
    s_nop 4
    s_and_b32 s29, vcc_lo, 0x3fff
{chk}
    s_cbranch_scc1 L_c_ok{j}
                """)
            a(f"""
    s_cmp_gt_u32 s28, {SPIN}
    s_cbranch_scc0 L_c_poll{j}
            """)
        a(f"L_c_ok{j}:")
    def loadB(j):
        for v in range(4):
            for li in hload(28 + 4 * j + v):
                a(li)
    fb_step = o.fb_step if o.fb_step else nextL
    def issue_hA(k):
        nonlocal nextL
        for _ in range(k):
            if nextL <= 27:
                for li in hload(nextL): a(li)
                vops.append(("L", nextL)); nextL += 1
    def younger(tag):
        return len(vops) - 1 - vops.index(tag)
    issue_hA(o.g_loads)
    tB = o.b_sched
    for n in range(52 if o.fast_tail else 56):
        lg = 4 * (last_rd - n)
        assert 0 <= lg <= 12
        if n == fb_step and not o.st_via_p:
            a(f"s_waitcnt vmcnt({younger(('S', 3))})")
            tr("D")
            a(f"""
    v_mov_b32 v42, s30
    v_mov_b32 v43, s31
    s_mov_b64 exec, 1
    buffer_store_dwordx2 v[42:43], v3, s[40:43], s21 offen sc1
    s_mov_b64 exec, -1
            """)
            vops.append(("F", 0))
            st(4); tr("D"); tre()
        if n == tB[0]:
            tre()
            a(f"""
    s_waitcnt vmcnt({younger(('P', 0))})
    v_cmp_eq_u64 vcc, s[30:31], v[40:41]
    s_mov_b32 s28, 0
    s_nop 4
    s_and_b32 s29, vcc_lo, 0x3fff
            """)
            tre()
        for j in range(7):
            if tB[j] == n:
                assert n > 4 * j + 3 and nextL == 28
                ensure(j); loadB(j)
                for v in range(4): vops.append(("L", 28 + 4 * j + v))
                if j == 0: st(5); trk()
        a(f"s_waitcnt vmcnt({min(63, younger(('L', n)))}) lgkmcnt({lg})")
        if n in (0, 28, 29, 37, 44): tr("D")
        if n in (27, 28, 32, 36, 40, 48, 55): tre()
        if n == (o.e_step if o.st_via_p else 15): a("s_barrier")
        if n == 37: a("s_barrier")
        if n == 37: tr("D")
        nr = n + 3
        rd = []
        if nr < 56:
            rd = p2_reads(nr); last_rd = nr
        mf = p2_mfmas(n)
        a(mf[0])
        for ins in rd[:-2]: a(ins)
        a(mf[1])
        for ins in rd[-2:]: a(ins)
        if n < 28: issue_hA(o.hl_rate)
        if n == o.b_poll_step:
            a("buffer_load_dwordx2 v[40:41], v2, s[40:43], s32 offen sc1")
            vops.append(("P", 0))
    if o.fast_tail:
        assert last_rd == 54
        for ins in p2_reads(55): a(ins)
        last_rd = 55
        for n in range(52, 56):
            a(f"s_waitcnt vmcnt({min(63, younger(('L', n)))}) lgkmcnt({4 * (55 - n)})")
            a(p2_mfmas(n)[1])
        a(p2_mfmas(52)[0]); a(p2_mfmas(53)[0])
        a("s_nop 9")
        for i in range(4):
            c = ACC2 + 16 + 4 * i
            a(f"ds_write_b128 v8, v[{c}:{c+3}] offset:{i*1024}")
        a(p2_mfmas(54)[0]); a(p2_mfmas(55)[0])
    st(6); tr("D"); trk()
    if not o.fast_tail:
        a(f"""
        s_lshl_b32 s56, s18, 12
        s_add_u32 s56, s56, s{UB[4]}
        v_add_u32 v8, s56, v22
        s_xor_b32 s57, s18, 2
        s_lshl_b32 s57, s57, 12
        s_add_u32 s57, s57, s{UB[4]}
        v_add_u32 v9, s57, v22
        v_and_b32 v10, 31, v1
        s_lshl_b32 s56, s54, 6
        s_and_b32 s57, s18, 1
        s_lshl_b32 s57, s57, 5
        s_add_u32 s56, s56, s57
        v_add_u32 v10, s56, v10
        v_mul_u32_u24 v10, 896, v10
        v_lshrrev_b32 v11, 5, v1
        v_lshl_add_u32 v10, v11, 4, v10
        s_lshl_b32 s56, s55, 7
        s_lshr_b32 s57, s18, 1
        s_lshl_b32 s57, s57, 6
        s_add_u32 s56, s56, s57
        v_add_u32 v10, s56, v10
        s_nop 7
        """)
    if not o.fast_tail:
        for i in range(4):
            c = ACC2 + 16 + 4 * i
            a(f"ds_write_b128 v8, v[{c}:{c+3}] offset:{i*1024}")
    a("s_waitcnt lgkmcnt(0)\ns_barrier")
    if o.fast_tail: a("s_nop 7")
    for i in range(4):
        a(f"ds_read_b128 v[{48+4*i}:{51+4*i}], v9 offset:{i*1024}")
    for i in range(4):
        a(f"s_waitcnt lgkmcnt({3-i})")
        for k in range(4):
            a(f"v_add_f32 v{ACC2+4*i+k}, v{ACC2+4*i+k}, v{48+4*i+k}")
        a(f"v_cvt_pk_bf16_f32 v{64+2*i}, v{ACC2+4*i}, v{ACC2+4*i+1}")
        a(f"v_cvt_pk_bf16_f32 v{65+2*i}, v{ACC2+4*i+2}, v{ACC2+4*i+3}")
        if i & 1:
            b = 64 + 4 * (i >> 1)
            a("s_nop 1")
            a(f"v_permlane32_swap_b32 v{b}, v{b+2}")
            a(f"v_permlane32_swap_b32 v{b+1}, v{b+3}")
            a(f"buffer_store_dwordx4 v[{b}:{b+3}], v10, s[44:47], 0 offen offset:{(i>>1)*32} {o.outsc}")
    if o.delay_end:
        a(f"s_mov_b32 s56, {o.delay_end // 20}\nL_dly:\ns_nop 15\ns_sub_u32 s56, s56, 1\ns_cmp_lg_u32 s56, 0\ns_cbranch_scc1 L_dly")
    if o.trace in ("C", "S", "D", "K", "U", "E"):
        trk()
        tr("D")
        a("s_cmp_lg_u32 s18, 0\ns_cbranch_scc1 L_end")
        tr_store(o.trace)
    if o.stamps:
        a("s_waitcnt vmcnt(0)")
        st(7)
        a("s_cmp_lg_u32 s18, 0\ns_cbranch_scc1 L_end")
        if o.dbgst:
            a("s_cmp_lg_u32 s2, 100\ns_cbranch_scc1 L_end\ns_waitcnt lgkmcnt(0)")
            a("s_mov_b32 s48, s14\ns_mov_b32 s49, s15\ns_mov_b32 s50, 256\ns_mov_b32 s51, 0x20000\nv_mov_b32 v0, 0\ns_mov_b64 exec, 1")
            a("v_mov_b32 v2, s80\nbuffer_store_dword v2, v0, s[48:51], 0 offen offset:16")
            for k in range(1, 8):
                a(f"s_sub_u32 s56, s{80+2*k}, s80\nv_mov_b32 v2, s56\nbuffer_store_dword v2, v0, s[48:51], 0 offen offset:{16+4*k}\ns_nop 1")
        else:
            a(store_stamps(8, 16, 17, 2, vt=0, tmp=72))
    a("s_endpgm")

    if o.share_g:
        a("L_geglu:")
        for t in range(4):
            for ins, _ in geglu_tile(ACCA, t, 0, T + 8 * (t & 1), PK + 4 * (t & 1), packed=o.pk, cpair=4): a(ins)
        a("s_setpc_b64 s[8:9]")
    a("L_loader:")
    a(f"""
    s_setprio 3
    v_lshrrev_b32 v24, 3, v1
    v_mul_u32_u24 v25, 3584, v24
    v_and_b32 v26, 7, v1
    v_bfe_u32 v27, v1, 4, 1
    v_lshlrev_b32 v28, 1, v27
    v_xor_b32 v28, v26, v28               ; c gate
    v_lshl_add_u32 v2, v28, 4, v25
    v_xor_b32 v28, 4, v28
    v_lshl_add_u32 v6, v28, 4, v25
    s_lshl_b32 s56, s53, 8
    v_add_u32 v2, s56, v2
    v_add_u32 v6, s56, v6
    """)
    for k in range(1, 4):
        a(f"v_add_u32 v{2+k}, {k*(8*3584-1024)}, v2\nv_add_u32 v{6+k}, {k*(8*3584-1024)}, v6")
    a(f"""
    v_mul_u32_u24 v25, 896, v24
    v_lshlrev_b32 v28, 2, v27
    v_xor_b32 v28, v26, v28
    v_lshl_add_u32 v10, v28, 4, v25
    s_lshl_b32 s56, s55, 7
    v_add_u32 v10, s56, v10
    """)
    for k in range(1, 4):
        a(f"v_add_u32 v{10+k}, {k*(8*896-1024)}, v10")
    a(f"""
    v_lshrrev_b32 v27, 4, v1
    v_xor_b32 v28, v26, v27
    v_lshl_add_u32 v14, v28, 4, v25
    v_xor_b32 v28, 4, v28
    v_lshl_add_u32 v15, v28, 4, v25
    s_mul_i32 s56, s52, {128*896}
    v_add_u32 v14, s56, v14
    s_add_u32 s56, s56, {8*896-1024}
    v_add_u32 v15, s56, v15
    v_add_u32 v16, {2*(8*896-1024)}, v14
    v_add_u32 v17, {2*(8*896-1024)}, v15
    """)
    LT = 70 if o.trace == "L" else 80
    XT, WT, DT = 20, 44, 36+16
    for j in range(4):
        a(f"""
    s_cmp_eq_u32 s{RT+j}, 5
    s_cselect_b32 s56, 9, s{RT+j}
    s_cmp_eq_u32 s{RT+j}, 6
    s_cselect_b32 s56, 5, s56
    s_lshl_b32 s{72+j}, s56, 14
        """)
    for j in range(7):
        a(f"s_lshl_b32 s{33+j}, s{RT+j}, 7")
        a(f"s_mul_i32 s{44+j}, s{RT+j}, {64*3584}")
        a(f"s_mul_i32 s{RT+j}, s{RT+j}, {256*896}")
    a("s_waitcnt lgkmcnt(0)")
    srd(a, 24, 4, 2048 * 896)
    srd(a, 28, 6, 448 * 3584)
    a(f"""
    s_mov_b32 s56, s8
    s_mov_b32 s57, s9
    s_mov_b32 s58, {448*3584}
    s_mov_b32 s59, 0x20000
    s_mov_b32 s68, s10
    s_mov_b32 s69, s11
    """)
    a(f"""
    s_mov_b32 s20, s10
    s_mov_b32 s21, s11
    s_mov_b32 s22, {1792*896}
    s_mov_b32 s23, 0x20000
    """)
    def loader_body(role):
        order = []
        def xdmaL(s):
            for g in range(4):
                a(f"s_mov_b32 m0, {s*16384 + g*4096}")
                a(f"s_add_u32 s67, s{33+s}, {g*32*896}")
                for k in range(4):
                    a(f"buffer_load_dwordx4 v{14+k}, s[24:27], s67 offen offset:{k*1024} lds")
                    order.append(("W", s))
        def wdma(s):
            slot = s % 3; pas = s // 7; ss = s % 7
            for mat in range(2):
                sr = "s[28:31]" if mat == 0 else "s[56:59]"
                for g in range(2):
                    a(f"s_mov_b32 m0, {114688 + slot*16384 + mat*8192 + g*4096}")
                    a(f"s_add_u32 s67, s{44+ss}, {32*g*3584 + pas*128}")
                    for k in range(4):
                        a(f"buffer_load_dwordx4 v{2+4*mat+k}, {sr}, s67 offen offset:{k*1024} lds")
                        order.append(("W", s))
        def ddma(p, j, unit, phys=False, dyn_unit=None):
            for g in range(4):
                if dyn_unit is None:
                    a(f"s_mov_b32 m0, {unit*16384 + g*4096}")
                else:
                    a(f"s_add_u32 m0, s{dyn_unit}, {g*4096}")
                if phys:
                    a(f"s_mov_b32 s67, {(256*j + 128*(g>>1) + 64*p + 32*(g&1))*896}")
                else:
                    a(f"s_add_u32 s67, s{RT+j}, {(128*(g>>1) + 64*p + 32*(g&1))*896}")
                for k in range(4):
                    a(f"buffer_load_dwordx4 v{10+k}, s[20:23], s67 offen offset:{k*1024} lds")
                    order.append(("D", p, j))
        def wait_tag(tag):
            idx = [i for i, t in enumerate(order) if t == tag]
            if not idx: return
            n = len(order) - 1 - max(idx)
            a(f"s_waitcnt vmcnt({min(n, 63)})")
        def room(k):
            a(f"s_waitcnt vmcnt({63-k})")
        doW = role in ("all", "W"); doX = role in ("all", "X")
        tr("L")
        if o.p_order == 1:
            a("s_barrier\ns_barrier")
        a("s_barrier")
        for i in range(15):
            if 2 <= i <= 13: wait_tag(("W", i))
            tr("L")
            a("s_barrier")
            if doX and i + 2 <= 6:
                room(16); xdmaL(i + 2)
            if doW and i + 2 <= 13:
                room(16); wdma(i + 2)
            if doW and i in o.w7pf:
                sN = i + 3; pas = sN // 7; ss = sN % 7
                room(16)
                for mat in range(2):
                    sr = "s[28:31]" if mat == 0 else "s[56:59]"
                    for g in range(2):
                        a(f"s_add_u32 s67, s{44+ss}, {32*g*3584 + pas*128}")
                        for k in range(4):
                            a(f"buffer_load_dwordx4 v[{32+4*k+16*g+32*mat}:{35+4*k+16*g+32*mat}], v{2+4*mat+k}, {sr}, s67 offen offset:{k*1024}")
                            order.append(("PF", sN))
            if doX:
                if 8 <= i <= 12:
                    room(16); ddma(0, i - 8, i - 8, phys=True)
                if i == 12:
                    room(16); ddma(0, 5, 9, phys=True)
                if i == 13:
                    room(16); ddma(0, 6, 5, phys=True)
                    room(16); ddma(1, 0, 7)
                if i == 14 and not o.b12_late:
                    room(16); ddma(1, 1, 6)
                    if not o.st_via_p:
                        room(16); ddma(1, 2, 8)
        if role == "W":
            a("s_endpgm")
            return
        if o.st_via_p and o.half_bar: a("s_barrier")
        a("s_waitcnt vmcnt(0)")
        a("LST0")
        a("s_barrier")
        if o.b12_late:
            room(16); ddma(1, 1, 6)
            room(16); ddma(1, 2, 8)
            a("s_waitcnt vmcnt(0)")
        a("s_barrier")
        a("LST1")
        if o.st_via_p:
            room(16); ddma(1, 2, 8)
        for j in (3, 4, 5, 6):
            room(16); ddma(1, j, None, dyn_unit=72 + j - 3)
        a("LST2")
        a("s_waitcnt vmcnt(0)")
        a("LST4")
        a("s_barrier")
        a("LSTORE")
        tr_store("L", tmp=24)
        a("s_endpgm")
    if o.two_l:
        a("s_cmp_eq_u32 s18, 6\ns_cbranch_scc1 L_loaderX")
        loader_body("W")
        a("L_loaderX:")
        loader_body("X")
    else:
        loader_body("all")

    a("L_poller:")
    a(f"""
    s_setprio 3
    s_mul_i32 s56, s21, 112
    v_lshrrev_b32 v4, 3, v1
    v_add_u32 v4, s56, v4
    v_mul_u32_u24 v4, 3584, v4
    v_and_b32 v5, 7, v1
    v_lshl_add_u32 v4, v5, 4, v4
    s_lshl_b32 s56, s53, 8
    s_add_u32 s56, s56, 128
    v_add_u32 v4, s56, v4
    v_lshrrev_b32 v16, 3, v1
    s_and_b32 s56, s21, 1
    s_lshl_b32 s56, s56, 5
    v_add_u32 v16, s56, v16
    v_mul_u32_u24 v16, 3584, v16
    v_lshl_add_u32 v16, v5, 4, v16
    s_lshl_b32 s56, s53, 8
    v_add_u32 v16, s56, v16
    s_add_u32 s60, s22, 4
    s_cmp_ge_u32 s60, 7
    s_cselect_b32 s56, 7, 0
    s_sub_u32 s60, s60, s56
    s_add_u32 s61, s60, 1
    s_cmp_ge_u32 s61, 7
    s_cselect_b32 s56, 7, 0
    s_sub_u32 s61, s61, s56
    s_add_u32 s62, s61, 1
    s_cmp_ge_u32 s62, 7
    s_cselect_b32 s56, 7, 0
    s_sub_u32 s62, s62, s56
    s_mul_i32 s60, s60, {64*3584}
    s_mul_i32 s61, s61, {64*3584}
    s_mul_i32 s62, s62, {64*3584}
    v_mov_b32 v2, 0
    v_lshlrev_b32 v13, 20, v1
    s_waitcnt lgkmcnt(0)
    """)
    srd(a, 28, 6, 448 * 3584)
    srd(a, 32, 8, 448 * 3584)
    srd(a, 40, 16, WS_SIZE)
    srd(a, 44, 12, 2048 * 896)
    srd(a, 48, 14, 256)
    a(f"""
    s_lshr_b32 s56, s21, 1
    s_cmp_eq_u32 s56, 0
    s_cselect_b32 s64, s6, s8
    s_cselect_b32 s65, s7, s9
    s_mov_b32 s66, {448*3584}
    s_mov_b32 s67, 0x20000
    """)
    def wa_rest(sreg, base):
        for i in range(4):
            a(f"s_add_u32 s56, s{sreg}, {i*8*3584}")
            a(f"buffer_load_dwordx4 v[{base+4*i}:{base+4*i+3}], v16, s[64:67], s56 offen")
    if o.prefetch and o.rmul == 1:
        wa_rest(60, 100)
    a(f"""
    s_cmp_lg_u32 s2, 0
    s_cbranch_scc1 L_p_nonce
    s_memrealtime s[70:71]
    s_waitcnt lgkmcnt(0)
    v_mov_b32 v6, s70
    v_mov_b32 v7, s71
    s_mov_b64 exec, 1
    buffer_store_dwordx2 v[6:7], v2, s[48:51], 0 offen sc1
    s_mov_b64 exec, -1
L_p_nonce:
    """)
    def pbatch():
        if o.prefetch:
            for k in range(o.pb_n):
                a(f"s_mov_b32 s56, {k*8*3584}")
                a(f"buffer_load_dwordx4 v[{20+8*(k%8)}:{23+8*(k%8)}], v4, s[28:31], s56 offen")
                a(f"buffer_load_dwordx4 v[{24+8*(k%8)}:{27+8*(k%8)}], v4, s[32:35], s56 offen")
    if o.p_order == 1:
        a("s_barrier"); pbatch(); a("s_barrier")
    a("s_barrier")
    if o.p_order == 0: pbatch()
    a(f"""
    s_mov_b64 exec, 0x1ff
    buffer_load_dword v14, v13, s[40:43], 0 offen
    s_mov_b64 exec, 3
    buffer_load_dword v15, v13, s[44:47], 0 offen
    s_mov_b64 exec, -1
    s_lshl_b32 s72, s52, 4
    s_add_u32 s72, s72, s53
    s_lshl_b32 s72, s72, 7
    s_add_u32 s72, s72, {FLAG_OFF}
    s_add_u32 s73, s72, {16*16*128}
    s_lshr_b32 s74, s54, 1
    s_lshl_b32 s74, s74, 11
    s_add_u32 s74, s74, {FLAG_OFF}
    s_add_u32 s75, s74, {16*16*128}
    v_min_u32 v8, 13, v1
    v_lshlrev_b32 v8, 7, v8
    """)
    for i in range(9):
        a("s_barrier")
        if o.p_order == 2 and i == 0:
            for _ in range(5): a("s_nop 15")
            pbatch()
        if o.p_order == 3 and i == 1:
            pbatch()
        if o.p_order == 4 and i == 0:
            pbatch()
        if o.p_order in (5, 6) and i == o.p_order - 3:
            pbatch()
        if i == 7:
            a("buffer_load_dwordx2 v[6:7], v2, s[48:51], 0 offen sc1")
    a(f"""
    s_mov_b32 s76, 0
L_p_chknonce:
    s_waitcnt vmcnt(0)
    v_readfirstlane_b32 s70, v6
    v_readfirstlane_b32 s71, v7
    s_add_u32 s76, s76, 1
    s_nop 3
    s_or_b32 s56, s70, s71
    s_cmp_lg_u32 s56, 0
    s_cbranch_scc1 L_p_havenonce
    s_cmp_gt_u32 s76, {SPIN}
    s_cbranch_scc1 L_p_havenonce
    buffer_load_dwordx2 v[6:7], v2, s[48:51], 0 offen sc1
    s_branch L_p_chknonce
L_p_havenonce:
    s_barrier                              ; R_9
    PST0
    s_mov_b64 exec, 1
    buffer_store_dwordx2 v[6:7], v2, s[40:43], s72 offen sc1     ; flag A
    s_mov_b64 exec, -1
    s_barrier                              ; R_10
    s_barrier                              ; R_11
    buffer_load_dwordx2 v[10:11], v8, s[40:43], s74 offen sc1
    s_barrier                              ; R_12
APOLL
L_p_gotA:
    PST1
    s_barrier                              ; R_13
    PHB_SETUP
    s_barrier                              ; R_14
    PHB_BODY
    PST4
    PSTORE
    s_endpgm
L_helper:
    s_sub_u32 s56, s2, 224
    s_lshr_b32 s56, s56, 3
    s_mul_i32 s56, s56, {NW}
    s_add_u32 s56, s56, s18
    v_lshlrev_b32 v2, 4, v1
CODEPF
    s_waitcnt lgkmcnt(0)
    s_mov_b32 s36, s10
    s_mov_b32 s37, s11
    s_mov_b32 s38, {1792*896}
    s_mov_b32 s39, 0x20000
    s_mul_i32 s62, s19, 7
    s_lshr_b32 s62, s62, 2
HROT
HDELAY
L_h_loop:
    ; KB index k=s56 in [0,1568): part = k>=784 ; kk = k - 784*part ; block b = kk/56, off = kk%56 : addr = (128b + 64*part)*896 + off*1024
    s_cmp_ge_u32 s56, 784
    s_cselect_b32 s60, 784, 0
    s_cselect_b32 s61, {64*896}, 0
    s_sub_u32 s60, s56, s60
    s_mul_i32 s58, s60, 1171
    s_lshr_b32 s58, s58, 16               ; kk/56
    s_mul_i32 s59, s58, 56
    s_sub_u32 s59, s60, s59
    s_lshl_b32 s59, s59, 10
    s_add_u32 s58, s58, s62
    s_cmp_ge_u32 s58, 14
    s_cselect_b32 s63, 14, 0
    s_sub_u32 s58, s58, s63
    s_mul_i32 s58, s58, {128*896}
    s_add_u32 s58, s58, s59
    s_add_u32 s58, s58, s61
    buffer_load_dwordx4 v[4:7], v2, s[36:39], s58 offen
    s_waitcnt vmcnt(40)
    s_add_u32 s56, s56, {4*NW}
    s_cmp_lt_u32 s56, 1568
    s_cbranch_scc1 L_h_loop
L_end:
    s_endpgm
    """)
    a(rodata_begin())
    a(descriptor(KN, vgpr=256, sgpr=102))
    txt = a.text()
    ap1 = f"""    s_mov_b32 s76, 0
L_p_pollA:
    s_waitcnt vmcnt(0)
    v_cmp_ne_u64 vcc, s[70:71], v[10:11]
    s_add_u32 s76, s76, 1
    s_nop 4
    s_cbranch_vccz L_p_gotA
    s_cmp_gt_u32 s76, {SPIN}
    s_cbranch_scc1 L_p_gotA
    buffer_load_dwordx2 v[10:11], v8, s[40:43], s74 offen sc1
    s_branch L_p_pollA
"""
    ap2 = f"""    s_mov_b32 s76, 0
L_p_pollA:
    buffer_load_dwordx2 v[12:13], v8, s[40:43], s74 offen sc1
    s_waitcnt vmcnt(1)
    v_cmp_ne_u64 vcc, s[70:71], v[10:11]
    s_add_u32 s76, s76, 1
    s_nop 4
    s_cbranch_vccz L_p_gotA
    buffer_load_dwordx2 v[10:11], v8, s[40:43], s74 offen sc1
    s_waitcnt vmcnt(1)
    v_cmp_ne_u64 vcc, s[70:71], v[12:13]
    s_nop 4
    s_cbranch_vccz L_p_gotA
    s_cmp_gt_u32 s76, {SPIN}
    s_cbranch_scc0 L_p_pollA
"""
    txt = txt.replace("APOLL\n", ap2 if o.apoll2 else ap1)
    if o.st_via_p:
        setup = ""
        for cw in range(4):
            for i in range(2):
                setup += f"""    s_lshl_b32 s56, s52, 2
    s_add_u32 s56, s56, {2*(cw&1)+i}
    s_mul_i32 s56, s56, 112
    s_lshl_b32 s57, s53, 3
    s_add_u32 s56, s56, s57
    s_add_u32 s56, s56, {2*(cw>>1)+4}
    s_lshl_b32 s{90+2*cw+i}, s56, 10
"""
        setup += """    v_lshlrev_b32 v20, 4, v1
    v_add_u32 v21, 131072, v20
    v_lshlrev_b32 v22, 3, v1
"""
        def half(ts):
            b = ""
            k = 0
            for cw in range(4):
                for t in ts:
                    b += f"    ds_read_b128 v[{32+4*k}:{35+4*k}], v21 offset:{cw*4096+t*1024}\n"; k += 1
            k = 0
            n = 4 * len(ts)
            for cw in range(4):
                for t in ts:
                    b += f"    s_waitcnt lgkmcnt({n-1-k})\n    buffer_store_dwordx4 v[{32+4*k}:{35+4*k}], v20, s[40:43], s{90+2*cw+(t&1)} offen offset:{(t>>1)*1024} {o.hst}\n"; k += 1
            return b
        body = ""
        if o.half_bar:
            body += "    s_barrier\n" + half((0, 1)) + "    s_barrier\n" + half((2, 3)).replace("v[3", "v[3")
        else:
            body += "    s_barrier\n" + half((0, 1, 2, 3))
        body += """    s_waitcnt vmcnt(0)
    s_mov_b64 exec, 15
    buffer_store_dwordx2 v[6:7], v22, s[40:43], s73 offen sc1
    s_mov_b64 exec, -1
"""
        txt = txt.replace("    PHB_SETUP\n", setup).replace("    PHB_BODY\n", body)
    else:
        txt = txt.replace("    PHB_SETUP\n", "").replace("    PHB_BODY\n", "    s_barrier                              ; G\n")
    codepf = """    ; prefetch this kernel's code into the XCD's L2: wave index hx*6+w loads KB number k, k+24
    s_getpc_b64 s[40:41]
L_pc_here:
    s_add_u32 s40, s40, KSTART-L_pc_here
    s_addc_u32 s41, s41, -1
    s_lshl_b32 s57, s56, 10
    v_add_u32 v3, s57, v2
    v_min_u32 v3, KEND-KSTART-16, v3
    global_load_dwordx4 v[8:11], v3, s[40:41]
    v_add_u32 v3, 24576, v3
    v_min_u32 v3, KEND-KSTART-16, v3
    global_load_dwordx4 v[12:15], v3, s[40:41]
"""
    txt = txt.replace("CODEPF\n", codepf if o.codepf else "")
    txt = txt.replace(KN + ":\n", KN + ":\nKSTART:\n", 1)
    txt = txt.replace("L_end:\n    s_endpgm\n", "L_end:\n    s_endpgm\nKEND:\n")
    txt = txt.replace("    TRU\n", "    s_memrealtime s[72:73]\n" if o.trace == "U" else "")
    txt = txt.replace("HROT\n", "" if o.hrot else "    s_mov_b32 s62, 0\n")
    txt = txt.replace("HDELAY\n", "".join("    s_sleep 16\n" for _ in range(o.hdelay)))
    for k in range(5):
        txt = txt.replace(f"    PST{k}\n", f"    s_memrealtime s[{80+2*k}:{81+2*k}]\n" if o.stamps else "")
    txt = txt.replace("    PSTORE\n", ("s_add_u32 s2, s2, 256\n" + store_stamps(5, 16, 17, 2, vt=20, tmp=56)) if (o.stamps and not o.dbgst) else "")
    for k in range(6):
        txt = txt.replace(f"LST{k}\n", f"s_memrealtime s[{80+2*k}:{81+2*k}]\n" if o.stamps else "")
    txt = txt.replace("LSTORE\n", ("s_add_u32 s2, s2, 512\n" + store_stamps(6, 16, 17, 2, vt=20, tmp=56)) if (o.stamps and not o.dbgst) else "")
    open(name, "w").write(txt)

if __name__ == "__main__":
    def base():
        o = Opt(); o.b_poll_step = 20; o.b_sched = (26, 27, 28, 31, 34, 38, 42); o.pre_h = 4; o.b12_late = False
        o.share_g = True; o.fast_tail = True; o.p_order = 3; o.prefetch = False; o.st_via_p = False; o.stamps = True
        o.poll_k = 3; o.poll_gap = 6; return o
    o = base(); gen("f0.s", o)
    o = base(); o.apoll2 = False; gen("f1.s", o)
    o = base(); o.stamps = False; gen("f0n.s", o)
    o = base(); o.stamps = False; o.apoll2 = False; gen("f1n.s", o)
```

```python
import sys, struct
from asmlib import *

def f2u(x):
    return struct.unpack("<I", struct.pack("<f", x))[0]

C0 = -2.0 * 1.4426950408889634 * 0.7978845608028654
C1 = C0 * 0.044715
FLAG_OFF = 8 << 20
SPIN = 0x4000
WS_SIZE = 9 << 20
MF = "v_mfma_f32_32x32x16_bf16"

def srd(a, d, lo, size):
    a(f"""
    s_mov_b32 s{d}, s{lo}
    s_mov_b32 s{d+1}, s{lo+1}
    s_mov_b32 s{d+2}, {size}
    s_mov_b32 s{d+3}, 0x20000
    """)

class Opt:
    stamps = False
    prefetch = True
    geglu_steps = 26
    abl = ""
    trace = ""
    rot = True
    wd_start = 11
    pk = True
    helpers = True
    wbx4 = True
    extraH = True
    flagA_bar = 9
    hrot = True
    hst = 'sc1'
    hld = 'sc1'
    hl_per_tile = (0, 0, 0, 0)
    pre_sb_last = 19
    hl_rate = 3
    g_loads = 4
    r7split = True
    r7late = True
    apoll2 = True
    poll_gap = 6
    w7pf = ()
    pb_n = 14
    st_via_p = True
    e_step = 19
    half_bar = True
    fast_tail = True
    share_g = True
    pre_h = 8
    b12_late = True
    late_st = False
    poll_k = 1
    two_l = True
    p_order = 0
    codepf = True
    fb_step = 0
    rmul = 2
    hdelay = 0
    delay_end = 0
    b_look = 2
    b_poll_step = 14
    b_sched = (22, 24, 26, 29, 32, 36, 40)
    outsc = 'sc1'
    dbgst = False
    sb_step = 15

def gen(name, o):
    a = Asm()
    NW = 7 if o.two_l else 6
    a(header([(KN, 256 if o.helpers else 224, NW * 64, 163840)]))
    a(kernel_begin(KN))
    st = (lambda k: a(f"s_memrealtime s[{80+2*k}:{81+2*k}]")) if o.stamps else (lambda k: None)
    cnt = {"C": 0, "L": 0, "S": 0, "P": 0, "D": 0, "K": 0, "U": 0, "E": 0}
    def tre():
        if o.trace == "E" and cnt["E"] < 14:
            k = cnt["E"]; cnt["E"] += 1
            a(f"s_memrealtime s[{70+2*k}:{71+2*k}]")
    def tru():
        if o.trace == "U" and cnt["U"] < 16:
            k = cnt["U"]; cnt["U"] += 1
            if k == 1: k = cnt["U"]; cnt["U"] += 1
            a(f"s_memrealtime s[{70+2*k}:{71+2*k}]")
    def trk():
        if o.trace == "K" and cnt["K"] < 16:
            k = cnt["K"]; cnt["K"] += 2
            a(f"s_memtime s[{70+2*k}:{71+2*k}]\ns_memrealtime s[{72+2*k}:{73+2*k}]")
    def tr(who):
        if o.trace == who and cnt[who] < 16:
            k = cnt[who]; cnt[who] += 1
            a(f"s_memtime s[{70+2*k}:{71+2*k}]")
    def tr_store(who, vt=0, tmp=24):
        if o.trace == who:
            a("s_waitcnt vmcnt(0) lgkmcnt(0)")
            for k in range(cnt[who], 14 if who == "E" else 16):
                a(f"s_mov_b32 s{70+2*k}, 0\ns_mov_b32 s{71+2*k}, 0")
            a(store_stamps(16, 16, 17, 2, base=70, nslot=16, vt=vt, tmp=tmp))
    a(f"""
    s_cmp_ge_u32 s2, {256 if o.helpers else 224}
    s_cbranch_scc1 L_end
    s_load_dwordx4 s[4:7], s[0:1], 0      ; x, wg
    s_load_dwordx4 s[8:11], s[0:1], 16
    s_load_dwordx4 s[12:15], s[0:1], 32
    s_load_dwordx2 s[16:17], s[0:1], 48   ; ws
    """)
    st(0); trk(); tru()
    a(f"""
    v_and_b32 v1, 63, v0                  ; lane
    v_lshrrev_b32 v2, 6, v0               ; wave
    s_and_b32 s19, s2, 7                  ; xcd
    v_readfirstlane_b32 s18, v2
    s_lshr_b32 s20, s2, 3                 ; within 0..27
    s_mul_i32 s21, s20, 37
    s_lshr_b32 s21, s21, 8                ; l4 = within/7  (0..3)
    s_mul_i32 s22, s21, 7
    s_sub_u32 s22, s20, s22               ; l7 = within%7  (0..6)
    s_and_b32 s52, s19, 3
    s_lshl_b32 s52, s52, 2
    s_add_u32 s52, s52, s21
    s_lshr_b32 s53, s19, 2
    s_mul_i32 s53, s53, 7
    s_add_u32 s53, s53, s22
    s_lshl_b32 s54, s19, 2
    s_add_u32 s54, s54, s21
    s_mov_b32 s55, s22
    s_mul_i32 s23, s21, {o.rmul}
    s_add_u32 s23, s23, s22
    s_cmp_ge_u32 s23, 7
    s_cselect_b32 s56, 7, 0
    s_sub_u32 s23, s23, s56
    """)
    if not o.rot: a("s_mov_b32 s23, 0")
    RT = 60
    for j in range(7):
        a(f"""
    s_add_u32 s{RT+j}, s23, {j}
    s_cmp_ge_u32 s{RT+j}, 7
    s_cselect_b32 s56, 7, 0
    s_sub_u32 s{RT+j}, s{RT+j}, s56
        """)
    a(f"""
    s_cmp_ge_u32 s2, 224
    s_cbranch_scc1 L_helper
    s_cmp_eq_u32 s18, 4
    s_cbranch_scc1 L_loader
    s_cmp_eq_u32 s18, 6
    s_cbranch_scc1 L_loader
    s_cmp_eq_u32 s18, 5
    s_cbranch_scc1 L_poller
    """)
    XF = 8; WB = 6; DB = 16; T = 24; PK = 40; FR = 48; ACCA = 112; ACCB = 176
    a(f"""
    v_lshrrev_b32 v24, 3, v1
    v_mul_u32_u24 v25, 896, v24
    v_and_b32 v26, 7, v1
    v_lshrrev_b32 v27, 4, v1
    v_xor_b32 v28, v26, v27
    v_lshl_add_u32 v2, v28, 4, v25
    v_xor_b32 v28, 4, v28
    v_lshl_add_u32 v3, v28, 4, v25
    s_mul_i32 s56, s52, {128*896}
    s_mul_i32 s57, s18, {32*896}
    s_add_u32 s56, s56, s57
    v_add_u32 v2, s56, v2
    s_add_u32 s56, s56, {8*896-1024}
    v_add_u32 v3, s56, v3
    v_add_u32 v4, {2*(8*896-1024)}, v2
    v_add_u32 v5, {2*(8*896-1024)}, v3
    v_mul_u32_u24 v25, 3584, v24
    v_bfe_u32 v27, v1, 4, 1
    v_lshlrev_b32 v28, 1, v27
    v_xor_b32 v28, v26, v28
    s_lshr_b32 s56, s18, 1
    s_lshl_b32 s57, s56, 2
    v_xor_b32 v28, s57, v28               ; ^ (mat<<2)
    v_lshl_add_u32 v48, v28, 4, v25
    s_lshl_b32 s57, s53, 8
    s_and_b32 s59, s18, 1
    s_mul_i32 s59, s59, {32*3584}
    s_add_u32 s57, s57, s59
    v_add_u32 v48, s57, v48
    v_add_u32 v49, {8*3584-1024}, v48
    v_add_u32 v50, {2*(8*3584-1024)}, v48
    v_add_u32 v51, {3*(8*3584-1024)}, v48
    s_lshl_b32 s57, s56, 13
    s_and_b32 s59, s18, 1
    s_lshl_b32 s59, s59, 12
    s_add_u32 s32, s57, s59
    s_add_u32 s32, s32, 114688
    s_lshl_b32 s58, s18, 12               ; c*4096
    s_waitcnt lgkmcnt(0)
    TRU
    s_cmp_eq_u32 s56, 0
    s_cselect_b32 s28, s6, s8
    s_cselect_b32 s29, s7, s9
    s_mov_b32 s30, {448*3584}
    s_mov_b32 s31, 0x20000
    """)
    srd(a, 24, 4, 2048 * 896)
    def xdma(s):
        a(f"""
    s_add_u32 s57, s58, {s*16384}
    s_mov_b32 m0, s57
    s_lshl_b32 s59, s{RT+s}, 7
    buffer_load_dwordx4 v2, s[24:27], s59 offen lds
    buffer_load_dwordx4 v3, s[24:27], s59 offen offset:1024 lds
    buffer_load_dwordx4 v4, s[24:27], s59 offen offset:2048 lds
    buffer_load_dwordx4 v5, s[24:27], s59 offen offset:3072 lds
        """)
    def wq(s):
        a(f"""
    s_add_u32 s57, s32, {s*16384}
    s_mov_b32 m0, s57
    s_mul_i32 s59, s{RT+s}, {64*3584}
    buffer_load_dwordx4 v48, s[28:31], s59 offen lds
    buffer_load_dwordx4 v49, s[28:31], s59 offen offset:1024 lds
    buffer_load_dwordx4 v50, s[28:31], s59 offen offset:2048 lds
    buffer_load_dwordx4 v51, s[28:31], s59 offen offset:3072 lds
        """)
    tr("S")
    if o.p_order == 1:
        xdma(0); wq(0)
        a("s_barrier")
        a("s_barrier")
        xdma(1); wq(1)
    else:
        xdma(0); wq(0); xdma(1); wq(1)
    tr("S"); tru()
    a("s_barrier")
    tr("S"); tru()
    if o.trace == "U":
        for n in (12, 8, 4, 0):
            a(f"s_waitcnt vmcnt({n})"); tru()
    if o.trace == "S":
        for n in (12, 8, 4, 0):
            a(f"s_waitcnt vmcnt({n})"); tr("S")
    srd(a, 40, 16, WS_SIZE)
    srd(a, 44, 12, 2048 * 896)
    a(f"""
    ; W A-frag bases
    v_lshrrev_b32 v24, 5, v1              ; h
    v_bfe_u32 v25, v1, 4, 1               ; mat / grp
    v_bfe_u32 v26, v1, 2, 2               ; rr
    v_and_b32 v27, 3, v1                  ; cc
    v_lshl_add_u32 v28, v24, 3, v26       ; 8h+rr
    v_lshlrev_b32 v28, 7, v28
    v_lshl_add_u32 v28, v25, 13, v28
    v_lshl_add_u32 v28, v27, 3, v28
    v_add_u32 v28, 114688, v28
    v_bfe_u32 v29, v1, 3, 1
    v_lshl_add_u32 v29, v25, 1, v29       ; g
    s_lshr_b32 s56, s18, 1
    s_lshl_b32 s56, s56, 1                ; 2fh
    v_xor_b32 v30, s56, v29
    v_lshl_add_u32 v6, v30, 5, v28
    v_xor_b32 v7, 32, v6
    ; x frag bases
    v_and_b32 v26, 31, v1
    v_bfe_u32 v27, v1, 1, 3
    v_xor_b32 v27, v27, v24
    v_lshlrev_b32 v27, 4, v27
    v_lshl_add_u32 v27, v26, 7, v27
    s_and_b32 s56, s18, 1
    s_lshl_b32 s56, s56, 13
    v_add_u32 v8, s56, v27
    v_xor_b32 v9, 32, v8
    v_xor_b32 v10, 64, v8
    v_xor_b32 v11, 96, v8
    v_add_u32 v12, 0x10000, v8
    v_add_u32 v13, 0x10000, v9
    v_add_u32 v14, 0x10000, v10
    v_add_u32 v15, 0x10000, v11
    ; Wd A-frag bases: row = 64kh + 4h + rr ; granule = (grp ^ 2b) ^ (2*kh) for acc0 (n2=kh)
    v_bfe_u32 v26, v1, 2, 2
    v_lshl_add_u32 v26, v24, 2, v26       ; 4h+rr
    s_lshr_b32 s56, s18, 1                ; kh
    s_lshl_b32 s57, s56, 6
    v_add_u32 v26, s57, v26
    v_lshlrev_b32 v26, 7, v26
    v_bfe_u32 v27, v1, 3, 1
    v_lshlrev_b32 v27, 1, v27
    v_xor_b32 v27, v27, v25
    s_lshl_b32 s57, s56, 1
    v_xor_b32 v27, s57, v27
    v_lshl_add_u32 v26, v27, 5, v26
    v_and_b32 v27, 3, v1
    v_lshl_add_u32 v16, v27, 3, v26
    v_xor_b32 v17, 64, v16
    v_lshlrev_b32 v22, 4, v1
    s_mov_b32 s70, {f2u(C0)}
    s_mov_b32 s68, {f2u(C1)}
    s_mov_b32 s69, {f2u(C1)}
    v_mov_b32 v23, s70
    v_mov_b32 v52, s70
    v_mov_b32 v53, s70
    ; h store soffsets: ((mt*4 + 2mh)*112 + fc*8 + 2fh)*1024 ; +i*112K, +pass*4096, +j*1024
    s_and_b32 s56, s18, 1
    s_lshl_b32 s56, s56, 1
    s_lshl_b32 s57, s52, 2
    s_add_u32 s56, s56, s57
    s_mul_i32 s56, s56, 112
    s_lshl_b32 s57, s53, 3
    s_add_u32 s56, s56, s57
    s_lshr_b32 s57, s18, 1
    s_lshl_b32 s57, s57, 1
    s_add_u32 s56, s56, s57
    s_lshl_b32 s36, s56, 10               ; pass A, i=0
    s_add_u32 s37, s36, {112*1024}        ; i=1
    s_add_u32 s38, s36, 4096              ; pass B
    s_add_u32 s39, s37, 4096
    """.replace("s_mov_b32 s70,", "s_mov_b32 s67,").replace("v23, s70", "v23, s67").replace("v202, s70", "v204, s67").replace("v203, s70", "v205, s67"))
    if not o.share_g:
        for i in range(128):
            a(f"v_mov_b32 v{ACCA+i}, 0")

    def p1_reads(n):
        s, q = n >> 2, n & 3
        b = FR + 16 * (n & 3)
        unit = s % 7
        xb = XF + q + (4 if unit >= 4 else 0)
        xo = (unit & 3) * 16384
        slot = s % 3
        r = []
        for i in range(2):
            r.append(f"ds_read_b128 v[{b+4*i}:{b+4*i+3}], v{xb} offset:{xo+i*4096}")
        for j in range(2):
            for e in range(2):
                r.append(f"ds_read_b64_tr_b16 v[{b+8+4*j+2*e}:{b+8+4*j+2*e+1}], v{WB+j} offset:{slot*16384+q*2048+e*512}")
        return [r[0], r[2], r[3], r[1], r[4], r[5]]
    def p1_mfmas(n):
        b = FR + 16 * (n & 3)
        acc = ACCA if (n < 28 or o.share_g) else ACCB
        m = []
        for j in range(2):
            for i in range(2):
                c = acc + 16 * (2 * j + i)
                src = "0" if (o.share_g and n in (0, 28)) else f"v[{c}:{c+15}]"
                m.append(f"{MF} v[{c}:{c+15}], v[{b+8+4*j}:{b+8+4*j+3}], v[{b+4*i}:{b+4*i+3}], {src}")
        return m
    def geglu_tile(acc, t, pas, tmp, pk, packed=False, cpair=None):
        j, i = t >> 1, t & 1
        g = acc + 16 * t
        L = []
        if not packed:
            for r in range(8): L.append((f"v_mul_f32 v{tmp+r}, v{g+r}, v{g+r}", 4))
            for r in range(8): L.append((f"v_fma_f32 v{tmp+r}, v{tmp+r}, s68, v23", 4))
            for r in range(8): L.append((f"v_mul_f32 v{tmp+r}, v{tmp+r}, v{g+r}", 4))
            for r in range(8): L.append((f"v_exp_f32 v{tmp+r}, v{tmp+r}", 8))
            for r in range(8): L.append((f"v_mul_f32 v{g+r}, v{g+r}, v{g+8+r}", 4))
            for r in range(8): L.append((f"v_add_f32 v{tmp+r}, 1.0, v{tmp+r}", 4))
            for r in range(8): L.append((f"v_rcp_f32 v{tmp+r}, v{tmp+r}", 8))
            L.append(("s_nop 0", 1))
            for r in range(8): L.append((f"v_mul_f32 v{g+r}, v{g+r}, v{tmp+r}", 4))
        else:
            P2 = lambda x: f"v[{x}:{x+1}]"
            for r in range(0, 8, 2): L.append((f"v_pk_mul_f32 {P2(tmp+r)}, {P2(g+r)}, {P2(g+r)}", 4))
            for r in range(0, 8, 2): L.append((f"v_pk_fma_f32 {P2(tmp+r)}, {P2(tmp+r)}, s[68:69], {P2(cpair)}", 4))
            for r in range(0, 8, 2): L.append((f"v_pk_mul_f32 {P2(tmp+r)}, {P2(tmp+r)}, {P2(g+r)}", 4))
            for r in range(8): L.append((f"v_exp_f32 v{tmp+r}, v{tmp+r}", 8))
            for r in range(0, 8, 2): L.append((f"v_pk_mul_f32 {P2(g+r)}, {P2(g+r)}, {P2(g+8+r)}", 4))
            for r in range(0, 8, 2): L.append((f"v_pk_add_f32 {P2(tmp+r)}, {P2(tmp+r)}, 1.0 op_sel_hi:[1,0]", 4))
            for r in range(8): L.append((f"v_rcp_f32 v{tmp+r}, v{tmp+r}", 8))
            L.append(("s_nop 0", 1))
            for r in range(0, 8, 2): L.append((f"v_pk_mul_f32 {P2(g+r)}, {P2(g+r)}, {P2(tmp+r)}", 4))
        for d in range(4): L.append((f"v_cvt_pk_bf16_f32 v{pk+d}, v{g+2*d}, v{g+2*d+1}", 4))
        so = 36 + 2 * pas + i
        if pas == 1 and o.st_via_p:
            L.append((f"ds_write_b128 v9, v[{pk}:{pk+3}] offset:{t*1024}", 4))
        else:
            L.append((f"buffer_store_dwordx4 v[{pk}:{pk+3}], v22, s[40:43], s{so} offen offset:{j*1024} {o.hst}", 4))
        return L
    a(f"""
    s_lshl_b32 s56, s54, 1
    s_and_b32 s57, s18, 1
    s_add_u32 s56, s56, s57
    s_mul_i32 s56, s56, 112
    s_lshr_b32 s57, s18, 1
    s_lshl_b32 s57, s57, 3
    s_add_u32 s56, s56, s57
    s_lshl_b32 s56, s56, 10
    v_mov_b32 v4, s67
    v_mov_b32 v5, s67
    """)
    a(f"""
    s_mov_b32 s24, s14
    s_mov_b32 s25, s15
    s_mov_b32 s26, 256
    s_mov_b32 s27, 0x20000
    ; per-lane B-flag offsets: lane = 2j + w2 (j<7): line of producer fc' = 2*((r+j)%7)+kh ; word 8*(mh_p + 2*w2)
    v_min_u32 v2, 13, v1
    v_and_b32 v3, 1, v2                   ; w2
    v_lshrrev_b32 v2, 1, v2               ; j
    v_add_u32 v2, s23, v2
    v_subrev_u32 v24, 7, v2
    v_cmp_le_u32 vcc, 7, v2
    s_nop 1
    v_cndmask_b32 v2, v2, v24, vcc
    v_lshlrev_b32 v2, 1, v2
    s_lshr_b32 s57, s18, 1
    v_add_u32 v2, s57, v2
    v_lshlrev_b32 v2, 7, v2
    v_lshl_add_u32 v2, v3, 4, v2          ; + 16*w2
    s_and_b32 s57, s54, 1
    s_lshl_b32 s57, s57, 3
    v_add_u32 v2, s57, v2                 ; + 8*mh_p
    s_lshr_b32 s32, s54, 1
    s_lshl_b32 s32, s32, 11
    s_add_u32 s32, s32, {FLAG_OFF + 16*16*128}
    s_lshl_b32 s21, s52, 4
    s_add_u32 s21, s21, s53
    s_lshl_b32 s21, s21, 7
    s_lshl_b32 s57, s18, 3
    s_add_u32 s21, s21, s57
    s_add_u32 s21, s21, {FLAG_OFF + 16*16*128}
    v_mov_b32 v3, 0
    """)
    UB = [48, 49, 50, 51, 33, 34, 35]
    for j in range(7):
        a(f"""
    s_cmp_eq_u32 s{RT+j}, 5
    s_cselect_b32 s57, 9, s{RT+j}
    s_cmp_eq_u32 s{RT+j}, 6
    s_cselect_b32 s57, 5, s57
    s_lshl_b32 s{UB[j]}, s57, 14
    s_lshl_b32 s{RT+j}, s{RT+j}, 14
    s_add_u32 s{RT+j}, s{RT+j}, s56
        """)
    ACC2 = 112 if o.share_g else 176
    HB0 = 176 if o.share_g else 112
    AFS = [96, 104, 240, 248]
    def hreg(n):
        m = n % 28
        return HB0 + 4 * m if m < 16 else 48 + 4 * (m - 16)
    def hload(n):
        p, j, v = n // 28, (n % 28) >> 2, n & 3
        b = hreg(n)
        r = []
        if p and v == 0: r.append(f"s_add_u32 s{RT+j}, s{RT+j}, 4096")
        r.append(f"buffer_load_dwordx4 v[{b}:{b+3}], v22, s[40:43], s{RT+j} offen offset:{v*1024} {o.hld}")
        return r

    vops = []
    preL = 0
    a("s_waitcnt vmcnt(8)")
    tr("C")
    a("s_barrier")
    tr("C")
    st(1); trk()
    for ins in p1_reads(0): a(ins)
    for ins in p1_reads(1): a(ins)
    for n in range(56):
        s, q = n >> 2, n & 3
        if o.r7late and n == 26:
            a("s_waitcnt lgkmcnt(6)")
        elif o.r7late and n == 27:
            a("s_waitcnt lgkmcnt(0)")
        elif q == 2:
            w = "s_waitcnt lgkmcnt(0)"
            if s + 1 in (1, o.flagA_bar): w = "s_waitcnt vmcnt(0) lgkmcnt(0)"
            a(w)
            a("s_barrier")
            tr("C")
            if s + 1 in (2, 7): trk()
        else:
            a("s_waitcnt lgkmcnt(6)" if n + 1 < 56 else "s_waitcnt lgkmcnt(0)")
        rd = p1_reads(n + 2) if (n + 2 < 56 and not (o.r7late and n in (26, 27))) else []
        mf = p1_mfmas(n)
        for k in range(4):
            a(mf[k])
            lo, hi = ([0, 3, 6, 6], [3, 6, 6, 6]) if q == 1 else ([0, 2, 4, 5], [2, 4, 5, 6])
            for ins in rd[lo[k]:hi[k]]: a(ins)
        if n == 44:
            a("buffer_load_dwordx2 v[40:41], v3, s[24:27], 0 offen sc1")
            vops.append(("N", 0))
        if 50 <= n <= 55:
            per = [(o.pre_h + 5 - i) // 6 for i in range(6)] if o.pre_h > 4 else [1, 1, 1, 1, 0, 0]
            for _ in range(per[n - 50]):
                for ins in hload(preL): a(ins)
                vops.append(("L", preL)); preL += 1
        if n == 27:
            if o.r7late and o.r7split: a("s_barrier")
            a("s_nop 7\ns_nop 7")
            if o.share_g:
                a("s_call_b64 s[8:9], L_geglu")
                a("s_add_u32 s36, s36, 4096\ns_add_u32 s37, s37, 4096")
            else:
                for t in range(4):
                    for ins, _ in geglu_tile(ACCA, t, 0, T + 8 * (t & 1), PK + 4 * (t & 1), packed=o.pk, cpair=4): a(ins)
            if o.r7late:
                a("s_barrier")
                tr("C")
                for ins in p1_reads(28): a(ins)
                for ins in p1_reads(29): a(ins)
    st(2); tr("D"); trk()
    pN = vops.index(("N", 0))
    a(f"""
    s_waitcnt vmcnt({len(vops) - 1 - pN})
    s_mov_b32 s28, 0
L_c_nonce:
    v_readfirstlane_b32 s30, v40
    v_readfirstlane_b32 s31, v41
    s_add_u32 s28, s28, 1
    s_nop 3
    s_or_b32 s29, s30, s31
    s_cmp_lg_u32 s29, 0
    s_cbranch_scc1 L_c_havenonce
    s_cmp_gt_u32 s28, {SPIN}
    s_cbranch_scc1 L_c_havenonce
    buffer_load_dwordx2 v[40:41], v3, s[24:27], 0 offen sc1
    s_waitcnt vmcnt(0)
    s_branch L_c_nonce
L_c_havenonce:
    """)
    a("s_nop 7")
    nextL = preL
    assert not (o.share_g and o.st_via_p)
    if o.st_via_p:
        a("s_lshl_b32 s56, s18, 12\ns_add_u32 s56, s56, 131072\nv_add_u32 v9, s56, v22")
        for t in range(4):
            for ins, _ in geglu_tile(ACCB, t, 1, T + 8 * (t & 1), PK + 4 * (t & 1), packed=o.pk, cpair=4): a(ins)
            if t == 1 and o.half_bar:
                a("s_waitcnt lgkmcnt(0)\ns_barrier")
        a("s_waitcnt lgkmcnt(0)")
    elif o.share_g:
        a("s_call_b64 s[8:9], L_geglu")
        for t in range(4): vops.append(("S", t))
    else:
        late_stores = []
        for t in range(4):
            pkreg = (240 + 4 * t) if o.late_st else (PK + 4 * (t & 1))
            tile = geglu_tile(ACCB, t, 1, T + 8 * (t & 1), pkreg, packed=o.pk, cpair=4)
            nins = len(tile)
            nl = o.hl_per_tile[t]
            pos = [int((k + 0.5) * nins / nl) for k in range(nl)] if nl else []
            for idx, (ins, _) in enumerate(tile):
                if idx in pos:
                    for li in hload(nextL): a(li)
                    vops.append(("L", nextL)); nextL += 1
                if ins.startswith("buffer_store"):
                    if o.late_st:
                        late_stores.append((ins, t)); continue
                    vops.append(("S", t))
                a(ins)
        for ins, t in late_stores:
            a(ins); vops.append(("S", t))
    tr("D")
    a("s_barrier")
    st(3); tr("D"); tre()
    def unit_sgpr(n):
        p, j = n // 28, (n % 28) >> 2
        if p == 0: return (UB[j], 0)
        if j < 3: return (None, [7, 6, 8][j] * 16384)
        return (UB[j - 3], 0)
    def p2_reads(n):
        v = n & 3
        sg, so = unit_sgpr(n)
        ch = n >> 2
        ab = 18 + 2 * (ch & 1)
        b = AFS[n & 3]
        r = []
        if v == 0:
            for n2 in range(2):
                if sg is None:
                    r.append(f"v_add_u32 v{ab+n2}, {so}, v{16+n2}")
                else:
                    r.append(f"v_add_u32 v{ab+n2}, s{sg}, v{16+n2}")
        for n2 in range(2):
            for ee in range(2):
                r.append(f"ds_read_b64_tr_b16 v[{b+4*n2+2*ee}:{b+4*n2+2*ee+1}], v{ab+n2} offset:{v*2048+ee*1024}")
        return r
    def p2_mfmas(n):
        b = AFS[n & 3]; hb = hreg(n)
        m = []
        for n2 in range(2):
            c = ACC2 + 16 * n2
            src = "0" if n == 0 else f"v[{c}:{c+15}]"
            m.append(f"{MF} v[{c}:{c+15}], v[{b+4*n2}:{b+4*n2+3}], v[{hb}:{hb+3}], {src}")
        return m
    if o.fast_tail:
        a(f"""
        s_lshl_b32 s56, s18, 12
        s_add_u32 s56, s56, s{UB[4]}
        v_add_u32 v8, s56, v22
        s_xor_b32 s57, s18, 2
        s_lshl_b32 s57, s57, 12
        s_add_u32 s57, s57, s{UB[4]}
        v_add_u32 v9, s57, v22
        v_and_b32 v10, 31, v1
        s_lshl_b32 s56, s54, 6
        s_and_b32 s57, s18, 1
        s_lshl_b32 s57, s57, 5
        s_add_u32 s56, s56, s57
        v_add_u32 v10, s56, v10
        v_mul_u32_u24 v10, 896, v10
        v_lshrrev_b32 v11, 5, v1
        v_lshl_add_u32 v10, v11, 4, v10
        s_lshl_b32 s56, s55, 7
        s_lshr_b32 s57, s18, 1
        s_lshl_b32 s57, s57, 6
        s_add_u32 s56, s56, s57
        v_add_u32 v10, s56, v10
        """)
    for n in range(3):
        for ins in p2_reads(n): a(ins)
    last_rd = 2
    def ensure(j):
        K = o.poll_k
        chk = f"""
    s_lshr_b32 s20, s29, {2*j}
    s_and_b32 s20, s20, 3
    s_cmp_eq_u32 s20, 3
"""
        a(chk + f"    s_cbranch_scc1 L_c_ok{j}")
        if K == 1:
            a(f"""
L_c_poll{j}:
    buffer_load_dwordx2 v[40:41], v2, s[40:43], s32 offen sc1
    s_waitcnt vmcnt(0)
    v_cmp_eq_u64 vcc, s[30:31], v[40:41]
    s_add_u32 s28, s28, 1
    s_nop 4
    s_and_b32 s29, vcc_lo, 0x3fff
    s_cmp_gt_u32 s28, {SPIN}
    s_cbranch_scc1 L_c_ok{j}
{chk}
    s_cbranch_scc0 L_c_poll{j}
            """)
        else:
            regs = [40, 42, 44][:K]
            for r in regs[:-1]:
                a(f"buffer_load_dwordx2 v[{r}:{r+1}], v2, s[40:43], s32 offen sc1\ns_sleep {o.poll_gap}")
            a(f"L_c_poll{j}:")
            for i in range(K):
                rin = regs[(i + K - 1) % K]; rout = regs[i]
                a(f"""
    buffer_load_dwordx2 v[{rin}:{rin+1}], v2, s[40:43], s32 offen sc1
    s_waitcnt vmcnt({K-1})
    v_cmp_eq_u64 vcc, s[30:31], v[{rout}:{rout+1}]
    s_add_u32 s28, s28, 1
    s_nop 4
    s_and_b32 s29, vcc_lo, 0x3fff
{chk}
    s_cbranch_scc1 L_c_ok{j}
                """)
            a(f"""
    s_cmp_gt_u32 s28, {SPIN}
    s_cbranch_scc0 L_c_poll{j}
            """)
        a(f"L_c_ok{j}:")
    def loadB(j):
        for v in range(4):
            for li in hload(28 + 4 * j + v):
                a(li)
    fb_step = o.fb_step if o.fb_step else nextL
    def issue_hA(k):
        nonlocal nextL
        for _ in range(k):
            if nextL <= 27:
                for li in hload(nextL): a(li)
                vops.append(("L", nextL)); nextL += 1
    def younger(tag):
        return len(vops) - 1 - vops.index(tag)
    issue_hA(o.g_loads)
    tB = o.b_sched
    for n in range(52 if o.fast_tail else 56):
        lg = 4 * (last_rd - n)
        assert 0 <= lg <= 12
        if n == fb_step and not o.st_via_p:
            a(f"s_waitcnt vmcnt({younger(('S', 3))})")
            tr("D")
            a(f"""
    v_mov_b32 v42, s30
    v_mov_b32 v43, s31
    s_mov_b64 exec, 1
    buffer_store_dwordx2 v[42:43], v3, s[40:43], s21 offen sc1
    s_mov_b64 exec, -1
            """)
            vops.append(("F", 0))
            st(4); tr("D"); tre()
        if n == tB[0]:
            tre()
            a(f"""
    s_waitcnt vmcnt({younger(('P', 0))})
    v_cmp_eq_u64 vcc, s[30:31], v[40:41]
    s_mov_b32 s28, 0
    s_nop 4
    s_and_b32 s29, vcc_lo, 0x3fff
            """)
            tre()
        for j in range(7):
            if tB[j] == n:
                assert n > 4 * j + 3 and nextL == 28
                ensure(j); loadB(j)
                for v in range(4): vops.append(("L", 28 + 4 * j + v))
                if j == 0: st(5); trk()
        a(f"s_waitcnt vmcnt({min(63, younger(('L', n)))}) lgkmcnt({lg})")
        if n in (0, 28, 29, 37, 44): tr("D")
        if n in (27, 28, 32, 36, 40, 48, 55): tre()
        if n == (o.e_step if o.st_via_p else 15): a("s_barrier")
        if n == 37: a("s_barrier")
        if n == 37: tr("D")
        nr = n + 3
        rd = []
        if nr < 56:
            rd = p2_reads(nr); last_rd = nr
        mf = p2_mfmas(n)
        a(mf[0])
        for ins in rd[:-2]: a(ins)
        a(mf[1])
        for ins in rd[-2:]: a(ins)
        if n < 28: issue_hA(o.hl_rate)
        if n == o.b_poll_step:
            a("buffer_load_dwordx2 v[40:41], v2, s[40:43], s32 offen sc1")
            vops.append(("P", 0))
    if o.fast_tail:
        assert last_rd == 54
        for ins in p2_reads(55): a(ins)
        last_rd = 55
        for n in range(52, 56):
            a(f"s_waitcnt vmcnt({min(63, younger(('L', n)))}) lgkmcnt({4 * (55 - n)})")
            a(p2_mfmas(n)[1])
        a(p2_mfmas(52)[0]); a(p2_mfmas(53)[0])
        a("s_nop 9")
        for i in range(4):
            c = ACC2 + 16 + 4 * i
            a(f"ds_write_b128 v8, v[{c}:{c+3}] offset:{i*1024}")
        a(p2_mfmas(54)[0]); a(p2_mfmas(55)[0])
    st(6); tr("D"); trk()
    if not o.fast_tail:
        a(f"""
        s_lshl_b32 s56, s18, 12
        s_add_u32 s56, s56, s{UB[4]}
        v_add_u32 v8, s56, v22
        s_xor_b32 s57, s18, 2
        s_lshl_b32 s57, s57, 12
        s_add_u32 s57, s57, s{UB[4]}
        v_add_u32 v9, s57, v22
        v_and_b32 v10, 31, v1
        s_lshl_b32 s56, s54, 6
        s_and_b32 s57, s18, 1
        s_lshl_b32 s57, s57, 5
        s_add_u32 s56, s56, s57
        v_add_u32 v10, s56, v10
        v_mul_u32_u24 v10, 896, v10
        v_lshrrev_b32 v11, 5, v1
        v_lshl_add_u32 v10, v11, 4, v10
        s_lshl_b32 s56, s55, 7
        s_lshr_b32 s57, s18, 1
        s_lshl_b32 s57, s57, 6
        s_add_u32 s56, s56, s57
        v_add_u32 v10, s56, v10
        s_nop 7
        """)
    if not o.fast_tail:
        for i in range(4):
            c = ACC2 + 16 + 4 * i
            a(f"ds_write_b128 v8, v[{c}:{c+3}] offset:{i*1024}")
    a("s_waitcnt lgkmcnt(0)\ns_barrier")
    if o.fast_tail: a("s_nop 7")
    for i in range(4):
        a(f"ds_read_b128 v[{48+4*i}:{51+4*i}], v9 offset:{i*1024}")
    for i in range(4):
        a(f"s_waitcnt lgkmcnt({3-i})")
        for k in range(4):
            a(f"v_add_f32 v{ACC2+4*i+k}, v{ACC2+4*i+k}, v{48+4*i+k}")
        a(f"v_cvt_pk_bf16_f32 v{64+2*i}, v{ACC2+4*i}, v{ACC2+4*i+1}")
        a(f"v_cvt_pk_bf16_f32 v{65+2*i}, v{ACC2+4*i+2}, v{ACC2+4*i+3}")
        if i & 1:
            b = 64 + 4 * (i >> 1)
            a("s_nop 1")
            a(f"v_permlane32_swap_b32 v{b}, v{b+2}")
            a(f"v_permlane32_swap_b32 v{b+1}, v{b+3}")
            a(f"buffer_store_dwordx4 v[{b}:{b+3}], v10, s[44:47], 0 offen offset:{(i>>1)*32} {o.outsc}")
    if o.delay_end:
        a(f"s_mov_b32 s56, {o.delay_end // 20}\nL_dly:\ns_nop 15\ns_sub_u32 s56, s56, 1\ns_cmp_lg_u32 s56, 0\ns_cbranch_scc1 L_dly")
    if o.trace in ("C", "S", "D", "K", "U", "E"):
        trk()
        tr("D")
        a("s_cmp_lg_u32 s18, 0\ns_cbranch_scc1 L_end")
        tr_store(o.trace)
    if o.stamps:
        a("s_waitcnt vmcnt(0)")
        st(7)
        a("s_cmp_lg_u32 s18, 0\ns_cbranch_scc1 L_end")
        if o.dbgst:
            a("s_cmp_lg_u32 s2, 100\ns_cbranch_scc1 L_end\ns_waitcnt lgkmcnt(0)")
            a("s_mov_b32 s48, s14\ns_mov_b32 s49, s15\ns_mov_b32 s50, 256\ns_mov_b32 s51, 0x20000\nv_mov_b32 v0, 0\ns_mov_b64 exec, 1")
            a("v_mov_b32 v2, s80\nbuffer_store_dword v2, v0, s[48:51], 0 offen offset:16")
            for k in range(1, 8):
                a(f"s_sub_u32 s56, s{80+2*k}, s80\nv_mov_b32 v2, s56\nbuffer_store_dword v2, v0, s[48:51], 0 offen offset:{16+4*k}\ns_nop 1")
        else:
            a(store_stamps(8, 16, 17, 2, vt=0, tmp=72))
    a("s_endpgm")

    if o.share_g:
        a("L_geglu:")
        for t in range(4):
            for ins, _ in geglu_tile(ACCA, t, 0, T + 8 * (t & 1), PK + 4 * (t & 1), packed=o.pk, cpair=4): a(ins)
        a("s_setpc_b64 s[8:9]")
    a("L_loader:")
    a(f"""
    s_setprio 3
    v_lshrrev_b32 v24, 3, v1
    v_mul_u32_u24 v25, 3584, v24
    v_and_b32 v26, 7, v1
    v_bfe_u32 v27, v1, 4, 1
    v_lshlrev_b32 v28, 1, v27
    v_xor_b32 v28, v26, v28               ; c gate
    v_lshl_add_u32 v2, v28, 4, v25
    v_xor_b32 v28, 4, v28
    v_lshl_add_u32 v6, v28, 4, v25
    s_lshl_b32 s56, s53, 8
    v_add_u32 v2, s56, v2
    v_add_u32 v6, s56, v6
    """)
    for k in range(1, 4):
        a(f"v_add_u32 v{2+k}, {k*(8*3584-1024)}, v2\nv_add_u32 v{6+k}, {k*(8*3584-1024)}, v6")
    a(f"""
    v_mul_u32_u24 v25, 896, v24
    v_lshlrev_b32 v28, 2, v27
    v_xor_b32 v28, v26, v28
    v_lshl_add_u32 v10, v28, 4, v25
    s_lshl_b32 s56, s55, 7
    v_add_u32 v10, s56, v10
    """)
    for k in range(1, 4):
        a(f"v_add_u32 v{10+k}, {k*(8*896-1024)}, v10")
    a(f"""
    v_lshrrev_b32 v27, 4, v1
    v_xor_b32 v28, v26, v27
    v_lshl_add_u32 v14, v28, 4, v25
    v_xor_b32 v28, 4, v28
    v_lshl_add_u32 v15, v28, 4, v25
    s_mul_i32 s56, s52, {128*896}
    v_add_u32 v14, s56, v14
    s_add_u32 s56, s56, {8*896-1024}
    v_add_u32 v15, s56, v15
    v_add_u32 v16, {2*(8*896-1024)}, v14
    v_add_u32 v17, {2*(8*896-1024)}, v15
    """)
    LT = 70 if o.trace == "L" else 80
    XT, WT, DT = 20, 44, 36+16
    for j in range(4):
        a(f"""
    s_cmp_eq_u32 s{RT+j}, 5
    s_cselect_b32 s56, 9, s{RT+j}
    s_cmp_eq_u32 s{RT+j}, 6
    s_cselect_b32 s56, 5, s56
    s_lshl_b32 s{72+j}, s56, 14
        """)
    for j in range(7):
        a(f"s_lshl_b32 s{33+j}, s{RT+j}, 7")
        a(f"s_mul_i32 s{44+j}, s{RT+j}, {64*3584}")
        a(f"s_mul_i32 s{RT+j}, s{RT+j}, {256*896}")
    a("s_waitcnt lgkmcnt(0)")
    srd(a, 24, 4, 2048 * 896)
    srd(a, 28, 6, 448 * 3584)
    a(f"""
    s_mov_b32 s56, s8
    s_mov_b32 s57, s9
    s_mov_b32 s58, {448*3584}
    s_mov_b32 s59, 0x20000
    s_mov_b32 s68, s10
    s_mov_b32 s69, s11
    """)
    a(f"""
    s_mov_b32 s20, s10
    s_mov_b32 s21, s11
    s_mov_b32 s22, {1792*896}
    s_mov_b32 s23, 0x20000
    """)
    def loader_body(role):
        order = []
        def xdmaL(s):
            for g in range(4):
                a(f"s_mov_b32 m0, {s*16384 + g*4096}")
                a(f"s_add_u32 s67, s{33+s}, {g*32*896}")
                for k in range(4):
                    a(f"buffer_load_dwordx4 v{14+k}, s[24:27], s67 offen offset:{k*1024} lds")
                    order.append(("W", s))
        def wdma(s):
            slot = s % 3; pas = s // 7; ss = s % 7
            for mat in range(2):
                sr = "s[28:31]" if mat == 0 else "s[56:59]"
                for g in range(2):
                    a(f"s_mov_b32 m0, {114688 + slot*16384 + mat*8192 + g*4096}")
                    a(f"s_add_u32 s67, s{44+ss}, {32*g*3584 + pas*128}")
                    for k in range(4):
                        a(f"buffer_load_dwordx4 v{2+4*mat+k}, {sr}, s67 offen offset:{k*1024} lds")
                        order.append(("W", s))
        def ddma(p, j, unit, phys=False, dyn_unit=None):
            for g in range(4):
                if dyn_unit is None:
                    a(f"s_mov_b32 m0, {unit*16384 + g*4096}")
                else:
                    a(f"s_add_u32 m0, s{dyn_unit}, {g*4096}")
                if phys:
                    a(f"s_mov_b32 s67, {(256*j + 128*(g>>1) + 64*p + 32*(g&1))*896}")
                else:
                    a(f"s_add_u32 s67, s{RT+j}, {(128*(g>>1) + 64*p + 32*(g&1))*896}")
                for k in range(4):
                    a(f"buffer_load_dwordx4 v{10+k}, s[20:23], s67 offen offset:{k*1024} lds")
                    order.append(("D", p, j))
        def wait_tag(tag):
            idx = [i for i, t in enumerate(order) if t == tag]
            if not idx: return
            n = len(order) - 1 - max(idx)
            a(f"s_waitcnt vmcnt({min(n, 63)})")
        def room(k):
            a(f"s_waitcnt vmcnt({63-k})")
        doW = role in ("all", "W"); doX = role in ("all", "X")
        tr("L")
        if o.p_order == 1:
            a("s_barrier\ns_barrier")
        a("s_barrier")
        for i in range(15):
            split7 = o.r7late and o.r7split and i == 7
            if 2 <= i <= 13 and not split7: wait_tag(("W", i))
            tr("L")
            a("s_barrier")
            if doX and i + 2 <= 6:
                room(16); xdmaL(i + 2)
            if doW and i + 2 <= 13:
                room(16); wdma(i + 2)
            if split7:
                wait_tag(("W", 7))
                a("s_barrier")
            if doW and i in o.w7pf:
                sN = i + 3; pas = sN // 7; ss = sN % 7
                room(16)
                for mat in range(2):
                    sr = "s[28:31]" if mat == 0 else "s[56:59]"
                    for g in range(2):
                        a(f"s_add_u32 s67, s{44+ss}, {32*g*3584 + pas*128}")
                        for k in range(4):
                            a(f"buffer_load_dwordx4 v[{32+4*k+16*g+32*mat}:{35+4*k+16*g+32*mat}], v{2+4*mat+k}, {sr}, s67 offen offset:{k*1024}")
                            order.append(("PF", sN))
            if doX:
                if 8 <= i <= 12:
                    room(16); ddma(0, i - 8, i - 8, phys=True)
                if i == 12:
                    room(16); ddma(0, 5, 9, phys=True)
                if i == 13:
                    room(16); ddma(0, 6, 5, phys=True)
                    room(16); ddma(1, 0, 7)
                if i == 14 and not o.b12_late:
                    room(16); ddma(1, 1, 6)
                    if not o.st_via_p:
                        room(16); ddma(1, 2, 8)
        if role == "W":
            a("s_endpgm")
            return
        if o.st_via_p and o.half_bar: a("s_barrier")
        a("s_waitcnt vmcnt(0)")
        a("LST0")
        a("s_barrier")
        if o.b12_late:
            room(16); ddma(1, 1, 6)
            room(16); ddma(1, 2, 8)
            a("s_waitcnt vmcnt(0)")
        a("s_barrier")
        a("LST1")
        if o.st_via_p:
            room(16); ddma(1, 2, 8)
        for j in (3, 4, 5, 6):
            room(16); ddma(1, j, None, dyn_unit=72 + j - 3)
        a("LST2")
        a("s_waitcnt vmcnt(0)")
        a("LST4")
        a("s_barrier")
        a("LSTORE")
        tr_store("L", tmp=24)
        a("s_endpgm")
    if o.two_l:
        a("s_cmp_eq_u32 s18, 6\ns_cbranch_scc1 L_loaderX")
        loader_body("W")
        a("L_loaderX:")
        loader_body("X")
    else:
        loader_body("all")

    a("L_poller:")
    a(f"""
    s_setprio 3
    s_mul_i32 s56, s21, 112
    v_lshrrev_b32 v4, 3, v1
    v_add_u32 v4, s56, v4
    v_mul_u32_u24 v4, 3584, v4
    v_and_b32 v5, 7, v1
    v_lshl_add_u32 v4, v5, 4, v4
    s_lshl_b32 s56, s53, 8
    s_add_u32 s56, s56, 128
    v_add_u32 v4, s56, v4
    v_lshrrev_b32 v16, 3, v1
    s_and_b32 s56, s21, 1
    s_lshl_b32 s56, s56, 5
    v_add_u32 v16, s56, v16
    v_mul_u32_u24 v16, 3584, v16
    v_lshl_add_u32 v16, v5, 4, v16
    s_lshl_b32 s56, s53, 8
    v_add_u32 v16, s56, v16
    s_add_u32 s60, s22, 4
    s_cmp_ge_u32 s60, 7
    s_cselect_b32 s56, 7, 0
    s_sub_u32 s60, s60, s56
    s_add_u32 s61, s60, 1
    s_cmp_ge_u32 s61, 7
    s_cselect_b32 s56, 7, 0
    s_sub_u32 s61, s61, s56
    s_add_u32 s62, s61, 1
    s_cmp_ge_u32 s62, 7
    s_cselect_b32 s56, 7, 0
    s_sub_u32 s62, s62, s56
    s_mul_i32 s60, s60, {64*3584}
    s_mul_i32 s61, s61, {64*3584}
    s_mul_i32 s62, s62, {64*3584}
    v_mov_b32 v2, 0
    v_lshlrev_b32 v13, 20, v1
    s_waitcnt lgkmcnt(0)
    """)
    srd(a, 28, 6, 448 * 3584)
    srd(a, 32, 8, 448 * 3584)
    srd(a, 40, 16, WS_SIZE)
    srd(a, 44, 12, 2048 * 896)
    srd(a, 48, 14, 256)
    a(f"""
    s_lshr_b32 s56, s21, 1
    s_cmp_eq_u32 s56, 0
    s_cselect_b32 s64, s6, s8
    s_cselect_b32 s65, s7, s9
    s_mov_b32 s66, {448*3584}
    s_mov_b32 s67, 0x20000
    """)
    def wa_rest(sreg, base):
        for i in range(4):
            a(f"s_add_u32 s56, s{sreg}, {i*8*3584}")
            a(f"buffer_load_dwordx4 v[{base+4*i}:{base+4*i+3}], v16, s[64:67], s56 offen")
    if o.prefetch and o.rmul == 1:
        wa_rest(60, 100)
    a(f"""
    s_cmp_lg_u32 s2, 0
    s_cbranch_scc1 L_p_nonce
    s_memrealtime s[70:71]
    s_waitcnt lgkmcnt(0)
    v_mov_b32 v6, s70
    v_mov_b32 v7, s71
    s_mov_b64 exec, 1
    buffer_store_dwordx2 v[6:7], v2, s[48:51], 0 offen sc1
    s_mov_b64 exec, -1
L_p_nonce:
    """)
    def pbatch():
        if o.prefetch:
            for k in range(o.pb_n):
                a(f"s_mov_b32 s56, {k*8*3584}")
                a(f"buffer_load_dwordx4 v[{20+8*(k%8)}:{23+8*(k%8)}], v4, s[28:31], s56 offen")
                a(f"buffer_load_dwordx4 v[{24+8*(k%8)}:{27+8*(k%8)}], v4, s[32:35], s56 offen")
    if o.p_order == 1:
        a("s_barrier"); pbatch(); a("s_barrier")
    a("s_barrier")
    if o.p_order == 0: pbatch()
    a(f"""
    s_mov_b64 exec, 0x1ff
    buffer_load_dword v14, v13, s[40:43], 0 offen
    s_mov_b64 exec, 3
    buffer_load_dword v15, v13, s[44:47], 0 offen
    s_mov_b64 exec, -1
    s_lshl_b32 s72, s52, 4
    s_add_u32 s72, s72, s53
    s_lshl_b32 s72, s72, 7
    s_add_u32 s72, s72, {FLAG_OFF}
    s_add_u32 s73, s72, {16*16*128}
    s_lshr_b32 s74, s54, 1
    s_lshl_b32 s74, s74, 11
    s_add_u32 s74, s74, {FLAG_OFF}
    s_add_u32 s75, s74, {16*16*128}
    v_min_u32 v8, 13, v1
    v_lshlrev_b32 v8, 7, v8
    """)
    for i in range(9):
        a("s_barrier")
        if o.p_order == 2 and i == 0:
            for _ in range(5): a("s_nop 15")
            pbatch()
        if o.p_order == 3 and i == 1:
            pbatch()
        if o.p_order == 4 and i == 0:
            pbatch()
        if o.p_order in (5, 6) and i == o.p_order - 3:
            pbatch()
        if i == (6 if o.r7late else 7):
            a("buffer_load_dwordx2 v[6:7], v2, s[48:51], 0 offen sc1")
        if i == 7 and o.r7late and o.r7split:
            a("s_barrier")
    a(f"""
    s_mov_b32 s76, 0
L_p_chknonce:
    s_waitcnt vmcnt(0)
    v_readfirstlane_b32 s70, v6
    v_readfirstlane_b32 s71, v7
    s_add_u32 s76, s76, 1
    s_nop 3
    s_or_b32 s56, s70, s71
    s_cmp_lg_u32 s56, 0
    s_cbranch_scc1 L_p_havenonce
    s_cmp_gt_u32 s76, {SPIN}
    s_cbranch_scc1 L_p_havenonce
    buffer_load_dwordx2 v[6:7], v2, s[48:51], 0 offen sc1
    s_branch L_p_chknonce
L_p_havenonce:
    s_barrier                              ; R_9
    PST0
    s_mov_b64 exec, 1
    buffer_store_dwordx2 v[6:7], v2, s[40:43], s72 offen sc1     ; flag A
    s_mov_b64 exec, -1
    s_barrier                              ; R_10
    s_barrier                              ; R_11
    buffer_load_dwordx2 v[10:11], v8, s[40:43], s74 offen sc1
    s_barrier                              ; R_12
APOLL
L_p_gotA:
    PST1
    s_barrier                              ; R_13
    PHB_SETUP
    s_barrier                              ; R_14
    PHB_BODY
    PST4
    PSTORE
    s_endpgm
L_helper:
    s_sub_u32 s56, s2, 224
    s_lshr_b32 s56, s56, 3
    s_mul_i32 s56, s56, {NW}
    s_add_u32 s56, s56, s18
    v_lshlrev_b32 v2, 4, v1
CODEPF
    s_waitcnt lgkmcnt(0)
    s_mov_b32 s36, s10
    s_mov_b32 s37, s11
    s_mov_b32 s38, {1792*896}
    s_mov_b32 s39, 0x20000
    s_mul_i32 s62, s19, 7
    s_lshr_b32 s62, s62, 2
HROT
HDELAY
L_h_loop:
    ; KB index k=s56 in [0,1568): part = k>=784 ; kk = k - 784*part ; block b = kk/56, off = kk%56 : addr = (128b + 64*part)*896 + off*1024
    s_cmp_ge_u32 s56, 784
    s_cselect_b32 s60, 784, 0
    s_cselect_b32 s61, {64*896}, 0
    s_sub_u32 s60, s56, s60
    s_mul_i32 s58, s60, 1171
    s_lshr_b32 s58, s58, 16               ; kk/56
    s_mul_i32 s59, s58, 56
    s_sub_u32 s59, s60, s59
    s_lshl_b32 s59, s59, 10
    s_add_u32 s58, s58, s62
    s_cmp_ge_u32 s58, 14
    s_cselect_b32 s63, 14, 0
    s_sub_u32 s58, s58, s63
    s_mul_i32 s58, s58, {128*896}
    s_add_u32 s58, s58, s59
    s_add_u32 s58, s58, s61
    buffer_load_dwordx4 v[4:7], v2, s[36:39], s58 offen
    s_waitcnt vmcnt(40)
    s_add_u32 s56, s56, {4*NW}
    s_cmp_lt_u32 s56, 1568
    s_cbranch_scc1 L_h_loop
L_end:
    s_endpgm
    """)
    a(rodata_begin())
    a(descriptor(KN, vgpr=256, sgpr=102))
    txt = a.text()
    ap1 = f"""    s_mov_b32 s76, 0
L_p_pollA:
    s_waitcnt vmcnt(0)
    v_cmp_ne_u64 vcc, s[70:71], v[10:11]
    s_add_u32 s76, s76, 1
    s_nop 4
    s_cbranch_vccz L_p_gotA
    s_cmp_gt_u32 s76, {SPIN}
    s_cbranch_scc1 L_p_gotA
    buffer_load_dwordx2 v[10:11], v8, s[40:43], s74 offen sc1
    s_branch L_p_pollA
"""
    ap2 = f"""    s_mov_b32 s76, 0
L_p_pollA:
    buffer_load_dwordx2 v[12:13], v8, s[40:43], s74 offen sc1
    s_waitcnt vmcnt(1)
    v_cmp_ne_u64 vcc, s[70:71], v[10:11]
    s_add_u32 s76, s76, 1
    s_nop 4
    s_cbranch_vccz L_p_gotA
    buffer_load_dwordx2 v[10:11], v8, s[40:43], s74 offen sc1
    s_waitcnt vmcnt(1)
    v_cmp_ne_u64 vcc, s[70:71], v[12:13]
    s_nop 4
    s_cbranch_vccz L_p_gotA
    s_cmp_gt_u32 s76, {SPIN}
    s_cbranch_scc0 L_p_pollA
"""
    txt = txt.replace("APOLL\n", ap2 if o.apoll2 else ap1)
    if o.st_via_p:
        setup = ""
        for cw in range(4):
            for i in range(2):
                setup += f"""    s_lshl_b32 s56, s52, 2
    s_add_u32 s56, s56, {2*(cw&1)+i}
    s_mul_i32 s56, s56, 112
    s_lshl_b32 s57, s53, 3
    s_add_u32 s56, s56, s57
    s_add_u32 s56, s56, {2*(cw>>1)+4}
    s_lshl_b32 s{90+2*cw+i}, s56, 10
"""
        setup += """    v_lshlrev_b32 v20, 4, v1
    v_add_u32 v21, 131072, v20
    v_lshlrev_b32 v22, 3, v1
"""
        def half(ts):
            b = ""
            k = 0
            for cw in range(4):
                for t in ts:
                    b += f"    ds_read_b128 v[{32+4*k}:{35+4*k}], v21 offset:{cw*4096+t*1024}\n"; k += 1
            k = 0
            n = 4 * len(ts)
            for cw in range(4):
                for t in ts:
                    b += f"    s_waitcnt lgkmcnt({n-1-k})\n    buffer_store_dwordx4 v[{32+4*k}:{35+4*k}], v20, s[40:43], s{90+2*cw+(t&1)} offen offset:{(t>>1)*1024} {o.hst}\n"; k += 1
            return b
        body = ""
        if o.half_bar:
            body += "    s_barrier\n" + half((0, 1)) + "    s_barrier\n" + half((2, 3)).replace("v[3", "v[3")
        else:
            body += "    s_barrier\n" + half((0, 1, 2, 3))
        body += """    s_waitcnt vmcnt(0)
    s_mov_b64 exec, 15
    buffer_store_dwordx2 v[6:7], v22, s[40:43], s73 offen sc1
    s_mov_b64 exec, -1
"""
        txt = txt.replace("    PHB_SETUP\n", setup).replace("    PHB_BODY\n", body)
    else:
        txt = txt.replace("    PHB_SETUP\n", "").replace("    PHB_BODY\n", "    s_barrier                              ; G\n")
    codepf = """    ; prefetch this kernel's code into the XCD's L2: wave index hx*6+w loads KB number k, k+24
    s_getpc_b64 s[40:41]
L_pc_here:
    s_add_u32 s40, s40, KSTART-L_pc_here
    s_addc_u32 s41, s41, -1
    s_lshl_b32 s57, s56, 10
    v_add_u32 v3, s57, v2
    v_min_u32 v3, KEND-KSTART-16, v3
    global_load_dwordx4 v[8:11], v3, s[40:41]
    v_add_u32 v3, 24576, v3
    v_min_u32 v3, KEND-KSTART-16, v3
    global_load_dwordx4 v[12:15], v3, s[40:41]
"""
    txt = txt.replace("CODEPF\n", codepf if o.codepf else "")
    txt = txt.replace(KN + ":\n", KN + ":\nKSTART:\n", 1)
    txt = txt.replace("L_end:\n    s_endpgm\n", "L_end:\n    s_endpgm\nKEND:\n")
    txt = txt.replace("    TRU\n", "    s_memrealtime s[72:73]\n" if o.trace == "U" else "")
    txt = txt.replace("HROT\n", "" if o.hrot else "    s_mov_b32 s62, 0\n")
    txt = txt.replace("HDELAY\n", "".join("    s_sleep 16\n" for _ in range(o.hdelay)))
    for k in range(5):
        txt = txt.replace(f"    PST{k}\n", f"    s_memrealtime s[{80+2*k}:{81+2*k}]\n" if o.stamps else "")
    txt = txt.replace("    PSTORE\n", ("s_add_u32 s2, s2, 256\n" + store_stamps(5, 16, 17, 2, vt=20, tmp=56)) if (o.stamps and not o.dbgst) else "")
    for k in range(6):
        txt = txt.replace(f"LST{k}\n", f"s_memrealtime s[{80+2*k}:{81+2*k}]\n" if o.stamps else "")
    txt = txt.replace("LSTORE\n", ("s_add_u32 s2, s2, 512\n" + store_stamps(6, 16, 17, 2, vt=20, tmp=56)) if (o.stamps and not o.dbgst) else "")
    open(name, "w").write(txt)

if __name__ == "__main__":
    def base():
        o = Opt(); o.b_poll_step = 20; o.b_sched = (26, 27, 28, 31, 34, 38, 42); o.pre_h = 4; o.b12_late = False
        o.share_g = True; o.fast_tail = True; o.p_order = 3; o.prefetch = False; o.st_via_p = False; o.stamps = True
        o.poll_k = 3; o.poll_gap = 6; return o
    o = base(); gen("i0.s", o)
    o = base(); o.r7split = False; gen("i1.s", o)
    o = base(); o.stamps = False; gen("i0n.s", o)
    o = base(); o.stamps = False; o.trace = "C"; gen("i0c.s", o)
```
